```python
import torch

def _softmax(x, axis=-1):
    return torch.softmax(x, dim=axis)
def _gelu(x):
    return torch.nn.functional.gelu(x, approximate="tanh")
def _silu(x):
    return torch.nn.functional.silu(x)
def _sigmoid(x):
    return torch.sigmoid(x)
def _layernorm(x, axis=-1, eps=1e-5):
    m = x.mean(dim=axis, keepdim=True)
    v = x.var(dim=axis, keepdim=True, unbiased=False)
    return (x - m) / torch.sqrt(v + eps)
def _scatter_add(tgt, idx, src, axis=0):
    return tgt.clone().index_add_(axis, idx, src)
def _segment_sum(src, seg, n):
    out = torch.zeros((n,) + src.shape[1:], dtype=src.dtype)
    return out.index_add_(0, seg, src)
def _pad(x, pw):
    flat = tuple(v for pair in reversed(pw) for v in pair)
    return torch.nn.functional.pad(x, flat)

kernel_name = 'standalone__molecular_angular_gemnet__graph'

def setup_inputs():

    _w = (lambda a: (lambda t: t.to(torch.bfloat16) if t.is_floating_point() else t)(torch.as_tensor(a)))
    N, deg, De, L = 25000, 16, 4, 3
    E = N * deg
    T = E * deg
    NR = 8
    dist = torch.rand(E).to(float)
    angle = (torch.rand(T) * torch.pi).to(float)
    centers = torch.linspace(0.0, 1.0, NR).to(float)
    ang_freq = torch.arange(1, L + 1).to(float)
    return {
        "m": _w((lambda *s: torch.randn(*s, dtype=torch.bfloat16) * 0.05)(E, De)),
        "idx_in": _w((lambda lo, hi, *s: torch.randint(lo, hi, s))(0, E, T).to(torch.int64)),
        "idx_out": _w((lambda lo, hi, *s: torch.randint(lo, hi, s))(0, E, T).to(torch.int64)),
        "dist": _w(dist),
        "angle": _w(angle),
        "centers": _w(centers),
        "ang_freq": _w(ang_freq),
        "w_rbf": _w((lambda *s: torch.randn(*s, dtype=torch.bfloat16) * 0.4)(NR, De)),
        "w_sbf": _w((lambda *s: torch.randn(*s, dtype=torch.bfloat16) * 0.4)(NR * L, De)),
        "w_down": _w((lambda *s: torch.randn(*s, dtype=torch.bfloat16) * 0.4)(De, De)),
        "w_up": _w((lambda *s: torch.randn(*s, dtype=torch.bfloat16) * 0.4)(De, De)),
    }

def reference(m, idx_in, idx_out, dist, angle, centers, ang_freq, w_rbf, w_sbf, w_down, w_up):
    E, De = m.shape[0], m.shape[1]
    NR = centers.shape[0]
    L = ang_freq.shape[0]
    rbf = torch.exp(-10.0 * (dist[:, None] - centers[None, :]) ** 2)
    cbf = torch.cos(ang_freq[None, :] * angle[:, None])
    rbf_t = rbf[idx_out]
    sbf = torch.reshape(rbf_t[:, :, None] * cbf[:, None, :], (-1, NR * L))
    x = (m[idx_in] @ w_down) * (sbf @ w_sbf)
    agg = _segment_sum(x, idx_out, E)
    return m + (agg @ w_up) * (rbf @ w_rbf)
```

```python
import sys
E=400000; T=6400000
HDR = open('standalone__molecular_angular_gemnet__graph.s.ref').read().split('; Override launch')[0]
out=[]
def w(s): out.append(s)

def kd(name, vgpr, sgpr):
    return f""".section .rodata,"a"
.p2align 6
.amdhsa_kernel {name}
  .amdhsa_next_free_vgpr {vgpr}
  .amdhsa_next_free_sgpr {sgpr}
  .amdhsa_accum_offset {(vgpr+3)//4*4}
  .amdhsa_group_segment_fixed_size 0
  .amdhsa_kernarg_size 112
  .amdhsa_user_sgpr_count 2
  .amdhsa_user_sgpr_kernarg_segment_ptr 1
  .amdhsa_system_sgpr_workgroup_id_x 1
  .amdhsa_float_denorm_mode_32 3
.end_amdhsa_kernel
.text
"""
def head(name):
    return f""".globl {name}
.p2align 8
.type {name},@function
{name}:
"""
def srd(d, b, nbytes):
    return f"""    s_mov_b32 s{d}, s{b}
    s_and_b32 s{d+1}, s{b+1}, 0xffff
    s_mov_b32 s{d+2}, {nbytes}
    s_mov_b32 s{d+3}, 0x00020000
"""
def rbf_code(vd, vr0, vt0, scent):
    s=""
    for p in range(4):
        a=vr0+2*p; b=a+1
        s+=f"""    s_lshl_b32 s90, s{scent+p}, 16
    s_and_b32 s91, s{scent+p}, 0xffff0000
    v_subrev_f32 v{a}, s90, v{vd}
    v_subrev_f32 v{b}, s91, v{vd}
    v_cvt_pk_bf16_f32 v{vt0}, v{a}, v{b}
    v_lshlrev_b32 v{a}, 16, v{vt0}
    v_and_b32 v{b}, 0xffff0000, v{vt0}
    v_mul_f32 v{a}, v{a}, v{a}
    v_mul_f32 v{b}, v{b}, v{b}
    v_cvt_pk_bf16_f32 v{vt0}, v{a}, v{b}
    v_lshlrev_b32 v{a}, 16, v{vt0}
    v_and_b32 v{b}, 0xffff0000, v{vt0}
    v_mul_f32 v{a}, 0xc1200000, v{a}
    v_mul_f32 v{b}, 0xc1200000, v{b}
    v_cvt_pk_bf16_f32 v{vt0}, v{a}, v{b}
    v_lshlrev_b32 v{a}, 16, v{vt0}
    v_and_b32 v{b}, 0xffff0000, v{vt0}
    v_mul_f32 v{a}, 0x3fb8aa3b, v{a}
    v_mul_f32 v{b}, 0x3fb8aa3b, v{b}
    v_exp_f32 v{a}, v{a}
    v_exp_f32 v{b}, v{b}
    s_nop 1
    v_cvt_pk_bf16_f32 v{vt0}, v{a}, v{b}
    v_lshlrev_b32 v{a}, 16, v{vt0}
    v_and_b32 v{b}, 0xffff0000, v{vt0}
"""
    return s

probe = sys.argv[1] if len(sys.argv)>1 else ""
w(HDR)
NB_E=(E+255)//256
if probe=="first": w(f"; @launch kernel=probe_kernel grid=(2048,1,1) block=(256,1,1) lds=0")
w(f"; @launch kernel=k0_kernel grid=({NB_E},1,1) block=(256,1,1) lds=0")
w(f"; @launch kernel=k1_kernel grid=({T//256},1,1) block=(256,1,1) lds=0")
w(f"; @launch kernel=k2_kernel grid=({NB_E},1,1) block=(256,1,1) lds=0")
if probe=="last": w(f"; @launch kernel=probe_kernel grid=(2048,1,1) block=(256,1,1) lds=0")
w('.amdgcn_target "amdgcn-amd-amdhsa--gfx950"\n.text')
w(head("k0_kernel"))
w(f"""    s_load_dwordx2 s[4:5], s[0:1], 24     ; dist
    s_load_dwordx2 s[6:7], s[0:1], 40     ; centers
    s_load_dwordx2 s[8:9], s[0:1], 64     ; w_sbf
    s_load_dwordx2 s[10:11], s[0:1], 104  ; ws
    s_waitcnt lgkmcnt(0)
    s_load_dwordx4 s[12:15], s[6:7], 0
    s_load_dwordx16 s[16:31], s[8:9], 0
    s_load_dwordx16 s[32:47], s[8:9], 64
    s_load_dwordx16 s[48:63], s[8:9], 128
""")
w(srd(64,4,E*2)); w(srd(68,10,E*16));
w(f"""    s_add_u32 s10, s10, {E*16}
    s_addc_u32 s11, s11, 0
""")
w(srd(72,10,E*48))
w(f"""    s_lshl_b32 s3, s2, 8
    v_add_u32 v1, s3, v0
    v_lshlrev_b32 v2, 1, v1
    buffer_load_ushort v3, v2, s[64:67], 0 offen
    s_waitcnt vmcnt(0) lgkmcnt(0)
    v_lshlrev_b32 v3, 16, v3
""")
w(rbf_code(3,8,4,12))
for i in range(12): w(f"    v_mov_b32 v{16+i}, 0")
for r in range(8):
    for l in range(3):
        row=r*3+l
        for p in range(2):
            sg=16+row*2+p
            w(f"""    s_lshl_b32 s90, s{sg}, 16
    s_and_b32 s91, s{sg}, 0xffff0000
    v_fma_f32 v{16+l*4+2*p}, v{8+r}, s90, v{16+l*4+2*p}
    v_fma_f32 v{16+l*4+2*p+1}, v{8+r}, s91, v{16+l*4+2*p+1}""")
w(f"""    v_mul_u32_u24 v2, 48, v1
    buffer_store_dwordx4 v[16:19], v2, s[72:75], 0 offen
    buffer_store_dwordx4 v[20:23], v2, s[72:75], 0 offen offset:16
    buffer_store_dwordx4 v[24:27], v2, s[72:75], 0 offen offset:32
    v_mov_b32 v28, 0
    v_mov_b32 v29, 0
    v_mov_b32 v30, 0
    v_mov_b32 v31, 0
    v_lshlrev_b32 v2, 4, v1
    buffer_store_dwordx4 v[28:31], v2, s[68:71], 0 offen
    s_endpgm
""")
w(kd("k0_kernel",32,96))
w(head("k1_kernel"))
w(f"""    s_load_dwordx4 s[4:7], s[0:1], 0
    s_load_dwordx2 s[8:9], s[0:1], 16     ; idx_out
    s_load_dwordx2 s[10:11], s[0:1], 32   ; angle
    s_load_dwordx2 s[12:13], s[0:1], 72   ; w_down
    s_load_dwordx2 s[14:15], s[0:1], 104  ; ws
    s_cmp_ge_u32 s2, {T//256}
    s_cbranch_scc1 k1_done
    s_waitcnt lgkmcnt(0)
    s_load_dwordx8 s[16:23], s[12:13], 0
""")
w(srd(64,4,E*8)); w(srd(68,6,T*4)); w(srd(72,8,T*4)); w(srd(76,10,T*2)); w(srd(80,14,E*16))
w(f"""    s_add_u32 s14, s14, {E*16}
    s_addc_u32 s15, s15, 0
""")
w(srd(84,14,E*48))
w(f"""    s_lshl_b32 s3, s2, 8
    v_add_u32 v1, s3, v0
    v_lshlrev_b32 v2, 2, v1
    v_lshlrev_b32 v3, 1, v1
    buffer_load_dword v4, v2, s[68:71], 0 offen
    buffer_load_dword v5, v2, s[72:75], 0 offen
    buffer_load_ushort v6, v3, s[76:79], 0 offen
    s_waitcnt vmcnt(0) lgkmcnt(0)
    v_lshlrev_b32 v4, 3, v4
    v_mul_u32_u24 v7, 48, v5
    buffer_load_dwordx2 v[8:9], v4, s[64:67], 0 offen
    buffer_load_dwordx4 v[16:19], v7, s[84:87], 0 offen
    buffer_load_dwordx4 v[20:23], v7, s[84:87], 0 offen offset:16
    buffer_load_dwordx4 v[24:27], v7, s[84:87], 0 offen offset:32
    v_lshlrev_b32 v6, 16, v6
    v_mul_f32 v10, 3.0e0, v6
""".replace("3.0e0","0x40400000"))
w(f"""    v_cvt_pk_bf16_f32 v10, v10, v10
    v_and_b32 v10, 0xffff0000, v10
    v_mul_f32 v11, 0.15915494, v6
    v_mul_f32 v12, 0x3ea2f983, v6
    v_mul_f32 v13, 0.15915494, v10
    v_fract_f32 v11, v11
    v_fract_f32 v12, v12
    v_fract_f32 v13, v13
    v_cos_f32 v11, v11
    v_cos_f32 v12, v12
    v_cos_f32 v13, v13
    s_waitcnt vmcnt(0)
    v_lshlrev_b32 v28, 16, v8
    v_and_b32 v29, 0xffff0000, v8
    v_lshlrev_b32 v30, 16, v9
    v_and_b32 v31, 0xffff0000, v9
""")
for d in range(4): w(f"    v_mov_b32 v{32+d}, 0")
for k in range(4):
    for p in range(2):
        sg=16+k*2+p
        w(f"""    s_lshl_b32 s90, s{sg}, 16
    s_and_b32 s91, s{sg}, 0xffff0000
    v_fma_f32 v{32+2*p}, v{28+k}, s90, v{32+2*p}
    v_fma_f32 v{32+2*p+1}, v{28+k}, s91, v{32+2*p+1}""")
for d in range(4):
    w(f"""    v_mul_f32 v{36+d}, v11, v{16+d}
    v_fma_f32 v{36+d}, v12, v{20+d}, v{36+d}
    v_fma_f32 v{36+d}, v13, v{24+d}, v{36+d}
    v_mul_f32 v{36+d}, v{36+d}, v{32+d}""")
w(f"""    v_lshlrev_b32 v5, 4, v5
    buffer_atomic_add_f32 v36, v5, s[80:83], 0 offen
    buffer_atomic_add_f32 v37, v5, s[80:83], 0 offen offset:4
    buffer_atomic_add_f32 v38, v5, s[80:83], 0 offen offset:8
    buffer_atomic_add_f32 v39, v5, s[80:83], 0 offen offset:12
k1_done:
    s_endpgm
""")
w(kd("k1_kernel",40,96))
w(head("k2_kernel"))
w(f"""    s_load_dwordx2 s[4:5], s[0:1], 24     ; dist
    s_load_dwordx2 s[6:7], s[0:1], 40     ; centers
    s_load_dwordx2 s[8:9], s[0:1], 56     ; w_rbf
    s_load_dwordx2 s[10:11], s[0:1], 104  ; ws
    s_load_dwordx4 s[40:43], s[0:1], 80
    s_load_dwordx2 s[44:45], s[0:1], 0  ; m
    s_waitcnt lgkmcnt(0)
    s_load_dwordx4 s[12:15], s[6:7], 0
    s_load_dwordx16 s[16:31], s[8:9], 0
    s_load_dwordx8 s[32:39], s[40:41], 0
""")
w(srd(64,4,E*2)); w(srd(68,10,E*16)); w(srd(72,42,E*8)); w(srd(76,44,E*8))
w(f"""    s_lshl_b32 s3, s2, 8
    v_add_u32 v1, s3, v0
    v_lshlrev_b32 v2, 1, v1
    buffer_load_ushort v3, v2, s[64:67], 0 offen
    v_lshlrev_b32 v2, 4, v1
    buffer_load_dwordx4 v[16:19], v2, s[68:71], 0 offen
    v_lshlrev_b32 v2, 3, v1
    buffer_load_dwordx2 v[20:21], v2, s[76:79], 0 offen
    s_waitcnt vmcnt(0) lgkmcnt(0)
    v_lshlrev_b32 v3, 16, v3
""")
w(rbf_code(3,8,4,12))
for d in range(8): w(f"    v_mov_b32 v{24+d}, 0")
for r in range(8):
    for p in range(2):
        sg=16+r*2+p
        w(f"""    s_lshl_b32 s90, s{sg}, 16
    s_and_b32 s91, s{sg}, 0xffff0000
    v_fma_f32 v{24+2*p}, v{8+r}, s90, v{24+2*p}
    v_fma_f32 v{24+2*p+1}, v{8+r}, s91, v{24+2*p+1}""")
for k in range(4):
    for p in range(2):
        sg=32+k*2+p
        w(f"""    s_lshl_b32 s90, s{sg}, 16
    s_and_b32 s91, s{sg}, 0xffff0000
    v_fma_f32 v{28+2*p}, v{16+k}, s90, v{28+2*p}
    v_fma_f32 v{28+2*p+1}, v{16+k}, s91, v{28+2*p+1}""")
w(f"""    v_lshlrev_b32 v32, 16, v20
    v_and_b32 v33, 0xffff0000, v20
    v_lshlrev_b32 v34, 16, v21
    v_and_b32 v35, 0xffff0000, v21
    v_fma_f32 v32, v24, v28, v32
    v_fma_f32 v33, v25, v29, v33
    v_fma_f32 v34, v26, v30, v34
    v_fma_f32 v35, v27, v31, v35
    v_cvt_pk_bf16_f32 v36, v32, v33
    v_cvt_pk_bf16_f32 v37, v34, v35
    buffer_store_dwordx2 v[36:37], v2, s[72:75], 0 offen
    s_endpgm
""")
w(kd("k2_kernel",40,96))
w(head("probe_kernel"))
w(f"""    s_load_dwordx4 s[4:7], s[0:1], 8
    s_load_dwordx2 s[10:11], s[0:1], 32   ; angle
    s_load_dwordx2 s[12:13], s[0:1], 96   ; debug
    s_cmp_ge_u32 s2, 2048
    s_cbranch_scc1 pr_done
    s_waitcnt lgkmcnt(0)
""")
w(srd(64,4,T*4)); w(srd(68,6,T*4)); w(srd(72,10,T*2)); w(srd(76,12,256))
w(f"""    s_lshl_b32 s3, s2, 8
    v_add_u32 v1, s3, v0
    v_lshlrev_b32 v1, 4, v1
    v_mov_b32 v2, 0
    s_mov_b32 s20, 0
pr_loop:
    buffer_load_dwordx4 v[4:7], v1, s[64:67], s20 offen
    buffer_load_dwordx4 v[8:11], v1, s[68:71], s20 offen
    buffer_load_dwordx4 v[12:15], v1, s[72:75], s20 offen
    s_add_u32 s20, s20, {2048*256*16}
    s_waitcnt vmcnt(0)
    v_xor_b32 v2, v2, v4
    v_xor_b32 v2, v2, v5
    v_xor_b32 v2, v2, v6
    v_xor_b32 v2, v2, v7
    v_xor_b32 v2, v2, v8
    v_xor_b32 v2, v2, v9
    v_xor_b32 v2, v2, v10
    v_xor_b32 v2, v2, v11
    v_xor_b32 v2, v2, v12
    v_xor_b32 v2, v2, v13
    v_xor_b32 v2, v2, v14
    v_xor_b32 v2, v2, v15
    s_cmp_lt_u32 s20, {T*4}
    s_cbranch_scc1 pr_loop
    v_cmp_eq_u32 vcc, 0x12345678, v2
    s_and_saveexec_b64 s[22:23], vcc
    s_cbranch_execz pr_done
    v_mov_b32 v3, 0
    buffer_store_dword v2, v3, s[76:79], 0 offen
pr_done:
    s_endpgm
""")
w(kd("probe_kernel",16,96))
print("\n".join(out))
```

```python
import sys
E = 400000
T = 6400000
NB = 256
EO = 1563
MAGIC = -(-(1 << 32) // EO)
S = 12500
NT = 512
TS = 75008
OFFS_BASE = 40 * 1024 * 1024
assert all(((i * MAGIC) >> 32) == i // EO for i in range(0, E, 1))
assert MAGIC < (1 << 24)

HDR = open('standalone__molecular_angular_gemnet__graph.s.ref').read().split('; Override launch')[0]
out = []


def w(s):
    out.append(s)


def kd(name, vgpr, sgpr):
    return f""".section .rodata,"a"
.p2align 6
.amdhsa_kernel {name}
  .amdhsa_next_free_vgpr {vgpr}
  .amdhsa_next_free_sgpr {sgpr}
  .amdhsa_accum_offset {(vgpr + 3) // 4 * 4}
  .amdhsa_group_segment_fixed_size 0
  .amdhsa_kernarg_size 112
  .amdhsa_user_sgpr_count 2
  .amdhsa_user_sgpr_kernarg_segment_ptr 1
  .amdhsa_system_sgpr_workgroup_id_x 1
  .amdhsa_float_denorm_mode_32 3
.end_amdhsa_kernel
.text
"""


def head(name):
    return f""".globl {name}
.p2align 8
.type {name},@function
{name}:"""


def srd(d, b, nbytes):
    return f"""    s_mov_b32 s{d}, s{b}
    s_and_b32 s{d + 1}, s{b + 1}, 0xffff
    s_mov_b32 s{d + 2}, {nbytes}
    s_mov_b32 s{d + 3}, 0x00020000"""


P1_LDS = 2048 + TS
P2_PLANE = 1568 * 8
P2_G = 4 * P2_PLANE
P2_SEG = P2_G + EO * 48 + 16 - (P2_G + EO * 48) % 16
P2_LDS = P2_SEG + 32 * 17 * 4

LD_NT = " nt" if "ldnt" in sys.argv else ""
ST_NT = " nt" if "stnt" in sys.argv else ""
REC_NT = " nt" if "recnt" in sys.argv else ""

w(HDR.rstrip("\n"))
w(f"; @launch kernel=part_kernel grid=(256,1,1) block=(1024,1,1) lds={P1_LDS}")
w(f"; @launch kernel=acc_kernel grid=(256,1,1) block=(1024,1,1) lds={P2_LDS}")
w('.amdgcn_target "amdgcn-amd-amdhsa--gfx950"\n.text')

w(head("part_kernel"))
RB = [16, 56]
KB = 96
TMP = 4
w(f"""    s_cmp_ge_u32 s2, 256
    s_cbranch_scc1 p1_done
    s_load_dwordx4 s[4:7], s[0:1], 8
    s_load_dwordx2 s[28:29], s[0:1], 32    ; angle
    s_load_dwordx2 s[30:31], s[0:1], 104   ; ws
    v_lshlrev_b32 v1, 4, v0
    v_lshlrev_b32 v2, 3, v0
    v_mov_b32 v3, 3
    v_readfirstlane_b32 s3, v0
    s_lshr_b32 s3, s3, 6
    s_mul_i32 s32, s2, {2 * S * 4}
    s_mul_i32 s33, s2, {2 * S * 2}
    s_mov_b32 s34, {MAGIC}
    s_mov_b32 s35, {-EO & 0xffffffff}
    s_waitcnt lgkmcnt(0)""")
w(srd(8, 4, T * 4))
w(srd(12, 6, T * 4))
w(srd(16, 28, T * 2))
w(srd(20, 30, NT * TS))
w(f"""    s_add_u32 s30, s30, {OFFS_BASE}
    s_addc_u32 s31, s31, 0""")
w(srd(24, 30, NT * 1024))


def p1_loads(j, r):
    b = RB[j] + r * 10
    w(f"""    s_add_u32 s36, s32, {j * S * 4 + r * 16384}
    s_add_u32 s37, s33, {j * S * 2 + r * 8192}
    buffer_load_dwordx4 v[{b + 4}:{b + 7}], v1, s[12:15], s36 offen{LD_NT}
    buffer_load_dwordx4 v[{b}:{b + 3}], v1, s[8:11], s36 offen{LD_NT}
    buffer_load_dwordx2 v[{b + 8}:{b + 9}], v2, s[16:19], s37 offen{LD_NT}""")


NPART = S // 4 - 3072
PMASK = (1 << NPART) - 1
for j in range(2):
    w(f"""    s_cmp_lg_u32 s3, 0
    s_cbranch_scc1 p1_l3skip{j}
    s_mov_b32 exec_lo, {PMASK & 0xffffffff}
    s_mov_b32 exec_hi, {PMASK >> 32}""")
    p1_loads(j, 3)
    w(f"""    s_mov_b64 exec, -1
p1_l3skip{j}:""")
    for r in range(3):
        p1_loads(j, r)
w(f"""    v_lshlrev_b32 v4, 2, v0
    v_mov_b32 v5, 0
    v_cmp_gt_u32 vcc, 512, v0
    s_and_saveexec_b64 s[38:39], vcc
    ds_write_b32 v4, v5
    s_mov_b64 exec, s[38:39]
    v_add_u32 v12, 2048, v1
    v_add_u32 v13, {2048 + 65536}, v1
    v_add_u32 v14, 65536, v1
    v_cmp_gt_u32 vcc, {TS // 16 - 4096}, v0
    s_nop 1
    v_cndmask_b32 v14, 2.0, v14, vcc
    v_cndmask_b32 v13, v12, v13, vcc
    s_waitcnt lgkmcnt(0)
    s_barrier""")


def p1_hist(j, r):
    b = RB[j] + r * 10
    for i in range(4):
        vin = b + i
        vo = b + 4 + i
        t = TMP + i
        w(f"""    v_mul_hi_u32_u24 v{t}, s34, v{vo}
    v_mad_i32_i24 v{vo}, v{t}, s35, v{vo}
    v_lshl_or_b32 v{vin}, v{vin}, 13, v{vo}
    v_lshlrev_b32 v{vo}, 2, v{t}
    ds_add_rtn_u32 v{KB + r * 4 + i}, v{vo}, v3 offset:{j * 1024}""")


def p1_base(j, r):
    b = RB[j] + r * 10
    for i in range(4):
        vo = b + 4 + i
        w(f"    ds_read_b32 v{vo}, v{vo} offset:{j * 1024}")


def p1_scatter(j, r):
    b = RB[j] + r * 10
    for i in range(4):
        vin = b + i
        vo = b + 4 + i
        k = KB + r * 4 + i
        t = TMP + i
        va = b + 8 + i // 2
        wr = "ds_write_b16" if i % 2 == 0 else "ds_write_b16_d16_hi"
        w(f"""    v_add_lshl_u32 v{k}, v{vo}, v{k}, 1
    v_and_b32 v{t}, 2, v{k}
    v_add_u32 v{vo}, v{k}, v{t}
    v_mad_i32_i24 v{k}, v{t}, -2, v{k}
    ds_write_b32 v{vo}, v{vin}
    {wr} v{k}, v{va} offset:4""")


def wave0_partial(tag, fn):
    w(f"""    s_cmp_lg_u32 s3, 0
    s_cbranch_scc1 {tag}
    s_mov_b32 exec_lo, {PMASK & 0xffffffff}
    s_mov_b32 exec_hi, {PMASK >> 32}""")
    fn()
    w(f"""    s_mov_b64 exec, -1
{tag}:""")


for j in range(2):
    for r in range(3):
        if j == 0:
            w(f"    s_waitcnt vmcnt({15 - 3 * r})")
        elif r == 0:
            w("    s_waitcnt vmcnt(5)")
        p1_hist(j, r)
        if r == 0:
            wave0_partial(f"p1_h3skip{j}", lambda: p1_hist(j, 3))
    w("""    s_waitcnt lgkmcnt(0)
    s_barrier""")
    w(f"""    s_cmp_lg_u32 s3, 0
    s_cbranch_scc1 p1_scan_skip{j}
    ds_read_b128 v[4:7], v1 offset:{j * 1024}
    s_waitcnt lgkmcnt(0)
    v_add_u32 v5, v4, v5          ; p2
    v_add_u32 v6, v5, v6          ; p3
    v_add_u32 v7, v6, v7          ; tot
    v_mov_b32 v8, v7
    s_nop 1
    v_add_u32_dpp v8, v8, v8 row_shr:1 row_mask:0xf bank_mask:0xf bound_ctrl:0
    s_nop 1
    v_add_u32_dpp v8, v8, v8 row_shr:2 row_mask:0xf bank_mask:0xf bound_ctrl:0
    s_nop 1
    v_add_u32_dpp v8, v8, v8 row_shr:4 row_mask:0xf bank_mask:0xf bound_ctrl:0
    s_nop 1
    v_add_u32_dpp v8, v8, v8 row_shr:8 row_mask:0xf bank_mask:0xf bound_ctrl:0
    s_nop 1
    v_add_u32_dpp v8, v8, v8 row_bcast:15 row_mask:0xa bank_mask:0xf
    s_nop 1
    v_add_u32_dpp v8, v8, v8 row_bcast:31 row_mask:0xc bank_mask:0xf
    v_sub_u32 v9, v8, v7          ; b0
    v_add_u32 v10, v9, v4         ; b1
    v_add_u32 v11, v9, v5         ; b2
    v_add_u32 v15, v9, v6         ; b3
    v_lshl_or_b32 v4, v10, 16, v9
    v_lshl_or_b32 v5, v11, 16, v10
    v_lshl_or_b32 v6, v15, 16, v11
    v_lshl_or_b32 v7, v8, 16, v15
    s_lshl_b32 s36, s2, 11
    s_add_u32 s36, s36, {j * 1024}
    buffer_store_dwordx4 v[4:7], v1, s[24:27], s36 offen
    v_add_u32 v8, 1024, v9
    v_add_u32 v9, 1024, v10
    v_add_u32 v10, 1024, v11
    v_add_u32 v11, 1024, v15
    ds_write_b128 v1, v[8:11] offset:{j * 1024}
    s_waitcnt lgkmcnt(0)
p1_scan_skip{j}:
    s_barrier""")
    for r in range(3):
        p1_base(j, r)
    wave0_partial(f"p1_b3skip{j}", lambda: (p1_base(j, 3), w("    s_waitcnt lgkmcnt(0)"), p1_scatter(j, 3)))
    w("    s_waitcnt lgkmcnt(0)")
    for r in range(3):
        p1_scatter(j, r)
    w("""    s_waitcnt lgkmcnt(0)
    s_barrier""")
    stg = [96, 100, 104, 108, 4]
    for r in range(4):
        w(f"    ds_read_b128 v[{stg[r]}:{stg[r] + 3}], v12 offset:{r * 16384}")
    w(f"    ds_read_b128 v[{stg[4]}:{stg[4] + 3}], v13")
    w(f"""    s_mul_i32 s36, s2, {2 * TS}
    s_add_u32 s36, s36, {j * TS}""")
    for r in range(4):
        w(f"""    s_waitcnt lgkmcnt({4 - r})
    buffer_store_dwordx4 v[{stg[r]}:{stg[r] + 3}], v1, s[20:23], s36 offen{ST_NT}
    s_add_u32 s36, s36, 16384""")
    w(f"""    s_sub_u32 s36, s36, 65536
    s_waitcnt lgkmcnt(0)
    buffer_store_dwordx4 v[{stg[4]}:{stg[4] + 3}], v14, s[20:23], s36 offen{ST_NT}
    s_nop 1""")
w("""p1_done:
    s_endpgm""")
w(kd("part_kernel", 112, 48))

w(head("acc_kernel"))
S_M = 4
S_REC = 8
S_OUT = 12
S_OFFS = 16
S_DIST = 20
S_CENT = 24
S_WSBF = 28
S_WRBF = 76
S_T0, S_T1 = 92, 93
S_B = 94
S_E0 = 95
S_WAVE = 3
S_WD = 24
S_WDP = 32
S_WU = 40
S_FR = 48
S_MASK = 56
S_REM = 68
S_SAVE = 70
S_TSC = 72
S_INV2PI = 73

V_TID = 0
V_LANE6 = 1
V_HB, V_S3, V_E3, V_TB, V_NEXT, V_K, V_KEND, V_CNT = 2, 3, 4, 5, 6, 7, 8, 9
V_T = 10
V_REC = [20, 24, 28]
V_GAT = [32, 36, 40]
V_GA = 44
V_GB = 56
V_C = 68
V_H = 74
V_X = 82
V_A8 = 98
V_R = 100
V_MR = 108
NV2 = 112

w(f"""    s_cmp_ge_u32 s2, 256
    s_cbranch_scc1 p2_done
    s_load_dwordx2 s[96:97], s[0:1], 0      ; m
    s_load_dwordx2 s[98:99], s[0:1], 104    ; ws
    s_load_dwordx2 s[100:101], s[0:1], 88   ; out
    s_load_dwordx2 s[20:21], s[0:1], 24     ; dist
    s_load_dwordx2 s[24:25], s[0:1], 40     ; centers
    s_load_dwordx4 s[28:31], s[0:1], 56
    v_readfirstlane_b32 s{S_WAVE}, v0
    s_lshr_b32 s{S_WAVE}, s{S_WAVE}, 6
    s_and_b32 s{S_B}, s2, 7
    s_lshl_b32 s{S_B}, s{S_B}, 5
    s_lshr_b32 s{S_T0}, s2, 3
    s_add_u32 s{S_B}, s{S_B}, s{S_T0}        ; bucket
    s_mul_i32 s{S_E0}, s{S_B}, {EO}
    s_waitcnt lgkmcnt(0)""")
w(srd(S_M, 96, E * 8))
w(srd(S_REC, 98, NT * TS))
w(srd(S_OUT, 100, E * 8))
w(f"""    s_add_u32 s98, s98, {OFFS_BASE}
    s_addc_u32 s99, s99, 0""")
w(srd(S_OFFS, 98, NT * 1024))
w(f"""    s_and_b32 s21, s21, 0xffff
    s_mov_b32 s22, {E * 2}
    s_mov_b32 s23, 0x00020000
    s_mov_b64 s[96:97], s[28:29]
    s_mov_b64 s[98:99], s[30:31]
    s_load_dwordx4 s[{S_CENT}:{S_CENT + 3}], s[24:25], 0
    s_load_dwordx16 s[{S_WSBF}:{S_WSBF + 15}], s[98:99], 0
    s_load_dwordx16 s[{S_WSBF + 16}:{S_WSBF + 31}], s[98:99], 64
    s_load_dwordx16 s[{S_WSBF + 32}:{S_WSBF + 47}], s[98:99], 128
    s_load_dwordx16 s[{S_WRBF}:{S_WRBF + 15}], s[96:97], 0
    v_lshlrev_b32 v{V_T}, 10, v0
    v_cmp_gt_u32 vcc, 512, v0
    s_lshl_b32 s{S_T0}, s{S_B}, 2
    s_nop 0
    v_cndmask_b32 v{V_T}, 2.0, v{V_T}, vcc
    buffer_load_dword v{V_T + 1}, v{V_T}, s[{S_OFFS}:{S_OFFS + 3}], s{S_T0} offen
    v_add_u32 v{V_T + 2}, s{S_E0}, v0        ; edge0
    v_lshlrev_b32 v{V_T + 3}, 1, v{V_T + 2}
    v_lshlrev_b32 v{V_T + 4}, 3, v{V_T + 2}
    buffer_load_ushort v{V_T + 5}, v{V_T + 3}, s[{S_DIST}:{S_DIST + 3}], 0 offen
    buffer_load_ushort v{V_T + 6}, v{V_T + 3}, s[{S_DIST}:{S_DIST + 3}], 0 offen offset:2048
    s_movk_i32 s{S_T1}, 8192
    buffer_load_dwordx2 v[{V_MR}:{V_MR + 1}], v{V_T + 4}, s[{S_M}:{S_M + 3}], 0 offen
    buffer_load_dwordx2 v[{V_MR + 2}:{V_MR + 3}], v{V_T + 4}, s[{S_M}:{S_M + 3}], s{S_T1} offen
    v_mov_b32 v{V_X}, 0
    v_mov_b32 v{V_X + 1}, 0
    v_mov_b32 v{V_X + 2}, 0
    v_mov_b32 v{V_X + 3}, 0
    v_lshlrev_b32 v{V_T + 7}, 4, v0
    ds_write_b128 v{V_T + 7}, v[{V_X}:{V_X + 3}]
    ds_write_b128 v{V_T + 7}, v[{V_X}:{V_X + 3}] offset:16384
    ds_write_b128 v{V_T + 7}, v[{V_X}:{V_X + 3}] offset:32768
    v_cmp_gt_u32 vcc, {P2_G // 16 - 3072}, v0
    s_and_saveexec_b64 s[{S_T0}:{S_T1}], vcc
    ds_write_b128 v{V_T + 7}, v[{V_X}:{V_X + 3}] offset:49152
    s_mov_b64 exec, s[{S_T0}:{S_T1}]
    v_lshrrev_b32 v{V_T + 7}, 4, v0
    v_add_u32 v{V_T + 7}, v{V_T + 7}, v0       ; (t>>4)*17 + (t&15) = t + (t>>4)
    v_lshlrev_b32 v{V_T + 7}, 2, v{V_T + 7}
    v_add_u32 v{V_T + 7}, {P2_SEG}, v{V_T + 7}
    v_mul_u32_u24 v{V_T + 8}, 68, v0
    v_add_u32 v{V_T + 8}, {P2_SEG + 64}, v{V_T + 8}
    v_cmp_gt_u32 vcc, 32, v0
    s_and_saveexec_b64 s[{S_T0}:{S_T1}], vcc
    ds_write_b32 v{V_T + 8}, v{V_X}
    s_mov_b64 exec, s[{S_T0}:{S_T1}]
    v_cmp_gt_u32 vcc, 512, v0
    s_and_saveexec_b64 s[{S_T0}:{S_T1}], vcc
    s_waitcnt vmcnt(4)
    ds_write_b32 v{V_T + 7}, v{V_T + 1}
    s_mov_b64 exec, s[{S_T0}:{S_T1}]
    s_waitcnt lgkmcnt(0)
    s_barrier
    v_lshrrev_b32 v{V_T}, 5, v0
    v_mul_u32_u24 v{V_K}, 68, v{V_T}
    v_add_u32 v{V_K}, {P2_SEG}, v{V_K}
    v_add_u32 v{V_KEND}, 64, v{V_K}
    s_mov_b32 s{S_T0}, {16 * TS}
    v_mul_lo_u32 v{V_TB}, v{V_T}, s{S_T0}
    v_and_b32 v{V_LANE6}, 31, v0
    v_mul_u32_u24 v{V_LANE6}, 6, v{V_LANE6}
    ds_read_b32 v{V_T + 1}, v{V_K}
    ds_read_b32 v{V_NEXT}, v{V_K} offset:4
    v_add_u32 v{V_K}, 4, v{V_K}
    v_mov_b32 v{V_CNT}, 0
    s_waitcnt lgkmcnt(0)
    v_and_b32 v{V_S3}, 0xffff, v{V_T + 1}
    v_lshrrev_b32 v{V_E3}, 16, v{V_T + 1}
    v_and_b32 v{V_T + 2}, 1, v{V_S3}
    v_mad_i32_i24 v{V_HB}, v{V_T + 2}, -3, v{V_S3}""")


def issue_rec(u, tsc):
    R = V_REC[u]
    mA = S_MASK + u * 4 if tsc else 96 + 0
    mB = mA + 2
    t = V_T
    w(f"""    v_add_u32 v{t}, v{V_HB}, v{V_LANE6}
    v_lshl_add_u32 v{t + 1}, v{t}, 1, v{V_TB}
    v_cmp_lt_u32 vcc, v{t}, v{V_E3}
    v_cmp_ge_u32 s[{mA}:{mA + 1}], v{t}, v{V_S3}
    v_add_u32 v{t + 2}, 3, v{t}
    v_cndmask_b32 v{t + 1}, 2.0, v{t + 1}, vcc
    v_cmp_lt_u32 s[{mB}:{mB + 1}], v{t + 2}, v{V_E3}
    buffer_load_dwordx3 v[{R}:{R + 2}], v{t + 1}, s[{S_REC}:{S_REC + 3}], 0 offen{REC_NT}
    s_and_b64 s[{mA}:{mA + 1}], s[{mA}:{mA + 1}], vcc
    v_add_u32 v{V_HB}, 192, v{V_HB}
    s_waitcnt lgkmcnt(0)
    v_cmp_ge_u32 vcc, v{V_HB}, v{V_E3}
    s_and_saveexec_b64 s[{S_SAVE}:{S_SAVE + 1}], vcc
    v_and_b32 v{V_S3}, 0xffff, v{V_NEXT}
    v_lshrrev_b32 v{V_E3}, 16, v{V_NEXT}
    v_and_b32 v{t}, 1, v{V_NEXT}
    v_mad_i32_i24 v{V_HB}, v{t}, -3, v{V_S3}
    v_add_u32 v{V_TB}, {TS}, v{V_TB}
    v_add_u32 v{V_K}, 4, v{V_K}
    v_min_u32 v{V_K}, v{V_K}, v{V_KEND}
    v_add_u32 v{V_CNT}, 1, v{V_CNT}
    s_mov_b64 exec, s[{S_SAVE}:{S_SAVE + 1}]
    ds_read_b32 v{V_NEXT}, v{V_K}""")


def issue_gather(u):
    R = V_REC[u]
    Gt = V_GAT[u]
    mA = S_MASK + u * 4
    mB = mA + 2
    t = V_T
    w(f"""    v_lshrrev_b32 v{t}, 10, v{R}
    v_lshrrev_b32 v{t + 1}, 10, v{R + 2}
    v_and_b32 v{t}, -8, v{t}
    v_and_b32 v{t + 1}, -8, v{t + 1}
    v_cndmask_b32 v{t}, 2.0, v{t}, s[{mA}:{mA + 1}]
    v_cndmask_b32 v{t + 1}, 2.0, v{t + 1}, s[{mB}:{mB + 1}]
    buffer_load_dwordx2 v[{Gt}:{Gt + 1}], v{t}, s[{S_M}:{S_M + 3}], 0 offen
    buffer_load_dwordx2 v[{Gt + 2}:{Gt + 3}], v{t + 1}, s[{S_M}:{S_M + 3}], 0 offen""")


def process(u, vm):
    R = V_REC[u]
    Gt = V_GAT[u]
    mA = S_MASK + u * 4
    mB = mA + 2
    t = V_T
    w(f"""    v_and_b32 v{t}, 0x1fff, v{R}
    v_and_b32 v{t + 1}, 0x1fff, v{R + 2}
    v_mul_u32_u24 v{t + 2}, 48, v{t}
    v_mul_u32_u24 v{t + 3}, 48, v{t + 1}
    ds_read_b128 v[{V_GA}:{V_GA + 3}], v{t + 2} offset:{P2_G}
    ds_read_b128 v[{V_GA + 4}:{V_GA + 7}], v{t + 2} offset:{P2_G + 16}
    ds_read_b128 v[{V_GA + 8}:{V_GA + 11}], v{t + 2} offset:{P2_G + 32}
    ds_read_b128 v[{V_GB}:{V_GB + 3}], v{t + 3} offset:{P2_G}
    ds_read_b128 v[{V_GB + 4}:{V_GB + 7}], v{t + 3} offset:{P2_G + 16}
    ds_read_b128 v[{V_GB + 8}:{V_GB + 11}], v{t + 3} offset:{P2_G + 32}
    v_lshlrev_b32 v{V_A8}, 3, v{t}
    v_lshlrev_b32 v{V_A8 + 1}, 3, v{t + 1}
    v_lshlrev_b32 v{t}, 16, v{R + 1}
    v_and_b32 v{t + 1}, 0xffff0000, v{R + 1}""")
    for l in range(3):
        c = V_C + 2 * l
        w(f"""    v_mul_f32 v{c}, s{S_FR + 2 + l}, v{t}
    v_mul_f32 v{c + 1}, s{S_FR + 2 + l}, v{t + 1}
    v_cvt_pk_bf16_f32 v{c + 1}, v{c}, v{c + 1}
    v_lshlrev_b32 v{c}, 16, v{c + 1}
    v_and_b32 v{c + 1}, 0xffff0000, v{c + 1}
    v_mul_f32 v{c}, 0.15915494, v{c}
    v_mul_f32 v{c + 1}, 0.15915494, v{c + 1}
    v_fract_f32 v{c}, v{c}
    v_fract_f32 v{c + 1}, v{c + 1}
    v_cos_f32 v{c}, v{c}
    v_cos_f32 v{c + 1}, v{c + 1}""")
    w(f"    s_waitcnt vmcnt({vm})")
    for X in range(2):
        for d in range(4):
            w(f"    v_dot2_f32_bf16 v{V_H + 4 * X + d}, v{Gt + 2 * X}, s{S_WDP + d}, 0")
    for X in range(2):
        for d in range(4):
            w(f"    v_dot2_f32_bf16 v{V_H + 4 * X + d}, v{Gt + 2 * X + 1}, s{S_WDP + 4 + d}, v{V_H + 4 * X + d}")
    w("    s_waitcnt lgkmcnt(0)")
    for X, G in ((0, V_GA), (1, V_GB)):
        sel = "op_sel:[0,0] op_sel_hi:[1,0]" if X == 0 else "op_sel:[0,1] op_sel_hi:[1,1]"
        sel3 = "op_sel:[0,0,0] op_sel_hi:[1,0,1]" if X == 0 else "op_sel:[0,1,0] op_sel_hi:[1,1,1]"
        for p in range(2):
            g = G + 2 * p
            w(f"    v_pk_mul_f32 v[{g}:{g + 1}], v[{g}:{g + 1}], v[{V_C}:{V_C + 1}] {sel}")
        for l in (1, 2):
            for p in range(2):
                g = G + 2 * p
                gl = G + 4 * l + 2 * p
                w(f"    v_pk_fma_f32 v[{g}:{g + 1}], v[{gl}:{gl + 1}], v[{V_C + 2 * l}:{V_C + 2 * l + 1}], v[{g}:{g + 1}] {sel3}")
        for p in range(2):
            g = G + 2 * p
            h = V_H + 4 * X + 2 * p
            w(f"    v_pk_mul_f32 v[{g}:{g + 1}], v[{g}:{g + 1}], v[{h}:{h + 1}]")
        for d in range(4):
            x = V_X + 8 * X + 2 * d
            w(f"    v_cvt_f64_f32 v[{x}:{x + 1}], v{G + d}")
    for X, m in ((0, mA), (1, mB)):
        w(f"    s_mov_b64 exec, s[{m}:{m + 1}]")
        for d in range(4):
            x = V_X + 8 * X + 2 * d
            w(f"    ds_add_f64 v{V_A8 + X}, v[{x}:{x + 1}] offset:{d * P2_PLANE}")
    w("    s_mov_b64 exec, -1")


w(f"""    s_waitcnt vmcnt(0) lgkmcnt(0)
    v_lshlrev_b32 v{V_T + 5}, 16, v{V_T + 5}
    v_lshlrev_b32 v{V_T + 6}, 16, v{V_T + 6}""")
PK = [V_X, V_X + 4]
for p in range(4):
    w(f"""    s_lshl_b32 s{S_T0}, s{S_CENT + p}, 16
    s_and_b32 s{S_T1}, s{S_CENT + p}, 0xffff0000""")
    for e in range(2):
        a, b, t = V_C + 2 * e, V_C + 2 * e + 1, PK[e] + p
        d = V_T + 5 + e
        w(f"""    v_subrev_f32 v{a}, s{S_T0}, v{d}
    v_subrev_f32 v{b}, s{S_T1}, v{d}
    v_cvt_pk_bf16_f32 v{t}, v{a}, v{b}
    v_lshlrev_b32 v{a}, 16, v{t}
    v_and_b32 v{b}, 0xffff0000, v{t}
    v_mul_f32 v{a}, v{a}, v{a}
    v_mul_f32 v{b}, v{b}, v{b}
    v_cvt_pk_bf16_f32 v{t}, v{a}, v{b}
    v_lshlrev_b32 v{a}, 16, v{t}
    v_and_b32 v{b}, 0xffff0000, v{t}
    v_mul_f32 v{a}, 0xc1200000, v{a}
    v_mul_f32 v{b}, 0xc1200000, v{b}
    v_cvt_pk_bf16_f32 v{t}, v{a}, v{b}
    v_lshlrev_b32 v{a}, 16, v{t}
    v_and_b32 v{b}, 0xffff0000, v{t}
    v_mul_f32 v{a}, 0x3fb8aa3b, v{a}
    v_mul_f32 v{b}, 0x3fb8aa3b, v{b}
    v_exp_f32 v{a}, v{a}
    v_exp_f32 v{b}, v{b}
    s_nop 0
    v_cvt_pk_bf16_f32 v{t}, v{a}, v{b}""")
GE = [V_GA, V_GB]
for p in range(4):
    for l in range(3):
        r0 = (2 * p) * 3 + l
        r1 = (2 * p + 1) * 3 + l
        for dp in range(2):
            sa, sb = S_WSBF + r0 * 2 + dp, S_WSBF + r1 * 2 + dp
            w(f"""    s_pack_ll_b32_b16 s{S_T0}, s{sa}, s{sb}
    s_pack_hh_b32_b16 s{S_T1}, s{sa}, s{sb}""")
            for e in range(2):
                for q, st in ((0, S_T0), (1, S_T1)):
                    g = GE[e] + l * 4 + dp * 2 + q
                    c = "0" if p == 0 else f"v{g}"
                    w(f"    v_dot2_f32_bf16 v{g}, v{PK[e] + p}, s{st}, {c}")
for p in range(4):
    for dp in range(2):
        sa, sb = S_WRBF + (2 * p) * 2 + dp, S_WRBF + (2 * p + 1) * 2 + dp
        w(f"""    s_pack_ll_b32_b16 s{S_T0}, s{sa}, s{sb}
    s_pack_hh_b32_b16 s{S_T1}, s{sa}, s{sb}""")
        for e in range(2):
            for q, st in ((0, S_T0), (1, S_T1)):
                g = V_R + e * 4 + dp * 2 + q
                c = "0" if p == 0 else f"v{g}"
                w(f"    v_dot2_f32_bf16 v{g}, v{PK[e] + p}, s{st}, {c}")
w(f"""    s_load_dwordx4 s[96:99], s[0:1], 72
    s_load_dwordx2 s[100:101], s[0:1], 48   ; ang_freq
    v_mul_u32_u24 v{V_T}, 48, v0
    v_add_u32 v{V_T + 1}, {1024 * 48}, v{V_T}
    ds_write_b128 v{V_T}, v[{V_GA}:{V_GA + 3}] offset:{P2_G}
    ds_write_b128 v{V_T}, v[{V_GA + 4}:{V_GA + 7}] offset:{P2_G + 16}
    ds_write_b128 v{V_T}, v[{V_GA + 8}:{V_GA + 11}] offset:{P2_G + 32}
    v_cmp_gt_u32 vcc, {EO - 1024}, v0
    s_and_saveexec_b64 s[{S_T0}:{S_T1}], vcc
    ds_write_b128 v{V_T + 1}, v[{V_GB}:{V_GB + 3}] offset:{P2_G}
    ds_write_b128 v{V_T + 1}, v[{V_GB + 4}:{V_GB + 7}] offset:{P2_G + 16}
    ds_write_b128 v{V_T + 1}, v[{V_GB + 8}:{V_GB + 11}] offset:{P2_G + 32}
    s_mov_b64 exec, s[{S_T0}:{S_T1}]
    s_waitcnt lgkmcnt(0)
    s_load_dwordx8 s[{S_WD}:{S_WD + 7}], s[96:97], 0
    s_load_dwordx8 s[{S_WU}:{S_WU + 7}], s[98:99], 0
    s_load_dword s{S_FR}, s[100:101], 0
    s_load_dword s{S_FR + 1}, s[100:101], 4
    s_waitcnt lgkmcnt(0)
    s_pack_ll_b32_b16 s{S_WDP + 0}, s{S_WD + 0}, s{S_WD + 2}
    s_pack_hh_b32_b16 s{S_WDP + 1}, s{S_WD + 0}, s{S_WD + 2}
    s_pack_ll_b32_b16 s{S_WDP + 2}, s{S_WD + 1}, s{S_WD + 3}
    s_pack_hh_b32_b16 s{S_WDP + 3}, s{S_WD + 1}, s{S_WD + 3}
    s_pack_ll_b32_b16 s{S_WDP + 4}, s{S_WD + 4}, s{S_WD + 6}
    s_pack_hh_b32_b16 s{S_WDP + 5}, s{S_WD + 4}, s{S_WD + 6}
    s_pack_ll_b32_b16 s{S_WDP + 6}, s{S_WD + 5}, s{S_WD + 7}
    s_pack_hh_b32_b16 s{S_WDP + 7}, s{S_WD + 5}, s{S_WD + 7}
    s_lshl_b32 s{S_FR + 2}, s{S_FR}, 16
    s_and_b32 s{S_FR + 3}, s{S_FR}, 0xffff0000
    s_lshl_b32 s{S_FR + 4}, s{S_FR + 1}, 16
    s_mov_b32 s{S_REM}, -1
    s_barrier""")
issue_rec(0, True)
issue_rec(1, True)
w("    s_waitcnt vmcnt(1)")
issue_gather(0)
w("p2_loop:")
for u in range(3):
    w(f"""    v_cmp_gt_u32 vcc, 16, v{V_CNT}
    s_cmp_lg_u32 s{S_REM}, -1
    s_cbranch_scc1 p2_cd{u}
    s_cbranch_vccnz p2_go{u}
    s_mov_b32 s{S_REM}, 2
p2_cd{u}:
    s_cmp_eq_u32 s{S_REM}, 0
    s_cbranch_scc1 p2_end
    s_sub_u32 s{S_REM}, s{S_REM}, 1
p2_go{u}:""")
    issue_rec((u + 2) % 3, True)
    w("    s_waitcnt vmcnt(3)")
    issue_gather((u + 1) % 3)
    process(u, 3)
w("""    s_branch p2_loop
p2_end:
    s_waitcnt vmcnt(0) lgkmcnt(0)
    s_barrier""")
t = V_T
w(f"""    v_lshlrev_b32 v{t}, 3, v0""")
for e in range(2):
    for d in range(4):
        x = V_X + 8 * e + 2 * d
        w(f"    ds_read_b64 v[{x}:{x + 1}], v{t} offset:{d * P2_PLANE + e * 8192}")
w("    s_waitcnt lgkmcnt(0)")
for e in range(2):
    for d in range(4):
        x = V_X + 8 * e + 2 * d
        w(f"    v_cvt_f32_f64 v{V_GA + 4 * e + d}, v[{x}:{x + 1}]")
for k in range(4):
    for dp in range(2):
        sg = S_WU + k * 2 + dp
        w(f"""    s_lshl_b32 s{S_T0}, s{sg}, 16
    s_and_b32 s{S_T1}, s{sg}, 0xffff0000""")
        for e in range(2):
            for q, st in ((0, S_T0), (1, S_T1)):
                u_ = V_GB + 4 * e + dp * 2 + q
                if k == 0:
                    w(f"    v_mul_f32 v{u_}, s{st}, v{V_GA + 4 * e + k}")
                else:
                    w(f"    v_fmac_f32 v{u_}, s{st}, v{V_GA + 4 * e + k}")
for e in range(2):
    for dp in range(2):
        u0 = V_GB + 4 * e + 2 * dp
        r0 = V_R + 4 * e + 2 * dp
        mr = V_MR + 2 * e + dp
        a, b = V_C, V_C + 1
        w(f"""    v_cvt_pk_bf16_f32 v{u0 + 1}, v{u0}, v{u0 + 1}
    v_cvt_pk_bf16_f32 v{r0 + 1}, v{r0}, v{r0 + 1}
    v_lshlrev_b32 v{u0}, 16, v{u0 + 1}
    v_and_b32 v{u0 + 1}, 0xffff0000, v{u0 + 1}
    v_lshlrev_b32 v{r0}, 16, v{r0 + 1}
    v_and_b32 v{r0 + 1}, 0xffff0000, v{r0 + 1}
    v_mul_f32 v{u0}, v{u0}, v{r0}
    v_mul_f32 v{u0 + 1}, v{u0 + 1}, v{r0 + 1}
    v_cvt_pk_bf16_f32 v{u0 + 1}, v{u0}, v{u0 + 1}
    v_lshlrev_b32 v{u0}, 16, v{u0 + 1}
    v_and_b32 v{u0 + 1}, 0xffff0000, v{u0 + 1}
    v_lshlrev_b32 v{a}, 16, v{mr}
    v_and_b32 v{b}, 0xffff0000, v{mr}
    v_add_f32 v{u0}, v{u0}, v{a}
    v_add_f32 v{u0 + 1}, v{u0 + 1}, v{b}
    v_cvt_pk_bf16_f32 v{mr}, v{u0}, v{u0 + 1}""")
w(f"""    v_add_u32 v{t + 1}, s{S_E0}, v0
    v_lshlrev_b32 v{t + 1}, 3, v{t + 1}
    v_add_u32 v{t + 2}, 8192, v{t + 1}
    v_cmp_gt_u32 vcc, {EO - 1024}, v0
    s_nop 1
    v_cndmask_b32 v{t + 2}, 2.0, v{t + 2}, vcc
    buffer_store_dwordx2 v[{V_MR}:{V_MR + 1}], v{t + 1}, s[{S_OUT}:{S_OUT + 3}], 0 offen
    buffer_store_dwordx2 v[{V_MR + 2}:{V_MR + 3}], v{t + 2}, s[{S_OUT}:{S_OUT + 3}], 0 offen
p2_done:
    s_endpgm""")
w(kd("acc_kernel", NV2, 102))
print("\n".join(out))
```

```python
import sys,re
s=open(sys.argv[1]).read(); mode=sys.argv[2]
launch=[l for l in s.split('\n') if l.startswith('; @launch kernel=')]
names=[re.search(r'kernel=(\w+)',l).group(1) for l in launch]
STAMP=200*1024*1024
for i,n in enumerate(names):
    code=f"""{n}:
    s_cmp_lg_u32 s2, 0
    s_cbranch_scc1 dg_skip_{n}
    s_load_dwordx2 s[4:5], s[0:1], 104
    s_memrealtime s[6:7]
    s_waitcnt lgkmcnt(0)
    s_add_u32 s4, s4, {STAMP+i*64}
    s_addc_u32 s5, s5, 0
    v_mov_b32 v1, s6
    v_mov_b32 v2, 0
    v_cmp_eq_u32 vcc, 0, v0
    s_and_saveexec_b64 s[8:9], vcc
    s_cbranch_execz dg_rest_{n}
    global_store_dword v2, v1, s[4:5]
dg_rest_{n}:
    s_mov_b64 exec, s[8:9]
dg_skip_{n}:
"""
    s=s.replace(f"\n{n}:\n", "\n"+code, 1)
a,b={'0':(None,None)}.get(mode,(None,None))
spin=f""".globl spin_kernel
.p2align 8
.type spin_kernel,@function
spin_kernel:
    s_cmp_lg_u32 s2, 0
    s_cbranch_scc1 sp_done
    s_load_dwordx2 s[4:5], s[0:1], 104
    s_memrealtime s[6:7]
    s_waitcnt lgkmcnt(0)
    s_add_u32 s4, s4, {STAMP}
    s_addc_u32 s5, s5, 0
    v_mov_b32 v2, 0
"""
if mode!='0':
    i,j=mode.split('-')
    spin+=f"""    global_load_dword v3, v2, s[4:5] offset:{int(i)*64} sc0 sc1
"""
    if j!='n': spin+=f"""    global_load_dword v4, v2, s[4:5] offset:{int(j)*64} sc0 sc1
"""
    spin+="""    s_waitcnt vmcnt(0)
    v_readfirstlane_b32 s10, v3
"""
    if j!='n': spin+="    v_readfirstlane_b32 s11, v4\n"
    else: spin+="    s_mov_b32 s11, s6\n"
    spin+="""    s_nop 3
    s_sub_u32 s12, s11, s10
    s_min_u32 s12, s12, 100000
sp_loop:
    s_memrealtime s[8:9]
    s_waitcnt lgkmcnt(0)
    s_sub_u32 s13, s8, s6
    s_cmp_lt_u32 s13, s12
    s_cbranch_scc1 sp_loop
"""
spin+="""sp_done:
    s_endpgm
.section .rodata,"a"
.p2align 6
.amdhsa_kernel spin_kernel
  .amdhsa_next_free_vgpr 8
  .amdhsa_next_free_sgpr 16
  .amdhsa_accum_offset 8
  .amdhsa_group_segment_fixed_size 0
  .amdhsa_kernarg_size 112
  .amdhsa_user_sgpr_count 2
  .amdhsa_user_sgpr_kernarg_segment_ptr 1
  .amdhsa_system_sgpr_workgroup_id_x 1
.end_amdhsa_kernel
.text
"""
s=s.replace(launch[-1], launch[-1]+"\n; @launch kernel=spin_kernel grid=(1,1,1) block=(64,1,1) lds=0")
print(s+"\n"+spin)
```

```python
import sys
E = 400000
T = 6400000
NB = 256
EO = 1563
MAGIC = -(-(1 << 32) // EO)
S = 12500
NT = 512
TS = 75008
OFFS_BASE = 40 * 1024 * 1024
assert all(((i * MAGIC) >> 32) == i // EO for i in range(0, E, 1))
assert MAGIC < (1 << 24)

HDR = open('standalone__molecular_angular_gemnet__graph.s.ref').read().split('; Override launch')[0]
out = []


def w(s):
    out.append(s)


def kd(name, vgpr, sgpr):
    return f""".section .rodata,"a"
.p2align 6
.amdhsa_kernel {name}
  .amdhsa_next_free_vgpr {vgpr}
  .amdhsa_next_free_sgpr {sgpr}
  .amdhsa_accum_offset {(vgpr + 3) // 4 * 4}
  .amdhsa_group_segment_fixed_size 0
  .amdhsa_kernarg_size 112
  .amdhsa_user_sgpr_count 2
  .amdhsa_user_sgpr_kernarg_segment_ptr 1
  .amdhsa_system_sgpr_workgroup_id_x 1
  .amdhsa_float_denorm_mode_32 3
.end_amdhsa_kernel
.text
"""


def head(name):
    return f""".globl {name}
.p2align 8
.type {name},@function
{name}:"""


def srd(d, b, nbytes):
    return f"""    s_mov_b32 s{d}, s{b}
    s_and_b32 s{d + 1}, s{b + 1}, 0xffff
    s_mov_b32 s{d + 2}, {nbytes}
    s_mov_b32 s{d + 3}, 0x00020000"""


DIAG = "diag" in sys.argv
STAMP_BASE = 200 * 1024 * 1024
_st = {"n": 0, "v": 0}


def stamp():
    if not DIAG:
        return
    k = _st["n"]
    _st["n"] += 1
    w(f"""    s_memrealtime vcc
    s_waitcnt lgkmcnt(0)
    v_writelane_b32 v{_st['v']}, vcc_lo, {k}""")


def dstamp(sidx, mul, add, tmp):
    if not DIAG:
        return
    w(f"""    s_memrealtime vcc
    s_mul_i32 s{tmp}, s{sidx}, {mul}
    s_add_u32 s{tmp}, s{tmp}, {add}
    s_min_u32 s{tmp}, s{tmp}, 63
    s_waitcnt lgkmcnt(0)
    s_mov_b32 m0, s{tmp}
    s_nop 0
    v_writelane_b32 v{_st['v']}, vcc_lo, m0""")


def stamp_flush(kid, swave, b):
    if not DIAG:
        return
    v = _st['v']
    w(f"""    s_load_dwordx2 s[{b}:{b + 1}], s[0:1], 104
    s_waitcnt lgkmcnt(0)
    s_add_u32 s{b}, s{b}, {STAMP_BASE + kid * 4 * 1024 * 1024}
    s_addc_u32 s{b + 1}, s{b + 1}, 0
    s_lshl_b32 s{b + 2}, s2, 4
    s_add_u32 s{b + 2}, s{b + 2}, s{swave}
    s_lshl_b32 s{b + 2}, s{b + 2}, 8
    v_and_b32 v{v + 1}, 63, v0
    v_lshlrev_b32 v{v + 1}, 2, v{v + 1}
    v_add_u32 v{v + 1}, s{b + 2}, v{v + 1}
    global_store_dword v{v + 1}, v{v}, s[{b}:{b + 1}]""")
    sys.stderr.write(f"kernel {kid}: {_st['n']} stamps\n")


P1_LDS = 1024 + TS
NPW = 12
NL = 2 * NPW
LLEN = 24
NSEG = -(-NT // NL)
HEAD = [0, 6400]
P2_SEG = 12800
P2_WORD = P2_SEG + NL * LLEN * 4
P2_DUMMY = P2_WORD + 16
BUFSZ = NPW * 3 * 2048
BUF = [15360, 15360 + BUFSZ]
P2_LDS = BUF[1] + BUFSZ
NIL = P2_DUMMY // 16
assert P2_LDS <= 163840
assert all((t * 2731) >> 16 == t // 24 for t in range(576))

LD_NT = " nt" if "ldnt" in sys.argv else ""
ST_FL = " sc1" if "stsc1" in sys.argv else (" sc0 sc1" if "stsc01" in sys.argv else "")
PREFETCH_M = "nopf" not in sys.argv

w(HDR.rstrip("\n"))
w(f"; @launch kernel=part_kernel grid=(512,1,1) block=(512,1,1) lds={P1_LDS}")
w(f"; @launch kernel=acc_kernel grid=(256,1,1) block=(1024,1,1) lds={P2_LDS}")
w('.amdgcn_target "amdgcn-amd-amdhsa--gfx950"\n.text')

w(head("part_kernel"))
NR1 = 7
RB = 16
KB = 88
TMP = 4
_st.update(n=0, v=116)
w(f"""    s_cmp_ge_u32 s2, {NT}
    s_cbranch_scc1 p1_done
    s_load_dwordx4 s[4:7], s[0:1], 8
    s_load_dwordx2 s[28:29], s[0:1], 32    ; angle
    s_load_dwordx2 s[30:31], s[0:1], 104   ; ws
    v_lshlrev_b32 v1, 4, v0
    v_lshlrev_b32 v2, 3, v0
    v_mov_b32 v3, 3
    v_readfirstlane_b32 s3, v0
    s_lshr_b32 s3, s3, 6
    s_mul_i32 s32, s2, {S * 4}
    s_mul_i32 s33, s2, {S * 2}
    s_mov_b32 s34, {MAGIC}
    s_mov_b32 s35, {-EO & 0xffffffff}
    v_lshlrev_b32 v4, 2, v0
    v_mov_b32 v5, 0
    v_cmp_gt_u32 vcc, 256, v0
    s_mov_b64 exec, vcc
    ds_write_b32 v4, v5
    s_mov_b64 exec, -1
    v_add_u32 v12, 1024, v1
    v_add_u32 v13, {1024 + 65536}, v1
    v_cmp_gt_u32 vcc, {TS // 16 - 9 * 512}, v0
    s_nop 1
    v_cndmask_b32 v14, 2.0, v1, vcc
    s_waitcnt lgkmcnt(0)
    s_barrier""")
stamp()
w(srd(8, 4, T * 4))
w(srd(12, 6, T * 4))
w(srd(16, 28, T * 2))
w(srd(20, 30, NT * TS))
w(f"""    s_add_u32 s30, s30, {OFFS_BASE}
    s_addc_u32 s31, s31, 0""")
w(srd(24, 30, NT * 1024))


def p1_loads(r):
    b = RB + r * 10
    w(f"""    s_add_u32 s36, s32, {r * 8192}
    s_add_u32 s37, s33, {r * 4096}
    buffer_load_dwordx4 v[{b + 4}:{b + 7}], v1, s[12:15], s36 offen{LD_NT}
    buffer_load_dwordx4 v[{b}:{b + 3}], v1, s[8:11], s36 offen{LD_NT}
    buffer_load_dwordx2 v[{b + 8}:{b + 9}], v2, s[16:19], s37 offen{LD_NT}""")


NPART = S // 4 - 6 * 512
PMASK = (1 << NPART) - 1


def wave0_partial(tag, fn):
    w(f"""    s_cmp_lg_u32 s3, 0
    s_cbranch_scc1 {tag}
    s_mov_b32 exec_lo, {PMASK & 0xffffffff}
    s_mov_b32 exec_hi, {PMASK >> 32}""")
    fn()
    w(f"""    s_mov_b64 exec, -1
{tag}:""")


def p1_hist(r):
    b = RB + r * 10
    for i in range(4):
        vin = b + i
        vo = b + 4 + i
        t = TMP + i
        w(f"""    v_mul_hi_u32_u24 v{t}, s34, v{vo}
    v_mad_i32_i24 v{vo}, v{t}, s35, v{vo}
    v_lshl_or_b32 v{vin}, v{vin}, 13, v{vo}
    v_lshlrev_b32 v{vo}, 2, v{t}
    ds_add_rtn_u32 v{KB + r * 4 + i}, v{vo}, v3""")


def p1_base(r):
    b = RB + r * 10
    for i in range(4):
        vo = b + 4 + i
        w(f"    ds_read_b32 v{vo}, v{vo}")


def p1_scatter(r):
    b = RB + r * 10
    for i in range(4):
        vin = b + i
        vo = b + 4 + i
        k = KB + r * 4 + i
        t = TMP + i
        va = b + 8 + i // 2
        wr = "ds_write_b16" if i % 2 == 0 else "ds_write_b16_d16_hi"
        w(f"""    v_add_lshl_u32 v{k}, v{vo}, v{k}, 1
    v_and_b32 v{t}, 2, v{k}
    v_add_u32 v{vo}, v{k}, v{t}
    v_mad_i32_i24 v{k}, v{t}, -2, v{k}
    ds_write_b32 v{vo}, v{vin}
    {wr} v{k}, v{va} offset:4""")


if "noprio" not in sys.argv:
    w("""    s_cmp_ge_u32 s2, 256
    s_cbranch_scc1 p1_lowprio
    s_setprio 3
p1_lowprio:""")
wave0_partial("p1_l3skip", lambda: p1_loads(6))
for r in range(6):
    p1_loads(r)
if "noprio" not in sys.argv:
    w("    s_setprio 2")
stamp()
for r in range(6):
    w(f"    s_waitcnt vmcnt({15 - 3 * r})")
    p1_hist(r)
    if r == 0:
        wave0_partial("p1_h3skip", lambda: p1_hist(6))
w("    s_waitcnt lgkmcnt(0)")
stamp()
w("    s_barrier")
w(f"""    s_cmp_lg_u32 s3, 0
    s_cbranch_scc1 p1_scan_skip
    ds_read_b128 v[4:7], v1
    s_waitcnt lgkmcnt(0)
    v_add_u32 v5, v4, v5          ; p2
    v_add_u32 v6, v5, v6          ; p3
    v_add_u32 v7, v6, v7          ; tot
    v_mov_b32 v8, v7
    s_nop 1
    v_add_u32_dpp v8, v8, v8 row_shr:1 row_mask:0xf bank_mask:0xf bound_ctrl:0
    s_nop 1
    v_add_u32_dpp v8, v8, v8 row_shr:2 row_mask:0xf bank_mask:0xf bound_ctrl:0
    s_nop 1
    v_add_u32_dpp v8, v8, v8 row_shr:4 row_mask:0xf bank_mask:0xf bound_ctrl:0
    s_nop 1
    v_add_u32_dpp v8, v8, v8 row_shr:8 row_mask:0xf bank_mask:0xf bound_ctrl:0
    s_nop 1
    v_add_u32_dpp v8, v8, v8 row_bcast:15 row_mask:0xa bank_mask:0xf
    s_nop 1
    v_add_u32_dpp v8, v8, v8 row_bcast:31 row_mask:0xc bank_mask:0xf
    v_sub_u32 v9, v8, v7          ; b0
    v_add_u32 v10, v9, v4         ; b1
    v_add_u32 v11, v9, v5         ; b2
    v_add_u32 v15, v9, v6         ; b3
    v_lshl_or_b32 v4, v10, 16, v9
    v_lshl_or_b32 v5, v11, 16, v10
    v_lshl_or_b32 v6, v15, 16, v11
    v_lshl_or_b32 v7, v8, 16, v15
    v_add_u32 v8, 512, v9
    v_add_u32 v9, 512, v10
    v_add_u32 v10, 512, v11
    v_add_u32 v11, 512, v15
    ds_write_b128 v1, v[8:11]
    s_lshl_b32 s36, s2, 10
    s_waitcnt lgkmcnt(0)
    s_barrier
    buffer_store_dwordx4 v[4:7], v1, s[24:27], s36 offen
    s_nop 1
    s_branch p1_scan_done
p1_scan_skip:
    s_barrier
p1_scan_done:""")
stamp()
wave0_partial("p1_b3skip", lambda: (p1_base(6), w("    s_waitcnt lgkmcnt(0)"), p1_scatter(6)))
p1_base(0)
p1_base(1)
for r in range(6):
    if r + 2 < 6:
        p1_base(r + 2)
    w("    s_waitcnt lgkmcnt(%d)" % min(15, (4 if r + 1 < 6 else 0) + (4 if r + 2 < 6 else 0) + (8 if r >= 1 else 0)) if r == 0 else "    s_waitcnt lgkmcnt(%d)" % ((4 if r + 2 < 6 else 0) + 8))
    p1_scatter(r)
w("    s_waitcnt lgkmcnt(0)")
stamp()
w("    s_barrier")
stamp()
stg = [16 + 4 * r for r in range(10)]
for r in range(10):
    a, off = (12, r * 8192) if r < 8 else (13, (r - 8) * 8192)
    w(f"    ds_read_b128 v[{stg[r]}:{stg[r] + 3}], v{a} offset:{off}")
w(f"    s_mul_i32 s36, s2, {TS}")
for r in range(10):
    w(f"""    s_waitcnt lgkmcnt({9 - r})
    buffer_store_dwordx4 v[{stg[r]}:{stg[r] + 3}], v{1 if r < 9 else 14}, s[20:23], s36 offen{ST_FL}
    s_add_u32 s36, s36, 8192""")
stamp()
if DIAG:
    w("    s_waitcnt vmcnt(0)")
stamp()
if DIAG:
    w("""    s_cmp_ge_u32 s2, 256
    s_cselect_b32 s38, 8, 0
    s_add_u32 s3, s3, s38
    s_and_b32 s2, s2, 255""")
stamp_flush(0, 3, 40)
w("""p1_done:
    s_endpgm""")
w(kd("part_kernel", 120 if DIAG else 116, 48))

w(head("acc_kernel"))
S_WAVE = 3
S_M = 4
S_REC = 8
S_OUT = 12
S_MASK = 16
S_OFFS = 16
S_DIST = 20
S_CENT = 24
S_FR = 28
S_CH = 32
S_E0 = 33
S_T0, S_T1 = 34, 35
SW_SBF = 36
SW_RBF = 84
S_P2 = 100
SW_D = 16
SW_U = 24

V_HA = [1, 2]
V_PK = [4, 8]
V_MR = 12
V_T = 16
V_LANE6 = 40
V_HB, V_S3, V_E3, V_TB, V_NEXT, V_K, V_KEND, V_CNT = 41, 42, 43, 44, 45, 46, 47, 48
V_SL = [49, 50]
V_SI = 51
V_HIM = 52
V_WD = 53
V_JUNK = 54
V_REC = [56, 60, 64]
V_BLK = [68, 76, 84]
GE = [92, 104]
RE = [116, 120]
V_S = [40 + 12 * q for q in range(7)]
V_CH = 3
NV2 = 124
_st.update(n=0, v=124)

w(f"""    s_cmp_ge_u32 s2, 256
    s_cbranch_scc1 p2_done
    s_setprio 3
    s_load_dwordx16 s[36:51], s[0:1], 0      ; m,in,out,dist,angle,centers,freq,w_rbf
    s_load_dwordx8 s[52:59], s[0:1], 64      ; w_sbf,w_down,w_up,out
    s_load_dwordx2 s[60:61], s[0:1], 104     ; ws
    v_readfirstlane_b32 s{S_WAVE}, v0
    s_lshr_b32 s{S_WAVE}, s{S_WAVE}, 6
    s_and_b32 s{S_T1}, s2, 7
    s_lshl_b32 s{S_T1}, s{S_T1}, 5
    s_lshr_b32 s{S_T0}, s2, 3
    s_add_u32 s{S_T1}, s{S_T1}, s{S_T0}        ; bucket
    s_mul_i32 s{S_E0}, s{S_T1}, {EO}
    s_lshl_b32 s{S_T1}, s{S_T1}, 2
    v_lshlrev_b32 v{V_T}, 10, v0
    s_waitcnt lgkmcnt(0)""")
stamp()
w(srd(S_REC, 60, NT * TS))
w(f"""    s_add_u32 s60, s60, {OFFS_BASE}
    s_addc_u32 s61, s61, 0""")
w(srd(S_OFFS, 60, NT * 1024))
w(f"""    buffer_load_dword v{V_T + 21}, v{V_T}, s[{S_OFFS}:{S_OFFS + 3}], s{S_T1} offen""")
w(srd(S_M, 36, E * 8))
if PREFETCH_M:
    w(f"""    s_cmp_lt_u32 s{S_WAVE}, {NPW}
    s_cbranch_scc1 p2_nopf
    s_lshr_b32 s{S_T0}, s2, 3
    s_mul_i32 s{S_T0}, s{S_T0}, 100000
    v_subrev_u32 v{V_T + 20}, {NPW * 64}, v0
    v_lshlrev_b32 v{V_T + 20}, 7, v{V_T + 20}
    buffer_load_dword v{V_T + 16}, v{V_T + 20}, s[{S_M}:{S_M + 3}], s{S_T0} offen
    s_add_u32 s{S_T0}, s{S_T0}, 32768
    buffer_load_dword v{V_T + 17}, v{V_T + 20}, s[{S_M}:{S_M + 3}], s{S_T0} offen
    s_add_u32 s{S_T0}, s{S_T0}, 32768
    buffer_load_dword v{V_T + 18}, v{V_T + 20}, s[{S_M}:{S_M + 3}], s{S_T0} offen
    s_add_u32 s{S_T0}, s{S_T0}, 32768
    v_cmp_gt_u32 vcc, 1920, v{V_T + 20}
    s_nop 1
    v_cndmask_b32 v{V_T + 20}, 2.0, v{V_T + 20}, vcc
    buffer_load_dword v{V_T + 19}, v{V_T + 20}, s[{S_M}:{S_M + 3}], s{S_T0} offen
p2_nopf:""")
w(srd(S_OUT, 58, E * 8))
w(srd(S_DIST, 42, E * 2))
w(f"""    s_mov_b64 s[{S_P2}:{S_P2 + 1}], s[52:53]
    s_load_dwordx4 s[{S_CENT}:{S_CENT + 3}], s[46:47], 0
    s_load_dwordx2 s[{S_FR}:{S_FR + 1}], s[48:49], 0
    s_load_dwordx16 s[{SW_RBF}:{SW_RBF + 15}], s[50:51], 0
    s_load_dwordx16 s[{SW_SBF}:{SW_SBF + 15}], s[{S_P2}:{S_P2 + 1}], 0
    s_load_dwordx16 s[{SW_SBF + 16}:{SW_SBF + 31}], s[{S_P2}:{S_P2 + 1}], 64
    s_load_dwordx16 s[{SW_SBF + 32}:{SW_SBF + 47}], s[{S_P2}:{S_P2 + 1}], 128
    v_and_b32 v{V_T + 2}, 63, v0
    s_mul_i32 s{S_T0}, s{S_WAVE}, 98
    v_add_u32 v{V_HA[0]}, s{S_T0}, v{V_T + 2}
    v_add_u32 v{V_HA[1]}, 64, v{V_HA[0]}
    v_mov_b32 v{V_T + 4}, 1599
    v_cmp_gt_u32 vcc, 34, v{V_T + 2}
    v_add_u32 v{V_T + 3}, s{S_E0}, v{V_HA[0]}
    v_lshlrev_b32 v{V_T + 5}, 1, v{V_T + 3}
    v_cndmask_b32 v{V_HA[1]}, v{V_T + 4}, v{V_HA[1]}, vcc
    v_lshlrev_b32 v{V_T + 6}, 3, v{V_T + 3}
    buffer_load_ushort v{V_T + 8}, v{V_T + 5}, s[{S_DIST}:{S_DIST + 3}], 0 offen
    buffer_load_ushort v{V_T + 9}, v{V_T + 5}, s[{S_DIST}:{S_DIST + 3}], 0 offen offset:128
    buffer_load_dwordx2 v[{V_MR}:{V_MR + 1}], v{V_T + 6}, s[{S_M}:{S_M + 3}], 0 offen
    buffer_load_dwordx2 v[{V_MR + 2}:{V_MR + 3}], v{V_T + 6}, s[{S_M}:{S_M + 3}], 0 offen offset:512
    v_mov_b32 v{V_T + 12}, {NIL}
    v_mov_b32 v{V_T + 13}, {NIL}
    v_mov_b32 v{V_T + 14}, {NIL}
    v_mov_b32 v{V_T + 15}, {NIL}
    v_lshlrev_b32 v{V_T + 7}, 4, v0
    v_cmp_gt_u32 vcc, 800, v0
    s_mov_b64 exec, vcc
    ds_write_b128 v{V_T + 7}, v[{V_T + 12}:{V_T + 15}]
    s_mov_b64 exec, -1
    v_mov_b32 v{V_T + 12}, 0
    v_mov_b32 v{V_T + 13}, 0
    v_mov_b32 v{V_T + 14}, 0
    v_cmp_eq_u32 vcc, 0, v0
    s_mov_b64 exec, vcc
    ds_write_b128 v{V_T + 12}, v[{V_T + 12}:{V_T + 15}] offset:{P2_DUMMY}
    ds_write_b32 v{V_T + 12}, v{V_T + 12} offset:{P2_WORD}
    s_mov_b64 exec, -1
    ; segtab address for (virtual) tile t < 576: SEG + ((t%24)*24 + t/24)*4
    v_mul_u32_u24 v{V_T + 7}, 2731, v0
    v_lshrrev_b32 v{V_T + 7}, 16, v{V_T + 7}          ; q = t/24
    v_mul_u32_u24 v{V_T + 10}, 24, v{V_T + 7}
    v_sub_u32 v{V_T + 10}, v0, v{V_T + 10}            ; r
    v_mad_u32_u24 v{V_T + 7}, v{V_T + 10}, 24, v{V_T + 7}
    v_lshlrev_b32 v{V_T + 7}, 2, v{V_T + 7}
    v_cmp_gt_u32 vcc, {NL * LLEN}, v0
    s_cbranch_vccz p2_noseg
    s_mov_b64 exec, vcc
    s_waitcnt vmcnt(4)
    ds_write_b32 v{V_T + 7}, v{V_T + 21} offset:{P2_SEG}
    s_mov_b64 exec, -1
p2_noseg:
    s_waitcnt lgkmcnt(0)
    s_barrier
    s_lshl_b32 s{S_FR + 2}, s{S_FR + 1}, 16
    s_and_b32 s{S_FR + 1}, s{S_FR}, 0xffff0000
    s_lshl_b32 s{S_FR}, s{S_FR}, 16
    s_cmp_ge_u32 s{S_WAVE}, {NPW}
    s_cbranch_scc1 p2_consumer""")


def rbf_code():
    w(f"""    v_lshlrev_b32 v{V_T + 8}, 16, v{V_T + 8}
    v_lshlrev_b32 v{V_T + 9}, 16, v{V_T + 9}""")
    for p in range(4):
        w(f"""    s_lshl_b32 s{S_T0}, s{S_CENT + p}, 16
    s_and_b32 s{S_T1}, s{S_CENT + p}, 0xffff0000""")
        for e in range(2):
            a, b, t = V_T + 12 + 2 * e, V_T + 13 + 2 * e, V_PK[e] + p
            d = V_T + 8 + e
            w(f"""    v_subrev_f32 v{a}, s{S_T0}, v{d}
    v_subrev_f32 v{b}, s{S_T1}, v{d}
    v_cvt_pk_bf16_f32 v{t}, v{a}, v{b}
    v_lshlrev_b32 v{a}, 16, v{t}
    v_and_b32 v{b}, 0xffff0000, v{t}
    v_mul_f32 v{a}, v{a}, v{a}
    v_mul_f32 v{b}, v{b}, v{b}
    v_cvt_pk_bf16_f32 v{t}, v{a}, v{b}
    v_lshlrev_b32 v{a}, 16, v{t}
    v_and_b32 v{b}, 0xffff0000, v{t}
    v_mul_f32 v{a}, 0xc1200000, v{a}
    v_mul_f32 v{b}, 0xc1200000, v{b}
    v_cvt_pk_bf16_f32 v{t}, v{a}, v{b}
    v_lshlrev_b32 v{a}, 16, v{t}
    v_and_b32 v{b}, 0xffff0000, v{t}
    v_mul_f32 v{a}, 0x3fb8aa3b, v{a}
    v_mul_f32 v{b}, 0x3fb8aa3b, v{b}
    v_exp_f32 v{a}, v{a}
    v_exp_f32 v{b}, v{b}
    s_nop 0
    v_cvt_pk_bf16_f32 v{t}, v{a}, v{b}""")


def gr_code():
    for p in range(4):
        for l in range(3):
            r0 = (2 * p) * 3 + l
            r1 = (2 * p + 1) * 3 + l
            for dp in range(2):
                sa, sb = SW_SBF + r0 * 2 + dp, SW_SBF + r1 * 2 + dp
                w(f"""    s_pack_ll_b32_b16 s{S_T0}, s{sa}, s{sb}
    s_pack_hh_b32_b16 s{S_T1}, s{sa}, s{sb}""")
                for e in range(2):
                    for q, st in ((0, S_T0), (1, S_T1)):
                        g = GE[e] + l * 4 + dp * 2 + q
                        c = "0" if p == 0 else f"v{g}"
                        w(f"    v_dot2_f32_bf16 v{g}, v{V_PK[e] + p}, s{st}, {c}")
    for p in range(4):
        for dp in range(2):
            sa, sb = SW_RBF + (2 * p) * 2 + dp, SW_RBF + (2 * p + 1) * 2 + dp
            w(f"""    s_pack_ll_b32_b16 s{S_T0}, s{sa}, s{sb}
    s_pack_hh_b32_b16 s{S_T1}, s{sa}, s{sb}""")
            for e in range(2):
                for q, st in ((0, S_T0), (1, S_T1)):
                    g = RE[e] + dp * 2 + q
                    c = "0" if p == 0 else f"v{g}"
                    w(f"    v_dot2_f32_bf16 v{g}, v{V_PK[e] + p}, s{st}, {c}")
    w("    s_nop 2")


def load_wdu():
    w(f"""    s_load_dwordx4 s[{SW_SBF}:{SW_SBF + 3}], s[0:1], 72
    s_waitcnt lgkmcnt(0)
    s_load_dwordx8 s[{SW_D}:{SW_D + 7}], s[{SW_SBF}:{SW_SBF + 1}], 0
    s_load_dwordx8 s[{SW_U}:{SW_U + 7}], s[{SW_SBF + 2}:{SW_SBF + 3}], 0
    s_waitcnt lgkmcnt(0)""")


def issue_rec(u):
    R = V_REC[u]
    mA = S_MASK + u * 4
    mB = mA + 2
    t = V_T
    w(f"""    v_add_u32 v{t}, v{V_HB}, v{V_LANE6}
    v_lshl_add_u32 v{t + 1}, v{t}, 1, v{V_TB}
    v_cmp_lt_u32 vcc, v{t}, v{V_E3}
    v_cmp_ge_u32 s[{mA}:{mA + 1}], v{t}, v{V_S3}
    v_add_u32 v{t + 2}, 3, v{t}
    v_cndmask_b32 v{t + 1}, 2.0, v{t + 1}, vcc
    v_cmp_lt_u32 s[{mB}:{mB + 1}], v{t + 2}, v{V_E3}
    buffer_load_dwordx3 v[{R}:{R + 2}], v{t + 1}, s[{S_REC}:{S_REC + 3}], 0 offen
    s_and_b64 s[{mA}:{mA + 1}], s[{mA}:{mA + 1}], vcc
    v_add_u32 v{V_HB}, 192, v{V_HB}
    s_waitcnt lgkmcnt(0)
    v_cmp_ge_u32 vcc, v{V_HB}, v{V_E3}
    s_mov_b64 exec, vcc
    v_and_b32 v{V_S3}, 0xffff, v{V_NEXT}
    v_lshrrev_b32 v{V_E3}, 16, v{V_NEXT}
    v_and_b32 v{t}, 1, v{V_NEXT}
    v_mad_i32_i24 v{V_HB}, v{t}, -3, v{V_S3}
    v_add_u32 v{V_TB}, {NL * TS}, v{V_TB}
    v_add_u32 v{V_K}, 4, v{V_K}
    v_min_u32 v{V_K}, v{V_K}, v{V_KEND}
    v_add_u32 v{V_CNT}, 1, v{V_CNT}
    s_mov_b64 exec, -1
    ds_read_b32 v{V_NEXT}, v{V_K}""")


def gather(u):
    R = V_REC[u]
    B = V_BLK[u]
    mA = S_MASK + u * 4
    mB = mA + 2
    t = V_T
    w(f"""    v_lshrrev_b32 v{t}, 10, v{R}
    v_lshrrev_b32 v{t + 1}, 10, v{R + 2}
    v_and_b32 v{t}, -8, v{t}
    v_and_b32 v{t + 1}, -8, v{t + 1}
    v_cndmask_b32 v{t}, 2.0, v{t}, s[{mA}:{mA + 1}]
    v_cndmask_b32 v{t + 1}, 2.0, v{t + 1}, s[{mB}:{mB + 1}]
    buffer_load_dwordx2 v[{B}:{B + 1}], v{t}, s[{S_M}:{S_M + 3}], 0 offen
    buffer_load_dwordx2 v[{B + 4}:{B + 5}], v{t + 1}, s[{S_M}:{S_M + 3}], 0 offen""")


def build(p, u, vm):
    R = V_REC[u]
    B = V_BLK[u]
    mA = S_MASK + u * 4
    mB = mA + 2
    t = V_T
    idx0 = (p * BUFSZ + u * NPW * 2048) // 16
    w(f"""    v_and_b32 v{t + 10}, 0x1fff, v{R}
    v_and_b32 v{t + 11}, 0x1fff, v{R + 2}
    v_add_u32 v{t}, {idx0}, v{V_SI}
    v_add_u32 v{t + 1}, {idx0 + 64}, v{V_SI}
    v_lshlrev_b32 v{t + 10}, 2, v{t + 10}
    v_lshlrev_b32 v{t + 11}, 2, v{t + 11}
    s_mov_b64 exec, s[{mA}:{mA + 1}]
    ds_wrxchg_rtn_b32 v{B + 3}, v{t + 10}, v{t} offset:{HEAD[p]}
    s_mov_b64 exec, s[{mB}:{mB + 1}]
    ds_wrxchg_rtn_b32 v{B + 7}, v{t + 11}, v{t + 1} offset:{HEAD[p]}
    s_mov_b64 exec, -1
    v_lshlrev_b32 v{t + 2}, 16, v{R + 1}
    v_and_b32 v{t + 3}, 0xffff0000, v{R + 1}""")
    for l in range(3):
        c = t + 4 + 2 * l
        w(f"""    v_mul_f32 v{c}, s{S_FR + l}, v{t + 2}
    v_mul_f32 v{c + 1}, s{S_FR + l}, v{t + 3}
    v_cvt_pk_bf16_f32 v{c + 1}, v{c}, v{c + 1}
    v_lshlrev_b32 v{c}, 16, v{c + 1}
    v_and_b32 v{c + 1}, 0xffff0000, v{c + 1}
    v_mul_f32 v{c}, 0.15915494, v{c}
    v_mul_f32 v{c + 1}, 0.15915494, v{c + 1}
    v_fract_f32 v{c}, v{c}
    v_fract_f32 v{c + 1}, v{c + 1}
    v_cos_f32 v{c}, v{c}
    v_cos_f32 v{c + 1}, v{c + 1}""")
    c1, c2, c3 = t + 4, t + 6, t + 8
    w(f"""    v_cvt_pk_bf16_f32 v{B + 2}, v{c1}, v{c2}
    v_cvt_pk_bf16_f32 v{B + 6}, v{c1 + 1}, v{c2 + 1}
    v_cvt_pk_bf16_f32 v{t}, v{c3}, v{c3 + 1}
    s_waitcnt lgkmcnt(0)
    v_lshl_or_b32 v{B + 3}, v{t}, 16, v{B + 3}
    v_and_or_b32 v{B + 7}, v{t}, v{V_HIM}, v{B + 7}
    s_waitcnt vmcnt({vm})
    ds_write_b128 v{V_SL[p]}, v[{B}:{B + 3}] offset:{u * NPW * 2048}
    ds_write_b128 v{V_SL[p]}, v[{B + 4}:{B + 7}] offset:{u * NPW * 2048 + 1024}""")


w(f"""    ; list = tid>>5 ; first tile = list
    v_lshrrev_b32 v{V_T}, 5, v0
    v_mul_u32_u24 v{V_K}, {LLEN * 4}, v{V_T}
    v_add_u32 v{V_K}, {P2_SEG}, v{V_K}
    ds_read_b32 v{V_T + 1}, v{V_K}
    ds_read_b32 v{V_NEXT}, v{V_K} offset:4
    v_add_u32 v{V_KEND}, {NSEG * 4}, v{V_K}
    v_add_u32 v{V_K}, 4, v{V_K}
    s_mov_b32 s{S_T0}, {TS}
    v_mul_lo_u32 v{V_TB}, v{V_T}, s{S_T0}
    v_and_b32 v{V_LANE6}, 31, v0
    v_mul_u32_u24 v{V_LANE6}, 6, v{V_LANE6}
    v_mov_b32 v{V_CNT}, 0
    v_mov_b32 v{V_HIM}, 0xffff0000
    v_and_b32 v{V_T + 2}, 63, v0
    s_lshl_b32 s{S_T0}, s{S_WAVE}, 11
    s_add_u32 s{S_T0}, s{S_T0}, {BUF[0]}
    v_lshlrev_b32 v{V_SL[0]}, 4, v{V_T + 2}
    v_add_u32 v{V_SL[0]}, s{S_T0}, v{V_SL[0]}
    v_add_u32 v{V_SL[1]}, {BUFSZ}, v{V_SL[0]}
    v_lshrrev_b32 v{V_SI}, 4, v{V_SL[0]}
    s_waitcnt lgkmcnt(0)
    v_and_b32 v{V_S3}, 0xffff, v{V_T + 1}
    v_lshrrev_b32 v{V_E3}, 16, v{V_T + 1}
    v_and_b32 v{V_T + 2}, 1, v{V_S3}
    v_mad_i32_i24 v{V_HB}, v{V_T + 2}, -3, v{V_S3}""")
stamp()
issue_rec(0)
issue_rec(1)
w("""    s_setprio 0
    s_waitcnt vmcnt(1)""")
stamp()
gather(0)
stamp()
rbf_code()
gr_code()
w(f"    s_mov_b32 s{S_CH}, 0")
stamp()
w("p2_ploop:")
for p in range(2):
    for u in range(3):
        if u == 1:
            w(f"""    v_cmp_gt_u32 vcc, {NSEG}, v{V_CNT}
    s_cbranch_vccz p2_nowork{p}
    s_add_u32 s{S_T0}, s{S_CH}, 1
    v_mov_b32 v{V_T}, 0
    v_mov_b32 v{V_T + 1}, s{S_T0}
    s_mov_b64 exec, 1
    ds_max_u32 v{V_T}, v{V_T + 1} offset:{P2_WORD}
    s_mov_b64 exec, -1
p2_nowork{p}:""")
        if "noprio" not in sys.argv:
            w(f"    s_setprio {2 - u}")
        issue_rec((u + 2) % 3)
        w("    s_waitcnt vmcnt(3)")
        gather((u + 1) % 3)
        build(p, u, 3)
    w("    s_waitcnt lgkmcnt(0)")
    dstamp(S_CH, 2, 8, S_T1)
    w("    s_barrier")
    dstamp(S_CH, 2, 9, S_T1)
    w(f"""    v_mov_b32 v{V_T}, 0
    ds_read_b32 v{V_WD}, v{V_T} offset:{P2_WORD}
    s_add_u32 s{S_CH}, s{S_CH}, 1
    s_waitcnt lgkmcnt(0)
    v_readfirstlane_b32 s{S_T0}, v{V_WD}
    s_nop 3
    s_cmp_lt_u32 s{S_T0}, s{S_CH}
    s_cbranch_scc1 p2_pend""")
w("""    s_branch p2_ploop
p2_pend:""")
stamp()
load_wdu()
w("""    s_waitcnt vmcnt(0)
    s_barrier
    s_barrier
    s_branch p2_final""")

w(f"""p2_consumer:
    s_setprio 3""")
for i in range(84):
    w(f"    v_mov_b32 v{V_S[0] + i}, 0")
w(f"""    v_subrev_u32 v{V_CH}, {NPW * 64}, v0
    v_lshlrev_b32 v{V_CH}, 2, v{V_CH}
    s_waitcnt vmcnt(0)""")
rbf_code()
w(f"""    s_load_dwordx4 s[{SW_D}:{SW_D + 3}], s[0:1], 72
    s_waitcnt lgkmcnt(0)
    s_load_dwordx8 s[{SW_U}:{SW_U + 7}], s[{SW_D + 2}:{SW_D + 3}], 0
    s_load_dwordx8 s[{SW_D}:{SW_D + 7}], s[{SW_D}:{SW_D + 1}], 0
    s_mov_b32 s{S_CH}, 0
    s_waitcnt lgkmcnt(0)""")


def walk_group(p, qs, tag):
    t = V_T
    n = len(qs)
    a = [t + i for i in range(n)]
    nil = t + 3
    r = [t + 4 + 4 * i for i in range(n)]
    C = t + 16
    m = t + 20
    for i, q in enumerate(qs):
        w(f"    ds_read_b32 v{a[i]}, v{V_CH} offset:{HEAD[p] + q * 1024}")
    w(f"""    v_mov_b32 v{nil}, {NIL}
    s_waitcnt lgkmcnt(0)""")
    for i, q in enumerate(qs):
        w(f"""    ds_write_b32 v{V_CH}, v{nil} offset:{HEAD[p] + q * 1024}
    v_lshlrev_b32 v{a[i]}, 4, v{a[i]}""")
    for i in range(n):
        w(f"    ds_read_b128 v[{r[i]}:{r[i] + 3}], v{a[i]}")
    w(f"""    v_mov_b32 v{nil}, {P2_DUMMY}
{tag}:""")
    for i, q in enumerate(qs):
        R, Sx = r[i], V_S[q]
        w(f"""    s_waitcnt lgkmcnt({n - 1})
    v_lshlrev_b32_sdwa v{a[i]}, 4, v{R + 3} dst_sel:DWORD dst_unused:UNUSED_PAD src0_sel:DWORD src1_sel:WORD_0
    v_lshlrev_b32 v{C}, 16, v{R + 2}
    v_and_b32 v{C + 1}, 0xffff0000, v{R + 2}
    v_and_b32 v{C + 2}, 0xffff0000, v{R + 3}
    v_lshlrev_b32 v{m}, 16, v{R}
    v_and_b32 v{m + 1}, 0xffff0000, v{R}
    v_lshlrev_b32 v{m + 2}, 16, v{R + 1}
    v_and_b32 v{m + 3}, 0xffff0000, v{R + 1}
    ds_read_b128 v[{R}:{R + 3}], v{a[i]}""")
        if i == 0:
            w(f"    v_cmp_ne_u32 vcc, v{a[i]}, v{nil}")
        else:
            w(f"    v_cmp_ne_u32 s[{S_P2}:{S_P2 + 1}], v{a[i]}, v{nil}")
        for l in range(3):
            cp = C if l < 2 else C + 2
            sel = "op_sel:[0,1,0] op_sel_hi:[1,1,1]" if l == 1 else "op_sel:[0,0,0] op_sel_hi:[1,0,1]"
            for h in range(2):
                s_ = Sx + 4 * l + 2 * h
                w(f"    v_pk_fma_f32 v[{s_}:{s_ + 1}], v[{m + 2 * h}:{m + 2 * h + 1}], v[{cp}:{cp + 1}], v[{s_}:{s_ + 1}] {sel}")
        if i > 0:
            w(f"    s_or_b64 vcc, vcc, s[{S_P2}:{S_P2 + 1}]")
    w(f"""    s_cbranch_vccnz {tag}
    s_waitcnt lgkmcnt(0)""")


w("p2_cloop:")
for p in range(2):
    w("    s_barrier")
    dstamp(S_CH, 2, 9, S_T1)
    w(f"""    v_mov_b32 v{V_T + 23}, 0
    ds_read_b32 v{V_T + 23}, v{V_T + 23} offset:{P2_WORD}
    s_add_u32 s{S_CH}, s{S_CH}, 1
    s_waitcnt lgkmcnt(0)
    v_readfirstlane_b32 s{S_T0}, v{V_T + 23}""")
    walk_group(p, [0, 1, 2], f"p2_wa{p}")
    walk_group(p, [3, 4, 5], f"p2_wb{p}")
    w(f"""    s_cmp_lg_u32 s{S_WAVE}, {NPW}
    s_cbranch_scc1 p2_wskip{p}""")
    walk_group(p, [6], f"p2_wc{p}")
    w(f"p2_wskip{p}:")
    dstamp(S_CH, 2, 8, S_T1)
    w(f"""    s_cmp_lt_u32 s{S_T0}, s{S_CH}
    s_cbranch_scc1 p2_cend""")
w(f"""    s_branch p2_cloop
p2_cend:
    s_barrier
    v_mul_u32_u24 v{V_T}, 12, v{V_CH}
    v_add_u32 v{V_T}, {BUF[0]}, v{V_T}
    v_add_u32 v{V_T + 1}, {4 * 256 * 48}, v{V_T}""")
for q in range(7):
    if q == 6:
        w(f"""    s_cmp_lg_u32 s{S_WAVE}, {NPW}
    s_cbranch_scc1 p2_dskip""")
    a = V_T if q < 4 else V_T + 1
    off = (q % 4) * 256 * 48
    for k in range(3):
        s_ = V_S[q] + 4 * k
        w(f"    ds_write_b128 v{a}, v[{s_}:{s_ + 3}] offset:{off + 16 * k}")
w("""p2_dskip:
    s_waitcnt lgkmcnt(0)
    s_barrier""")
gr_code()

SE = [40, 52]
UE = [64, 76]
AG = [16, 20]
UP = [24, 28]
w(f"""p2_final:
    v_mul_u32_u24 v{V_T}, 48, v{V_HA[0]}
    v_mul_u32_u24 v{V_T + 1}, 48, v{V_HA[1]}""")
for e in range(2):
    for k in range(3):
        s_ = SE[e] + 4 * k
        w(f"    ds_read_b128 v[{s_}:{s_ + 3}], v{V_T + e} offset:{BUF[0] + 16 * k}")
w("    s_waitcnt lgkmcnt(0)")
for k in range(4):
    for dp in range(2):
        sg = SW_D + k * 2 + dp
        w(f"""    s_lshl_b32 s{S_T0}, s{sg}, 16
    s_and_b32 s{S_T1}, s{sg}, 0xffff0000""")
        for e in range(2):
            for l in range(3):
                for q, st in ((0, S_T0), (1, S_T1)):
                    u_ = UE[e] + 4 * l + dp * 2 + q
                    s_ = SE[e] + 4 * l + k
                    op = "v_mul_f32" if k == 0 else "v_fmac_f32"
                    w(f"    {op} v{u_}, s{st}, v{s_}")
for e in range(2):
    for j in range(4):
        w(f"""    v_mul_f32 v{AG[e] + j}, v{GE[e] + j}, v{UE[e] + j}
    v_fmac_f32 v{AG[e] + j}, v{GE[e] + 4 + j}, v{UE[e] + 4 + j}
    v_fmac_f32 v{AG[e] + j}, v{GE[e] + 8 + j}, v{UE[e] + 8 + j}""")
for k in range(4):
    for dp in range(2):
        sg = SW_U + k * 2 + dp
        w(f"""    s_lshl_b32 s{S_T0}, s{sg}, 16
    s_and_b32 s{S_T1}, s{sg}, 0xffff0000""")
        for e in range(2):
            for q, st in ((0, S_T0), (1, S_T1)):
                u_ = UP[e] + dp * 2 + q
                op = "v_mul_f32" if k == 0 else "v_fmac_f32"
                w(f"    {op} v{u_}, s{st}, v{AG[e] + k}")
for e in range(2):
    for dp in range(2):
        u0 = UP[e] + 2 * dp
        r0 = RE[e] + 2 * dp
        mr = V_MR + 2 * e + dp
        a, b = 32, 33
        w(f"""    v_cvt_pk_bf16_f32 v{u0 + 1}, v{u0}, v{u0 + 1}
    v_cvt_pk_bf16_f32 v{r0 + 1}, v{r0}, v{r0 + 1}
    v_lshlrev_b32 v{u0}, 16, v{u0 + 1}
    v_and_b32 v{u0 + 1}, 0xffff0000, v{u0 + 1}
    v_lshlrev_b32 v{r0}, 16, v{r0 + 1}
    v_and_b32 v{r0 + 1}, 0xffff0000, v{r0 + 1}
    v_mul_f32 v{u0}, v{u0}, v{r0}
    v_mul_f32 v{u0 + 1}, v{u0 + 1}, v{r0 + 1}
    v_cvt_pk_bf16_f32 v{u0 + 1}, v{u0}, v{u0 + 1}
    v_lshlrev_b32 v{u0}, 16, v{u0 + 1}
    v_and_b32 v{u0 + 1}, 0xffff0000, v{u0 + 1}
    v_lshlrev_b32 v{a}, 16, v{mr}
    v_and_b32 v{b}, 0xffff0000, v{mr}
    v_add_f32 v{u0}, v{u0}, v{a}
    v_add_f32 v{u0 + 1}, v{u0 + 1}, v{b}
    v_cvt_pk_bf16_f32 v{mr}, v{u0}, v{u0 + 1}""")
w(f"""    s_lshl_b32 s{S_E0}, s{S_E0}, 3
    v_lshlrev_b32 v34, 3, v{V_HA[0]}
    v_lshlrev_b32 v35, 3, v{V_HA[1]}
    v_cmp_gt_u32 vcc, {EO}, v{V_HA[0]}
    v_mov_b32 v36, {EO}
    v_cmp_gt_u32 s[{S_T0}:{S_T1}], v36, v{V_HA[1]}
    v_cndmask_b32 v34, 2.0, v34, vcc
    s_nop 0
    v_cndmask_b32 v35, 2.0, v35, s[{S_T0}:{S_T1}]
    buffer_store_dwordx2 v[{V_MR}:{V_MR + 1}], v34, s[{S_OUT}:{S_OUT + 3}], s{S_E0} offen
    buffer_store_dwordx2 v[{V_MR + 2}:{V_MR + 3}], v35, s[{S_OUT}:{S_OUT + 3}], s{S_E0} offen""")
stamp()
stamp_flush(1, S_WAVE, 36)
w("""p2_done:
    s_endpgm""")
w(kd("acc_kernel", 128 if DIAG else NV2, 102))
print("\n".join(out))
```

```python
import sys
E = 400000
T = 6400000
EO = 1563
MAGIC = -(-(1 << 32) // EO)
S = 12500
NT = 512
TS = 75008
OFFS_BASE = 40 * 1024 * 1024
assert all(((i * MAGIC) >> 32) == i // EO for i in range(0, E, 1))
assert MAGIC < (1 << 24)

HDR = open('standalone__molecular_angular_gemnet__graph.s.ref').read().split('; Override launch')[0]
out = []


def w(s):
    out.append(s)


def kd(name, vgpr, sgpr):
    return f""".section .rodata,"a"
.p2align 6
.amdhsa_kernel {name}
  .amdhsa_next_free_vgpr {vgpr}
  .amdhsa_next_free_sgpr {sgpr}
  .amdhsa_accum_offset {(vgpr + 3) // 4 * 4}
  .amdhsa_group_segment_fixed_size 0
  .amdhsa_kernarg_size 112
  .amdhsa_user_sgpr_count 2
  .amdhsa_user_sgpr_kernarg_segment_ptr 1
  .amdhsa_system_sgpr_workgroup_id_x 1
  .amdhsa_float_denorm_mode_32 3
.end_amdhsa_kernel
.text
"""


def head(name):
    return f""".globl {name}
.p2align 8
.type {name},@function
{name}:"""


def srd(d, b, nbytes):
    return f"""    s_mov_b32 s{d}, s{b}
    s_and_b32 s{d + 1}, s{b + 1}, 0xffff
    s_mov_b32 s{d + 2}, {nbytes}
    s_mov_b32 s{d + 3}, 0x00020000"""


DIAG = "diag" in sys.argv
STAMP_BASE = 200 * 1024 * 1024
_st = {"n": 0, "s": 0}


def stamp(k=None):
    if not DIAG:
        return
    if k is None:
        k = _st["n"]
    _st["n"] = k + 1
    b = _st["s"]
    v = _st["v"]
    w(f"""    s_memrealtime vcc
    s_waitcnt lgkmcnt(0)
    v_writelane_b32 v{v}, vcc_lo, {k}""")


def stamp_flush(kid, swave, b, wgmask=255):
    if not DIAG:
        return
    v = _st['v']
    w(f"""    s_load_dwordx2 s[{b}:{b + 1}], s[0:1], 104
    s_waitcnt lgkmcnt(0)
    s_add_u32 s{b}, s{b}, {STAMP_BASE + kid * 4 * 1024 * 1024}
    s_addc_u32 s{b + 1}, s{b + 1}, 0
    s_and_b32 s{b + 2}, s2, {wgmask}
    s_lshl_b32 s{b + 2}, s{b + 2}, 4
    s_add_u32 s{b + 2}, s{b + 2}, s{swave}
    s_lshl_b32 s{b + 2}, s{b + 2}, 8
    v_and_b32 v1, 63, v0
    v_lshlrev_b32 v1, 2, v1
    v_add_u32 v1, s{b + 2}, v1
    global_store_dword v1, v{v}, s[{b}:{b + 1}]""")
    sys.stderr.write(f"kernel {kid}: {_st['n']} stamps\n")


P1_LDS = 1024 + TS
NBIN = 196
NBLK = 209
BSTR = 776
NOVB = (NBLK - NBIN) if "smallovf" not in sys.argv else 1
A_CNT = 0
A_OVF = 1008
A_INC = A_OVF + 4
A_STG = 1024
assert A_STG + NBLK * BSTR <= 163840
NPW = 8
KCH = 4
HEAD = [0, 6400]
B_DUMMY = 12800
BUFSZ = NPW * KCH * 2048
BUF = [13056, 13056 + BUFSZ]
assert BUF[1] + BUFSZ <= 163840
NIL = B_DUMMY // 16
NITB = -(-NBLK // NPW)
NCHK = -(-NITB // KCH)
ST_FL = " sc1" if "nosc1" not in sys.argv else ""

w(HDR.rstrip("\n"))
w(f"; @launch kernel=part_kernel grid=(512,1,1) block=(512,1,1) lds={P1_LDS}")
w(f"; @launch kernel=acc_kernel grid=(256,1,1) block=(1024,1,1) lds=163840")
w('.amdgcn_target "amdgcn-amd-amdhsa--gfx950"\n.text')

w(head("part_kernel"))
RB = 16
KB = 88
TMP = 4
_st.update(n=0, v=116)
w(f"""    s_cmp_ge_u32 s2, {NT}
    s_cbranch_scc1 p1_done
    s_load_dwordx4 s[4:7], s[0:1], 8
    s_load_dwordx2 s[28:29], s[0:1], 32    ; angle
    s_load_dwordx2 s[30:31], s[0:1], 104   ; ws
    v_lshlrev_b32 v1, 4, v0
    v_lshlrev_b32 v2, 3, v0
    v_mov_b32 v3, 3
    v_readfirstlane_b32 s3, v0
    s_lshr_b32 s3, s3, 6
    s_mul_i32 s32, s2, {S * 4}
    s_mul_i32 s33, s2, {S * 2}
    s_mov_b32 s34, {MAGIC}
    s_mov_b32 s35, {(-EO * 4) & 0xffffffff}
    v_lshlrev_b32 v4, 2, v0
    v_mov_b32 v5, 0
    v_cmp_gt_u32 vcc, 256, v0
    s_mov_b64 exec, vcc
    ds_write_b32 v4, v5
    s_mov_b64 exec, -1
    v_add_u32 v12, 1024, v1
    v_add_u32 v13, {1024 + 65536}, v1
    v_cmp_gt_u32 vcc, {TS // 16 - 9 * 512}, v0
    s_nop 1
    v_cndmask_b32 v14, 2.0, v1, vcc
    s_waitcnt lgkmcnt(0)
    s_barrier""")
stamp()
w(srd(8, 4, T * 4))
w(srd(12, 6, T * 4))
w(srd(16, 28, T * 2))
w(srd(20, 30, NT * TS))
w(f"""    s_add_u32 s30, s30, {OFFS_BASE}
    s_addc_u32 s31, s31, 0""")
w(srd(24, 30, NT * 1024))


def p1_loads(r):
    b = RB + r * 10
    w(f"""    s_add_u32 s36, s32, {r * 8192}
    s_add_u32 s37, s33, {r * 4096}
    buffer_load_dwordx4 v[{b + 4}:{b + 7}], v1, s[12:15], s36 offen
    buffer_load_dwordx4 v[{b}:{b + 3}], v1, s[8:11], s36 offen
    buffer_load_dwordx2 v[{b + 8}:{b + 9}], v2, s[16:19], s37 offen""")


NPART = S // 4 - 6 * 512
PMASK = (1 << NPART) - 1


def wave0_partial(tag, fn):
    w(f"""    s_cmp_lg_u32 s3, 0
    s_cbranch_scc1 {tag}
    s_mov_b32 exec_lo, {PMASK & 0xffffffff}
    s_mov_b32 exec_hi, {PMASK >> 32}""")
    fn()
    w(f"""    s_mov_b64 exec, -1
{tag}:""")


def p1_hist(r):
    b = RB + r * 10
    for i in range(4):
        vin = b + i
        vo = b + 4 + i
        t = TMP + i
        w(f"""    v_mul_hi_u32_u24 v{t}, s34, v{vo}
    v_lshlrev_b32 v{vo}, 2, v{vo}
    v_mad_i32_i24 v{vo}, v{t}, s35, v{vo}
    v_lshl_or_b32 v{vin}, v{vin}, 13, v{vo}
    v_lshlrev_b32 v{vo}, 2, v{t}
    ds_add_rtn_u32 v{KB + r * 4 + i}, v{vo}, v3""")


def p1_base(r):
    b = RB + r * 10
    for i in range(4):
        vo = b + 4 + i
        w(f"    ds_read_b32 v{vo}, v{vo}")


def p1_scatter(r):
    b = RB + r * 10
    for i in range(4):
        vin = b + i
        vo = b + 4 + i
        k = KB + r * 4 + i
        t = TMP + i
        va = b + 8 + i // 2
        wr = "ds_write_b16" if i % 2 == 0 else "ds_write_b16_d16_hi"
        w(f"""    v_add_lshl_u32 v{k}, v{vo}, v{k}, 1
    v_and_b32 v{t}, 2, v{k}
    v_add_u32 v{vo}, v{k}, v{t}
    v_mad_i32_i24 v{k}, v{t}, -2, v{k}
    ds_write_b32 v{vo}, v{vin}
    {wr} v{k}, v{va} offset:4""")


w("""    s_cmp_ge_u32 s2, 256
    s_cbranch_scc1 p1_lowprio
    s_setprio 3
p1_lowprio:""")
wave0_partial("p1_l3skip", lambda: p1_loads(6))
for r in range(6):
    p1_loads(r)
w("    s_setprio 2")
stamp()
for r in range(6):
    w(f"    s_waitcnt vmcnt({15 - 3 * r})")
    p1_hist(r)
    if r == 0:
        wave0_partial("p1_h3skip", lambda: p1_hist(6))
w("    s_waitcnt lgkmcnt(0)")
stamp()
w(f"""    s_barrier
    s_cmp_lg_u32 s3, 0
    s_cbranch_scc1 p1_scan_skip
    ds_read_b128 v[4:7], v1
    s_waitcnt lgkmcnt(0)
    v_add_u32 v5, v4, v5
    v_add_u32 v6, v5, v6
    v_add_u32 v7, v6, v7
    v_mov_b32 v8, v7
    s_nop 1
    v_add_u32_dpp v8, v8, v8 row_shr:1 row_mask:0xf bank_mask:0xf bound_ctrl:0
    s_nop 1
    v_add_u32_dpp v8, v8, v8 row_shr:2 row_mask:0xf bank_mask:0xf bound_ctrl:0
    s_nop 1
    v_add_u32_dpp v8, v8, v8 row_shr:4 row_mask:0xf bank_mask:0xf bound_ctrl:0
    s_nop 1
    v_add_u32_dpp v8, v8, v8 row_shr:8 row_mask:0xf bank_mask:0xf bound_ctrl:0
    s_nop 1
    v_add_u32_dpp v8, v8, v8 row_bcast:15 row_mask:0xa bank_mask:0xf
    s_nop 1
    v_add_u32_dpp v8, v8, v8 row_bcast:31 row_mask:0xc bank_mask:0xf
    v_sub_u32 v9, v8, v7
    v_add_u32 v10, v9, v4
    v_add_u32 v11, v9, v5
    v_add_u32 v15, v9, v6
    v_lshl_or_b32 v4, v10, 16, v9
    v_lshl_or_b32 v5, v11, 16, v10
    v_lshl_or_b32 v6, v15, 16, v11
    v_lshl_or_b32 v7, v8, 16, v15
    v_add_u32 v8, 512, v9
    v_add_u32 v9, 512, v10
    v_add_u32 v10, 512, v11
    v_add_u32 v11, 512, v15
    ds_write_b128 v1, v[8:11]
    s_lshl_b32 s36, s2, 10
    s_waitcnt lgkmcnt(0)
    s_barrier
    buffer_store_dwordx4 v[4:7], v1, s[24:27], s36 offen{ST_FL}
    s_nop 1
    s_branch p1_scan_done
p1_scan_skip:
    s_barrier
p1_scan_done:""")
stamp()
wave0_partial("p1_b3skip", lambda: (p1_base(6), w("    s_waitcnt lgkmcnt(0)"), p1_scatter(6)))
p1_base(0)
p1_base(1)
for r in range(6):
    if r + 2 < 6:
        p1_base(r + 2)
    w("    s_waitcnt lgkmcnt(%d)" % (8 if r == 0 else (4 if r + 2 < 6 else 0) + 8))
    p1_scatter(r)
w("    s_waitcnt lgkmcnt(0)")
stamp()
w("    s_barrier")
stamp()
stg = [16 + 4 * r for r in range(10)]
for r in range(10):
    a, off = (12, r * 8192) if r < 8 else (13, (r - 8) * 8192)
    w(f"    ds_read_b128 v[{stg[r]}:{stg[r] + 3}], v{a} offset:{off}")
w(f"    s_mul_i32 s36, s2, {TS}")
for r in range(10):
    w(f"""    s_waitcnt lgkmcnt({9 - r})
    buffer_store_dwordx4 v[{stg[r]}:{stg[r] + 3}], v{1 if r < 9 else 14}, s[20:23], s36 offen{ST_FL}
    s_add_u32 s36, s36, 8192""")
stamp()
if DIAG:
    w("    s_waitcnt vmcnt(0)")
stamp()
if DIAG:
    w("""    s_cmp_ge_u32 s2, 256
    s_cselect_b32 s38, 8, 0
    s_add_u32 s3, s3, s38""")
stamp_flush(0, 3, 40)
w("""p1_done:
    s_endpgm""")
w(kd("part_kernel", 120 if DIAG else 116, 48))

w(head("acc_kernel"))
S_WAVE = 3
S_MI = 4
S_REC = 8
S_OFFS = 12
S_OUT = 12
S_SKIP = 16
S_IT = 17
S_RA = 18
S_RB = 20
S_REM = 22
S_INC = 23
S_BK4 = 24
S_E0 = 25
S_T0, S_T1 = 26, 27
S_K = 28
S_K2 = 30
S_TODO = 32
S_MYINC = 33
S_768 = 34
S_ROT = 35
S_MASK = 36
BM = [(8, 10), (12, 14), (32, 100)]
SW_SBF = 36
SW_RBF = 84
S_DIST = 60
S_CENT = 64
S_MB = 68

DA = 6
V_REC = [4 * i + 4 for i in range(DA)]
V_E0, V_E1, V_W0, V_W1, V_BASE, V_L12 = [r + 3 for r in V_REC]
V_L6, V_L6P, V_TWO = 1, 2, 3
V_T = 28
V_JUNK = 42
V_S = [44 + 12 * q for q in range(4)]
V_CH = 3
V_PK = [92 + 4 * q for q in range(4)]
V_MR = [108 + 2 * q for q in range(4)]
V_SI = 1
V_SL = [2, 3]
V_TB2 = 4
V_KC = [16, 18]
V_HIM = 19
V_CN = 20
V_L4 = 21
V_BLK = [24, 32, 40]
V_RW = [48 + 2 * j for j in range(NITB)]
V_RA = [102 + j for j in range(NITB - 1)] + [23]
_st.update(n=0, v=43)
t = V_T

w(f"""    s_cmp_ge_u32 s2, 256
    s_cbranch_scc1 p2_done
    s_load_dwordx2 s[{S_MI}:{S_MI + 1}], s[0:1], 0
    v_readfirstlane_b32 s{S_WAVE}, v0
    s_lshr_b32 s{S_WAVE}, s{S_WAVE}, 6
    s_and_b32 s{S_T1}, s2, 7
    s_lshl_b32 s{S_T1}, s{S_T1}, 5
    s_lshr_b32 s{S_T0}, s2, 3
    s_add_u32 s{S_T1}, s{S_T1}, s{S_T0}        ; bucket
    s_mul_i32 s{S_E0}, s{S_T1}, {EO}
    s_lshl_b32 s{S_BK4}, s{S_T1}, 2
    s_mul_i32 s{S_ROT}, s{S_T0}, {0 if "norot" in sys.argv else 13}
    s_lshr_b32 s{S_ROT}, s{S_ROT}, 1
    s_mov_b32 s{S_SKIP}, 0
    s_mov_b64 s[{S_RA}:{S_RA + 1}], -1
    s_mov_b64 s[{S_RB}:{S_RB + 1}], -1
    s_movk_i32 s{S_768}, {BSTR}
    s_cmp_lt_u32 s{S_WAVE}, {NPW}
    s_cbranch_scc1 a_batch""")
for i in range(48):
    w(f"    v_mov_b32 v{V_S[0] + i}, 0")
w(f"""a_batch:
    s_load_dwordx2 s[{S_REC}:{S_REC + 1}], s[0:1], 104
    s_setprio 3
    v_lshlrev_b32 v{t + 2}, 2, v0
    v_mov_b32 v{t + 3}, 0
    v_cmp_gt_u32 vcc, 256, v0
    s_mov_b64 exec, vcc
    ds_write_b32 v{t + 2}, v{t + 3} offset:{A_CNT}
    s_mov_b64 exec, -1
    v_and_b32 v{t + 4}, 31, v0
    v_lshrrev_b32 v{t + 5}, 5, v0
    v_lshl_add_u32 v{t + 5}, v{t + 5}, 4, v{t + 4}      ; tile
    v_lshlrev_b32 v{t}, 10, v{t + 5}
    v_cmp_gt_u32 vcc, 16, v{t + 4}
    v_mul_u32_u24 v{V_L6}, 6, v{t + 4}
    v_add_u32 v{V_L6P}, 3, v{V_L6}
    v_cndmask_b32 v{t}, 2.0, v{t}, vcc
    v_lshlrev_b32 v{V_L12}, 1, v{V_L6}
    v_and_b32 v{V_BASE}, 32, v0
    v_lshlrev_b32 v{V_BASE}, 2, v{V_BASE}
    v_mov_b32 v{V_TWO}, 2
    s_mov_b32 s{S_T0}, {TS}
    v_mul_lo_u32 v{V_E0}, v{t + 5}, s{S_T0}
    s_waitcnt lgkmcnt(0)
    s_add_u32 s{S_OFFS}, s{S_REC}, {OFFS_BASE}
    s_addc_u32 s{S_OFFS + 1}, s{S_REC + 1}, 0
    s_and_b32 s{S_OFFS + 1}, s{S_OFFS + 1}, 0xffff
    s_mov_b32 s{S_OFFS + 2}, {NT * 1024}
    s_mov_b32 s{S_OFFS + 3}, 0x00020000
    buffer_load_dword v{t + 1}, v{t}, s[{S_OFFS}:{S_OFFS + 3}], s{S_BK4} offen
    s_and_b32 s{S_REC + 1}, s{S_REC + 1}, 0xffff
    s_mov_b32 s{S_REC + 2}, {NT * TS}
    s_mov_b32 s{S_REC + 3}, 0x00020000
    s_and_b32 s{S_MI + 1}, s{S_MI + 1}, 0xffff
    s_or_b32 s{S_MI + 1}, s{S_MI + 1}, 0x80000
    s_mov_b32 s{S_MI + 2}, {E}
    s_mov_b32 s{S_MI + 3}, 0x00020000
    s_mov_b32 s{S_IT}, 0
    s_mov_b32 s{S_REM}, -1
    s_mov_b32 s{S_MYINC}, 0""")
stamp()
w(f"""    s_barrier
    s_waitcnt vmcnt(0)
    v_and_b32 v{t + 2}, 0xffff, v{t + 1}               ; s3
    v_lshrrev_b32 v{t + 3}, 16, v{t + 1}               ; e3
    v_and_b32 v{t + 4}, 1, v{t + 1}
    v_mul_u32_u24 v{t + 4}, 3, v{t + 4}                ; relS
    v_sub_u32 v{t + 2}, v{t + 2}, v{t + 4}             ; hb
    v_sub_u32 v{t + 3}, v{t + 3}, v{t + 2}             ; relE
    v_lshl_add_u32 v{V_E0}, v{t + 2}, 1, v{V_E0}
    v_lshl_or_b32 v{V_E1}, v{t + 4}, 16, v{t + 3}
    v_cmp_lt_u32 vcc, v{t + 4}, v{t + 3}
    s_or_b32 s{S_TODO}, vcc_lo, vcc_hi""")
stamp()


def pop(tag, fetch):
    w(f"""    s_cmp_lg_u32 s{S_TODO}, 0
    s_cbranch_scc1 {tag}_have
    s_cmp_lg_u32 s{S_REM}, -1
    s_cbranch_scc1 {tag}_none
    v_and_b32 v{t}, 0xffff, v{V_E1}
    v_subrev_u32 v{t}, 192, v{t}
    v_max_i32 v{V_E1}, 0, v{t}
    v_add_u32 v{V_E0}, 384, v{V_E0}
    v_cmp_lt_u32 vcc, 0, v{V_E1}
    s_or_b32 s{S_TODO}, vcc_lo, vcc_hi
    s_cbranch_scc1 {tag}_have
    s_mov_b32 s{S_REM}, {DA}
    s_branch {tag}_none
{tag}_have:
    s_ff1_i32_b32 s{S_T0}, s{S_TODO}
    s_bitset0_b32 s{S_TODO}, s{S_T0}""")
    if fetch:
        w(f"""    s_lshl_b32 s{S_T0}, s{S_T0}, 2
    v_add_u32 v{t}, s{S_T0}, v{V_BASE}
    ds_bpermute_b32 v{V_W0}, v{t}, v{V_E0}
    ds_bpermute_b32 v{V_W1}, v{t}, v{V_E1}""")
    w(f"{tag}_none:")


def issue_rec(u, tag):
    R = V_REC[u]
    mA = S_MASK + u * 4
    mB = mA + 2
    sd0 = "src0_sel:DWORD src1_sel:WORD_0"
    sd1 = "src0_sel:DWORD src1_sel:WORD_1"
    w(f"""    s_waitcnt lgkmcnt(0)
    v_add_u32 v{t + 1}, v{V_W0}, v{V_L12}
    v_cmp_lt_u32_sdwa vcc, v{V_L6}, v{V_W1} {sd0}
    v_cmp_ge_u32_sdwa s[{mA}:{mA + 1}], v{V_L6}, v{V_W1} {sd1}
    v_cmp_lt_u32_sdwa s[{mB}:{mB + 1}], v{V_L6P}, v{V_W1} {sd0}
    s_or_b64 exec, vcc, 1
    buffer_load_dwordx3 v[{R}:{R + 2}], v{t + 1}, s[{S_REC}:{S_REC + 3}], 0 offen
    s_mov_b64 exec, -1
    s_and_b64 s[{mA}:{mA + 1}], s[{mA}:{mA + 1}], vcc""")
    pop(tag, True)


def place(u):
    if "xnoplace" in sys.argv:
        w(f"    s_add_u32 s{S_IT}, s{S_IT}, 1")
        return
    R = V_REC[u]
    mA = S_MASK + u * 4
    mB = mA + 2
    bA, bB, rA, rB, xA, xB = t + 4, t + 5, t + 6, t + 7, t + 8, t + 9
    sb3 = "dst_sel:DWORD dst_unused:UNUSED_PAD src0_sel:DWORD src1_sel:BYTE_3"
    w(f"""    v_lshlrev_b32_sdwa v{xA}, 2, v{R} {sb3}
    v_lshlrev_b32_sdwa v{xB}, 2, v{R + 2} {sb3}
    s_mov_b64 exec, s[{mA}:{mA + 1}]
    ds_add_rtn_u32 v{rA}, v{xA}, v{V_TWO} offset:{A_CNT}
    s_mov_b64 exec, s[{mB}:{mB + 1}]
    ds_add_rtn_u32 v{rB}, v{xB}, v{V_TWO} offset:{A_CNT}
    s_mov_b64 exec, -1
    v_mul_u32_u24_sdwa v{bA}, s{S_768}, v{R} {sb3}
    v_mul_u32_u24_sdwa v{bB}, s{S_768}, v{R + 2} {sb3}
    s_waitcnt lgkmcnt(0)
    v_cmp_lt_u32 vcc, 0xff, v{rA}
    s_and_b64 s[{S_K}:{S_K + 1}], vcc, s[{mA}:{mA + 1}]
    v_cmp_lt_u32 vcc, 0xff, v{rB}
    s_and_b64 s[{S_K2}:{S_K2 + 1}], vcc, s[{mB}:{mB + 1}]
    s_or_b64 vcc, s[{S_K}:{S_K + 1}], s[{S_K2}:{S_K2 + 1}]
    s_cbranch_scc0 a_noovf{u}
    v_mov_b32 v{xA}, 0
    s_mov_b64 exec, s[{S_K}:{S_K + 1}]
    ds_add_rtn_u32 v{rA}, v{xA}, v{V_TWO} offset:{A_OVF}
    s_mov_b64 exec, s[{S_K2}:{S_K2 + 1}]
    ds_add_rtn_u32 v{rB}, v{xA}, v{V_TWO} offset:{A_OVF}
    s_waitcnt lgkmcnt(0)
    v_lshrrev_b32 v{bB}, 8, v{rB}
    v_cmp_le_u32 vcc, {NOVB}, v{bB}
    v_add_u32 v{bB}, {NBIN}, v{bB}
    v_mul_u32_u24 v{bB}, s{S_768}, v{bB}
    v_and_b32 v{rB}, 0xff, v{rB}
    s_mov_b64 s[{S_K2}:{S_K2 + 1}], vcc
    s_mov_b64 exec, s[{S_K}:{S_K + 1}]
    v_lshrrev_b32 v{bA}, 8, v{rA}
    v_cmp_le_u32 vcc, {NOVB}, v{bA}
    v_add_u32 v{bA}, {NBIN}, v{bA}
    v_mul_u32_u24 v{bA}, s{S_768}, v{bA}
    v_and_b32 v{rA}, 0xff, v{rA}
    s_mov_b64 s[{S_K}:{S_K + 1}], vcc
    s_mov_b64 exec, -1
    s_or_b64 vcc, s[{S_K}:{S_K + 1}], s[{S_K2}:{S_K2 + 1}]
    s_cbranch_scc0 a_noovf{u}
    s_mov_b64 s[{S_RA}:{S_RA + 1}], s[{S_K}:{S_K + 1}]
    s_mov_b64 s[{S_RB}:{S_RB + 1}], s[{S_K2}:{S_K2 + 1}]
    s_andn2_b64 s[{mA}:{mA + 1}], s[{mA}:{mA + 1}], s[{S_K}:{S_K + 1}]
    s_andn2_b64 s[{mB}:{mB + 1}], s[{mB}:{mB + 1}], s[{S_K2}:{S_K2 + 1}]
    s_mov_b32 s{S_MYINC}, 1
a_noovf{u}:
    v_lshl_add_u32 v{xA}, v{rA}, 1, v{bA}
    v_lshl_add_u32 v{xB}, v{rB}, 1, v{bB}
    v_add_u32 v{rA}, v{rA}, v{bA}
    v_add_u32 v{rB}, v{rB}, v{bB}
    s_mov_b64 exec, s[{mA}:{mA + 1}]
    ds_write_b32 v{xA}, v{R} offset:{A_STG}
    ds_write_b16 v{rA}, v{R + 1} offset:{A_STG + 512}
    s_mov_b64 exec, s[{mB}:{mB + 1}]
    ds_write_b32 v{xB}, v{R + 2} offset:{A_STG}
    ds_write_b16_d16_hi v{rB}, v{R + 1} offset:{A_STG + 512}
    s_mov_b64 exec, -1
    s_cmp_lg_u32 s{S_MYINC}, 0
    s_cbranch_scc1 a_stop
    s_add_u32 s{S_IT}, s{S_IT}, 1""")


w(f"""    s_mov_b32 s{S_T1}, s{S_SKIP}
a_replay:
    s_cmp_eq_u32 s{S_T1}, 0
    s_cbranch_scc1 a_replay_done""")
pop("a_rp", False)
w(f"""    s_sub_u32 s{S_T1}, s{S_T1}, 1
    s_branch a_replay
a_replay_done:""")
for i in range(DA * 2):
    w(f"    s_mov_b64 s[{S_MASK + 2 * i}:{S_MASK + 2 * i + 1}], 0")
pop("a_p0", True)
for u in range(DA - 1):
    w(f"""    s_cmp_lg_u32 s{S_REM}, -1
    s_cbranch_scc1 a_pro_done""")
    issue_rec(u, f"a_pi{u}")
    if u == 0:
        w(f"""    s_and_b64 s[{S_MASK}:{S_MASK + 1}], s[{S_MASK}:{S_MASK + 1}], s[{S_RA}:{S_RA + 1}]
    s_and_b64 s[{S_MASK + 2}:{S_MASK + 3}], s[{S_MASK + 2}:{S_MASK + 3}], s[{S_RB}:{S_RB + 1}]
    s_mov_b64 s[{S_RA}:{S_RA + 1}], -1
    s_mov_b64 s[{S_RB}:{S_RB + 1}], -1""")
w("a_pro_done:")
if "nopf" not in sys.argv:
    w(f"""    s_lshr_b32 s{S_T0}, s2, 3
    s_mul_i32 s{S_T0}, s{S_T0}, 12500
    v_lshlrev_b32 v{t + 2}, 4, v0
    v_add_u32 v{t + 2}, s{S_T0}, v{t + 2}
    v_cmp_gt_u32 vcc, 783, v0
    s_or_b64 exec, vcc, 1
    buffer_load_dword v{V_JUNK}, v{t + 2}, s[{S_MI}:{S_MI + 3}], 0 idxen
    s_mov_b64 exec, -1""")
w("a_loop:")
for u in range(DA):
    un = (u + DA - 1) % DA
    if u % 3 == 0 and "noprioA" not in sys.argv:
        w(f"""    s_cmp_lt_u32 s{S_IT}, 3
    s_cbranch_scc1 a_pr{u}
    s_setprio 2
    s_cmp_lt_u32 s{S_IT}, 6
    s_cbranch_scc1 a_pr{u}
    s_setprio 1
    s_cmp_lt_u32 s{S_IT}, 9
    s_cbranch_scc1 a_pr{u}
    s_setprio 0
a_pr{u}:""")
    w(f"""    s_cmp_lg_u32 s{S_REM}, -1
    s_cbranch_scc1 a_cd{u}""")
    issue_rec(un, f"a_li{u}")
    w(f"""    s_waitcnt vmcnt({DA - 1})
    s_branch a_go{u}
a_cd{u}:
    s_sub_u32 s{S_REM}, s{S_REM}, 1
    s_cmp_eq_u32 s{S_REM}, 0
    s_cbranch_scc1 a_end
    s_mov_b64 s[{S_MASK + un * 4}:{S_MASK + un * 4 + 1}], 0
    s_mov_b64 s[{S_MASK + un * 4 + 2}:{S_MASK + un * 4 + 3}], 0
    s_waitcnt vmcnt(0)
a_go{u}:""")
    place(u)
w(f"""    s_branch a_loop
a_stop:
    v_mov_b32 v{t}, 0
    v_mov_b32 v{t + 1}, 1
    ds_write_b32 v{t}, v{t + 1} offset:{A_INC}
a_end:
    s_add_u32 s{S_SKIP}, s{S_SKIP}, s{S_IT}
    s_load_dwordx2 s[{S_DIST}:{S_DIST + 1}], s[0:1], 24
    s_load_dwordx2 s[{S_CENT}:{S_CENT + 1}], s[0:1], 40
    s_load_dwordx2 s[{S_MB}:{S_MB + 1}], s[0:1], 0
    s_waitcnt vmcnt(0) lgkmcnt(0)
    s_load_dwordx4 s[{S_CENT}:{S_CENT + 3}], s[{S_CENT}:{S_CENT + 1}], 0
    s_and_b32 s{S_DIST + 1}, s{S_DIST + 1}, 0xffff
    s_mov_b32 s{S_DIST + 2}, {E * 2}
    s_mov_b32 s{S_DIST + 3}, 0x00020000
    s_and_b32 s{S_MB + 1}, s{S_MB + 1}, 0xffff
    s_mov_b32 s{S_MB + 2}, {E * 8}
    s_mov_b32 s{S_MB + 3}, 0x00020000""")
stamp()
w(f"""    s_barrier
    v_mov_b32 v{t}, 0
    ds_read_b64 v[{t + 2}:{t + 3}], v{t} offset:{A_OVF}""")
t2 = V_TB2
if DIAG:
    w("    v_mov_b32 v22, v43")
    _st["v"] = 22
w(f"""    s_cmp_ge_u32 s{S_WAVE}, {NPW}
    s_cbranch_scc1 b_consumer""")
NB2 = NITB * NPW
w(f"""    v_and_b32 v{t2}, 63, v0                       ; lane
    s_add_u32 s{S_T0}, s{S_WAVE}, s{S_ROT}
    v_mul_u32_u24 v{t2 + 1}, {NPW}, v{t2}
    v_add_u32 v{t2 + 1}, s{S_T0}, v{t2 + 1}
    v_subrev_u32 v{t2 + 2}, {NB2}, v{t2 + 1}
    v_min_u32 v{t2 + 1}, v{t2 + 1}, v{t2 + 2}
    v_min_u32 v{t2 + 2}, {NBIN - 1}, v{t2 + 1}
    v_lshlrev_b32 v{t2 + 2}, 2, v{t2 + 2}
    ds_read_b32 v{V_CN}, v{t2 + 2} offset:{A_CNT}
    v_lshlrev_b32 v{t2 + 3}, 3, v{t2}
    v_lshlrev_b32 v{V_L4}, 2, v{t2}
    s_mul_i32 s{S_T0}, s{S_T0}, {BSTR}""")
for j in range(NITB):
    w(f"""    v_add_u32 v{t2 + 6 + 2 * (j % 2)}, s{S_T0}, v{t2 + 3}
    v_add_u32 v{t2 + 7 + 2 * (j % 2)}, s{S_T0}, v{V_L4}
    s_add_u32 s{S_T0}, s{S_T0}, {NPW * BSTR}
    s_sub_u32 s{S_T1}, s{S_T0}, {NB2 * BSTR}
    s_min_u32 s{S_T0}, s{S_T0}, s{S_T1}
    ds_read_b64 v[{V_RW[j]}:{V_RW[j] + 1}], v{t2 + 6 + 2 * (j % 2)} offset:{A_STG}
    ds_read_b32 v{V_RA[j]}, v{t2 + 7 + 2 * (j % 2)} offset:{A_STG + 512}""")
w(f"""    s_waitcnt lgkmcnt(0)
    v_readfirstlane_b32 s{S_INC}, v{t + 3}
    v_min_u32 v{t + 2}, {NOVB * 256}, v{t + 2}
    v_subrev_u32 v{t2 + 5}, {NBIN}, v{t2 + 1}
    v_lshlrev_b32 v{t2 + 5}, 8, v{t2 + 5}
    v_sub_u32 v{t2 + 5}, v{t + 2}, v{t2 + 5}
    v_cmp_gt_u32 vcc, {NBIN}, v{t2 + 1}
    v_max_i32 v{t2 + 5}, 0, v{t2 + 5}
    s_barrier
    v_cndmask_b32 v{V_CN}, v{t2 + 5}, v{V_CN}, vcc
    v_min_u32 v{V_CN}, 0x100, v{V_CN}""")
stamp(3)


def gather(j):
    u = j % 3
    B = V_BLK[u]
    mA, mB = BM[u]
    W = V_RW[j]
    w(f"""    v_readlane_b32 s{S_T0}, v{V_CN}, {j}
    v_lshrrev_b32 v{t2}, 13, v{W}
    v_lshrrev_b32 v{t2 + 1}, 13, v{W + 1}
    s_sub_u32 s{S_T1}, s{S_T0}, 2
    v_cmp_gt_u32 s[{mA}:{mA + 1}], s{S_T0}, v{V_L4}
    v_cmp_gt_i32 s[{mB}:{mB + 1}], s{S_T1}, v{V_L4}
    s_or_b64 exec, s[{mA}:{mA + 1}], 1
    buffer_load_dwordx2 v[{B}:{B + 1}], v{t2}, s[{S_MI}:{S_MI + 3}], 0 idxen
    s_or_b64 exec, s[{mB}:{mB + 1}], 1
    buffer_load_dwordx2 v[{B + 4}:{B + 5}], v{t2 + 1}, s[{S_MI}:{S_MI + 3}], 0 idxen
    s_mov_b64 exec, -1""")


def build(j, vm):
    u = j % 3
    k = j % KCH
    p = (j // KCH) % 2
    B = V_BLK[u]
    mA, mB = BM[u]
    W, A = V_RW[j], V_RA[j]
    t = t2
    idx0 = (p * BUFSZ + k * NPW * 2048) // 16
    a2, c1, c2, c3 = t + 2, t + 4, t + 6, t + 8
    K0, K1 = V_KC
    lo = "op_sel:[0,0] op_sel_hi:[1,0]"
    hi = "op_sel:[0,1] op_sel_hi:[1,1]"
    w(f"""    v_and_b32 v{t + 10}, 0x1ffc, v{W}
    v_and_b32 v{t + 11}, 0x1ffc, v{W + 1}
    v_add_u32 v{t}, {idx0}, v{V_SI}
    v_add_u32 v{t + 1}, {idx0 + 64}, v{V_SI}
    s_mov_b64 exec, s[{mA}:{mA + 1}]
    ds_wrxchg_rtn_b32 v{B + 3}, v{t + 10}, v{t} offset:{HEAD[p]}
    s_mov_b64 exec, s[{mB}:{mB + 1}]
    ds_wrxchg_rtn_b32 v{B + 7}, v{t + 11}, v{t + 1} offset:{HEAD[p]}
    s_mov_b64 exec, -1
    v_lshlrev_b32 v{a2}, 16, v{A}
    v_and_b32 v{a2 + 1}, 0xffff0000, v{A}
    v_pk_mul_f32 v[{c3}:{c3 + 1}], v[{a2}:{a2 + 1}], v[{K0}:{K0 + 1}] {hi}
    v_pk_mul_f32 v[{c1}:{c1 + 1}], v[{a2}:{a2 + 1}], v[{K0}:{K0 + 1}] {lo}
    v_cvt_pk_bf16_f32 v{c3 + 1}, v{c3}, v{c3 + 1}
    v_fract_f32 v{c1}, v{c1}
    v_fract_f32 v{c1 + 1}, v{c1 + 1}
    v_lshlrev_b32 v{c3}, 16, v{c3 + 1}
    v_and_b32 v{c3 + 1}, 0xffff0000, v{c3 + 1}
    v_cos_f32 v{c1}, v{c1}
    v_cos_f32 v{c1 + 1}, v{c1 + 1}
    v_pk_mul_f32 v[{c3}:{c3 + 1}], v[{c3}:{c3 + 1}], v[{K0}:{K0 + 1}] {lo}
    v_pk_add_f32 v[{c2}:{c2 + 1}], v[{c1}:{c1 + 1}], v[{c1}:{c1 + 1}]
    v_fract_f32 v{c3}, v{c3}
    v_fract_f32 v{c3 + 1}, v{c3 + 1}
    v_pk_fma_f32 v[{c2}:{c2 + 1}], v[{c2}:{c2 + 1}], v[{c1}:{c1 + 1}], v[{K1}:{K1 + 1}] op_sel:[0,0,0] op_sel_hi:[1,1,0]
    v_cos_f32 v{c3}, v{c3}
    v_cos_f32 v{c3 + 1}, v{c3 + 1}
    v_cvt_pk_bf16_f32 v{B + 2}, v{c1}, v{c2}
    v_cvt_pk_bf16_f32 v{B + 6}, v{c1 + 1}, v{c2 + 1}
    v_cvt_pk_bf16_f32 v{t}, v{c3}, v{c3 + 1}
    s_waitcnt lgkmcnt(0)
    v_lshl_or_b32 v{B + 3}, v{t}, 16, v{B + 3}
    v_and_or_b32 v{B + 7}, v{t}, v{V_HIM}, v{B + 7}
    s_waitcnt vmcnt({vm})
    ds_write_b128 v{V_SL[p]}, v[{B}:{B + 3}] offset:{k * NPW * 2048}
    ds_write_b128 v{V_SL[p]}, v[{B + 4}:{B + 7}] offset:{k * NPW * 2048 + 1024}""")


w("    s_nop 0")
gather(0)
gather(1)
w(f"""    v_mov_b32 v{V_KC[0]}, 0.15915494
    v_mov_b32 v{V_KC[0] + 1}, 0x40400000
    v_mov_b32 v{V_KC[1]}, -1.0
    v_mov_b32 v{V_HIM}, 0xffff0000
    s_lshl_b32 s{S_T0}, s{S_WAVE}, 11
    s_add_u32 s{S_T0}, s{S_T0}, {BUF[0]}
    v_lshlrev_b32 v{V_SL[0]}, 2, v{V_L4}
    v_add_u32 v{V_SL[0]}, s{S_T0}, v{V_SL[0]}
    v_add_u32 v{V_SL[1]}, {BUFSZ}, v{V_SL[0]}
    v_lshrrev_b32 v{V_SI}, 4, v{V_SL[0]}
    s_barrier""")
stamp(4)
for j in range(NITB):
    w(f"    s_setprio {[2, 2, 1, 0][j % KCH]}")
    if j + 2 < NITB:
        gather(j + 2)
        vm = 4
    else:
        vm = 2 * (NITB - 1 - j)
    build(j, vm)
    if j % KCH == KCH - 1 or j == NITB - 1:
        w("    s_waitcnt lgkmcnt(0)")
        stamp(10 + 2 * (j // KCH))
        w("    s_barrier")
        stamp(11 + 2 * (j // KCH))
w(f"""    s_cmp_lg_u32 s{S_INC}, 0
    s_cbranch_scc0 b_pdone
    s_barrier
    s_branch a_batch
b_pdone:""")
stamp(7)
stamp_flush(1, S_WAVE, 36)
w("    s_endpgm")

c2 = 4
w(f"""b_consumer:
    s_setprio 3
    v_subrev_u32 v{V_CH}, {NPW * 64}, v0
    v_add_u32 v{c2}, s{S_E0}, v{V_CH}
    v_lshlrev_b32 v{V_CH}, 2, v{V_CH}
    s_waitcnt lgkmcnt(0)
    v_readfirstlane_b32 s{S_INC}, v{t + 3}
    v_lshlrev_b32 v{c2 + 1}, 1, v{c2}
    v_lshlrev_b32 v{c2 + 2}, 3, v{c2}""")
for q in range(4):
    w(f"    buffer_load_ushort v{c2 + 4 + q}, v{c2 + 1}, s[{S_DIST}:{S_DIST + 3}], 0 offen offset:{q * 1024}")
for q in range(4):
    w(f"""    s_movk_i32 s{S_T0}, {q * 4096}
    buffer_load_dwordx2 v[{V_MR[q]}:{V_MR[q] + 1}], v{c2 + 2}, s[{S_MB}:{S_MB + 3}], s{S_T0} offen""")
w(f"""    v_mov_b32 v{c2 + 8}, {NIL}
    v_mov_b32 v{c2 + 9}, {NIL}
    v_mov_b32 v{c2 + 10}, {NIL}
    v_mov_b32 v{c2 + 11}, {NIL}
    v_mov_b32 v{c2 + 12}, 0
    v_mov_b32 v{c2 + 13}, 0
    v_mov_b32 v{c2 + 14}, 0
    v_mov_b32 v{c2 + 15}, {NIL}
    v_lshlrev_b32 v{c2 + 3}, 2, v{V_CH}
    v_cmp_gt_u32 vcc, 4608, v{c2 + 3}
    s_barrier
    ds_write_b128 v{c2 + 3}, v[{c2 + 8}:{c2 + 11}]
    s_mov_b64 exec, vcc
    ds_write_b128 v{c2 + 3}, v[{c2 + 8}:{c2 + 11}] offset:8192
    s_mov_b64 exec, -1
    ds_write_b128 v{c2 + 12}, v[{c2 + 12}:{c2 + 15}] offset:{B_DUMMY}
    s_waitcnt lgkmcnt(0)
    s_barrier
    s_setprio 0
    s_waitcnt vmcnt(0)""")
d0, tmp = c2 + 4, c2 + 8
for i in range(4):
    w(f"    v_lshlrev_b32 v{d0 + i}, 16, v{d0 + i}")
for p in range(4):
    w(f"""    s_lshl_b32 s{S_T0}, s{S_CENT + p}, 16
    s_and_b32 s{S_T1}, s{S_CENT + p}, 0xffff0000""")
    for e in range(4):
        a, b, tt = tmp + 2 * e, tmp + 1 + 2 * e, V_PK[e] + p
        d = d0 + e
        w(f"""    v_subrev_f32 v{a}, s{S_T0}, v{d}
    v_subrev_f32 v{b}, s{S_T1}, v{d}
    v_cvt_pk_bf16_f32 v{tt}, v{a}, v{b}
    v_lshlrev_b32 v{a}, 16, v{tt}
    v_and_b32 v{b}, 0xffff0000, v{tt}
    v_mul_f32 v{a}, v{a}, v{a}
    v_mul_f32 v{b}, v{b}, v{b}
    v_cvt_pk_bf16_f32 v{tt}, v{a}, v{b}
    v_lshlrev_b32 v{a}, 16, v{tt}
    v_and_b32 v{b}, 0xffff0000, v{tt}
    v_mul_f32 v{a}, 0xc1200000, v{a}
    v_mul_f32 v{b}, 0xc1200000, v{b}
    v_cvt_pk_bf16_f32 v{tt}, v{a}, v{b}
    v_lshlrev_b32 v{a}, 16, v{tt}
    v_and_b32 v{b}, 0xffff0000, v{tt}
    v_mul_f32 v{a}, 0x3fb8aa3b, v{a}
    v_mul_f32 v{b}, 0x3fb8aa3b, v{b}
    v_exp_f32 v{a}, v{a}
    v_exp_f32 v{b}, v{b}
    s_nop 0
    v_cvt_pk_bf16_f32 v{tt}, v{a}, v{b}""")
SWD2, SWU2 = 8, 4
w(f"""    s_load_dwordx8 s[8:15], s[0:1], 56
    s_waitcnt lgkmcnt(0)
    s_load_dwordx16 s[{SW_RBF}:{SW_RBF + 15}], s[8:9], 0
    s_load_dwordx16 s[{SW_SBF}:{SW_SBF + 15}], s[10:11], 0
    s_load_dwordx16 s[{SW_SBF + 16}:{SW_SBF + 31}], s[10:11], 64
    s_load_dwordx16 s[{SW_SBF + 32}:{SW_SBF + 47}], s[10:11], 128
    s_mov_b64 s[100:101], s[14:15]
    s_load_dwordx8 s[8:15], s[12:13], 0
    s_waitcnt lgkmcnt(0)
    s_setprio 3""")


def walk(p, n, tag):
    r = [c2 + 4 * i for i in range(4)]
    M0, C1 = 24, 26
    ad, nil = 1, 2
    for i in range(n):
        w(f"    ds_read_b32 v{r[i]}, v{V_CH} offset:{HEAD[p] + i * 2048}")
    w(f"    v_mov_b32 v{nil}, {NIL}")
    for i in range(n):
        w(f"""    s_waitcnt lgkmcnt({n - 1 - i + 2 * i})
    v_lshlrev_b32 v{ad}, 4, v{r[i]}
    ds_write_b32 v{V_CH}, v{nil} offset:{HEAD[p] + i * 2048}
    ds_read_b128 v[{r[i]}:{r[i] + 3}], v{ad}""")
    w(f"""    v_mov_b32 v{nil}, {B_DUMMY}
{tag}:""")
    for i in range(n):
        R, Sx = r[i], V_S[i]
        X = 28 + 4 * (i % 2)
        w(f"""    s_waitcnt lgkmcnt({n - 1})
    v_lshlrev_b32_sdwa v{ad}, 4, v{R + 3} dst_sel:DWORD dst_unused:UNUSED_PAD src0_sel:DWORD src1_sel:WORD_0
    v_lshlrev_b32 v{M0}, 16, v{R}
    v_lshlrev_b32 v{M0 + 1}, 16, v{R + 1}
    v_lshlrev_b32 v{C1}, 16, v{R + 2}
    v_and_b32 v{X}, 0xffff0000, v{R}
    v_and_b32 v{X + 1}, 0xffff0000, v{R + 1}
    v_and_b32 v{X + 2}, 0xffff0000, v{R + 2}
    v_and_b32 v{X + 3}, 0xffff0000, v{R + 3}
    ds_read_b128 v[{R}:{R + 3}], v{ad}""")
        if i == 0:
            w(f"    v_cmp_ne_u32 vcc, v{ad}, v{nil}")
        else:
            w(f"    v_cmp_ne_u32 s[{S_K}:{S_K + 1}], v{ad}, v{nil}")
        for l in range(3):
            cp = C1 if l == 0 else X + 2
            sel = "op_sel:[0,1,0] op_sel_hi:[1,1,1]" if l == 2 else "op_sel:[0,0,0] op_sel_hi:[1,0,1]"
            for h, mm in ((0, M0), (1, X)):
                s_ = Sx + 4 * l + 2 * h
                w(f"    v_pk_fma_f32 v[{s_}:{s_ + 1}], v[{mm}:{mm + 1}], v[{cp}:{cp + 1}], v[{s_}:{s_ + 1}] {sel}")
        if i > 0:
            w(f"    s_or_b64 vcc, vcc, s[{S_K}:{S_K + 1}]")
    w(f"""    s_cbranch_vccnz {tag}
    s_waitcnt lgkmcnt(0)""")


w(f"""    s_mov_b32 s{S_REM}, {NCHK}
b_cloop:""")
for p in range(2):
    w(f"""    s_barrier
    s_cmp_eq_u32 s{S_WAVE}, {NPW}
    s_cbranch_scc1 b_w4{p}""")
    walk(p, 3, f"b_wa{p}")
    w(f"""    s_branch b_wdone{p}
b_w4{p}:""")
    walk(p, 4, f"b_wb{p}")
    w(f"b_wdone{p}:")
    stamp(8 + p)
    w(f"""    s_sub_u32 s{S_REM}, s{S_REM}, 1
    s_cmp_eq_u32 s{S_REM}, 0
    s_cbranch_scc1 b_cend""")
w(f"""    s_branch b_cloop
b_cend:
    s_cmp_lg_u32 s{S_INC}, 0
    s_cbranch_scc0 b_final
    s_barrier
    s_branch a_batch
b_final:
    s_load_dwordx8 s[16:23], s[100:101], 0            ; w_up
    s_load_dwordx2 s[4:5], s[0:1], 88                 ; out
    s_lshl_b32 s{S_E0}, s{S_E0}, 3
    v_lshlrev_b32 v{V_CH}, 1, v{V_CH}                 ; c*8""")
stamp(6)
SWD2, SWU2, S_OUT = 8, 16, 4


def fin_group(edges, first):
    R = [dict(AG=4 + 12 * i, U=8 + 12 * i, G=12 + 12 * i) for i in range(len(edges))]
    if DIAG:
        R = [dict(AG=b, U=b + 4, G=b + 8) for b in (4, 24, 116)][:len(edges)]
    for l in range(3):
        for p in range(4):
            r0 = (2 * p) * 3 + l
            r1 = (2 * p + 1) * 3 + l
            for dp in range(2):
                sa, sb = SW_SBF + r0 * 2 + dp, SW_SBF + r1 * 2 + dp
                w(f"""    s_pack_ll_b32_b16 s{S_T0}, s{sa}, s{sb}
    s_pack_hh_b32_b16 s{S_T1}, s{sa}, s{sb}""")
                for i, q in enumerate(edges):
                    for h, st_ in ((0, S_T0), (1, S_T1)):
                        g = R[i]['G'] + dp * 2 + h
                        c = "0" if p == 0 else f"v{g}"
                        w(f"    v_dot2_f32_bf16 v{g}, v{V_PK[q] + p}, s{st_}, {c}")
        for k in range(4):
            for dp in range(2):
                sg = SWD2 + k * 2 + dp
                w(f"""    s_lshl_b32 s{S_T0}, s{sg}, 16
    s_and_b32 s{S_T1}, s{sg}, 0xffff0000""")
                for i, q in enumerate(edges):
                    for h, st_ in ((0, S_T0), (1, S_T1)):
                        u_ = R[i]['U'] + dp * 2 + h
                        op = "v_mul_f32" if k == 0 else "v_fmac_f32"
                        w(f"    {op} v{u_}, s{st_}, v{V_S[q] + 4 * l + [0, 2, 1, 3][k]}")
        for i, q in enumerate(edges):
            for j in range(4):
                op = "v_mul_f32" if l == 0 else "v_fmac_f32"
                w(f"    {op} v{R[i]['AG'] + j}, v{R[i]['G'] + j}, v{R[i]['U'] + j}")
        w("    s_nop 2")
    for p in range(4):
        for dp in range(2):
            sa, sb = SW_RBF + (2 * p) * 2 + dp, SW_RBF + (2 * p + 1) * 2 + dp
            w(f"""    s_pack_ll_b32_b16 s{S_T0}, s{sa}, s{sb}
    s_pack_hh_b32_b16 s{S_T1}, s{sa}, s{sb}""")
            for i, q in enumerate(edges):
                for h, st_ in ((0, S_T0), (1, S_T1)):
                    g = R[i]['G'] + dp * 2 + h
                    c = "0" if p == 0 else f"v{g}"
                    w(f"    v_dot2_f32_bf16 v{g}, v{V_PK[q] + p}, s{st_}, {c}")
    if first:
        w(f"""    s_waitcnt lgkmcnt(0)
    s_and_b32 s{S_OUT + 1}, s{S_OUT + 1}, 0xffff
    s_mov_b32 s{S_OUT + 2}, {E * 8}
    s_mov_b32 s{S_OUT + 3}, 0x00020000""")
    for k in range(4):
        for dp in range(2):
            sg = SWU2 + k * 2 + dp
            w(f"""    s_lshl_b32 s{S_T0}, s{sg}, 16
    s_and_b32 s{S_T1}, s{sg}, 0xffff0000""")
            for i, q in enumerate(edges):
                for h, st_ in ((0, S_T0), (1, S_T1)):
                    u_ = R[i]['U'] + dp * 2 + h
                    op = "v_mul_f32" if k == 0 else "v_fmac_f32"
                    w(f"    {op} v{u_}, s{st_}, v{R[i]['AG'] + k}")
    for i, q in enumerate(edges):
        for dp in range(2):
            u0 = R[i]['U'] + 2 * dp
            r0 = R[i]['G'] + 2 * dp
            mr = V_MR[q] + dp
            a, b = R[i]['AG'], R[i]['AG'] + 1
            w(f"""    v_cvt_pk_bf16_f32 v{u0 + 1}, v{u0}, v{u0 + 1}
    v_cvt_pk_bf16_f32 v{r0 + 1}, v{r0}, v{r0 + 1}
    v_lshlrev_b32 v{u0}, 16, v{u0 + 1}
    v_and_b32 v{u0 + 1}, 0xffff0000, v{u0 + 1}
    v_lshlrev_b32 v{r0}, 16, v{r0 + 1}
    v_and_b32 v{r0 + 1}, 0xffff0000, v{r0 + 1}
    v_mul_f32 v{u0}, v{u0}, v{r0}
    v_mul_f32 v{u0 + 1}, v{u0 + 1}, v{r0 + 1}
    v_cvt_pk_bf16_f32 v{u0 + 1}, v{u0}, v{u0 + 1}
    v_lshlrev_b32 v{u0}, 16, v{u0 + 1}
    v_and_b32 v{u0 + 1}, 0xffff0000, v{u0 + 1}
    v_lshlrev_b32 v{a}, 16, v{mr}
    v_and_b32 v{b}, 0xffff0000, v{mr}
    v_add_f32 v{u0}, v{u0}, v{a}
    v_add_f32 v{u0 + 1}, v{u0 + 1}, v{b}
    v_cvt_pk_bf16_f32 v{mr}, v{u0}, v{u0 + 1}""")
        w(f"""    s_add_u32 s{S_T0}, s{S_E0}, {q * 4096}
    buffer_store_dwordx2 v[{V_MR[q]}:{V_MR[q] + 1}], v{V_CH}, s[{S_OUT}:{S_OUT + 3}], s{S_T0} offen""")


fin_group([0, 1, 2], True)
w(f"""    s_cmp_lg_u32 s{S_WAVE}, {NPW}
    s_cbranch_scc1 b_fin_done
    v_cmp_gt_u32 vcc, {(EO - 1536) * 8}, v{V_CH}
    s_nop 1
    v_cndmask_b32 v{V_CH}, 2.0, v{V_CH}, vcc""")
fin_group([3], False)
w("b_fin_done:")
stamp(7)
stamp_flush(1, S_WAVE, 36)
w("""p2_done:
    s_endpgm""")
w(kd("acc_kernel", 128, 102))
print("\n".join(out))
```

```python
import sys
E = 400000
T = 6400000
EO = 1563
MAGIC = -(-(1 << 32) // EO)
S = 12500
NT = 512
TS = 75008
OFFS_BASE = 40 * 1024 * 1024
assert all(((i * MAGIC) >> 32) == i // EO for i in range(0, E, 1))
assert MAGIC < (1 << 24)

HDR = open('standalone__molecular_angular_gemnet__graph.s.ref').read().split('; Override launch')[0]
out = []


def w(s):
    out.append(s)


def kd(name, vgpr, sgpr):
    return f""".section .rodata,"a"
.p2align 6
.amdhsa_kernel {name}
  .amdhsa_next_free_vgpr {vgpr}
  .amdhsa_next_free_sgpr {sgpr}
  .amdhsa_accum_offset {(vgpr + 3) // 4 * 4}
  .amdhsa_group_segment_fixed_size 0
  .amdhsa_kernarg_size 112
  .amdhsa_user_sgpr_count 2
  .amdhsa_user_sgpr_kernarg_segment_ptr 1
  .amdhsa_system_sgpr_workgroup_id_x 1
  .amdhsa_float_denorm_mode_32 3
.end_amdhsa_kernel
.text
"""


def head(name):
    return f""".globl {name}
.p2align 8
.type {name},@function
{name}:"""


def srd(d, b, nbytes):
    return f"""    s_mov_b32 s{d}, s{b}
    s_and_b32 s{d + 1}, s{b + 1}, 0xffff
    s_mov_b32 s{d + 2}, {nbytes}
    s_mov_b32 s{d + 3}, 0x00020000"""


DIAG = "diag" in sys.argv
STAMP_BASE = 200 * 1024 * 1024
_st = {"n": 0, "s": 0}


def stamp(k=None):
    if not DIAG:
        return
    if k is None:
        k = _st["n"]
    _st["n"] = k + 1
    b = _st["s"]
    v = _st["v"]
    w(f"""    s_memrealtime vcc
    s_waitcnt lgkmcnt(0)
    v_writelane_b32 v{v}, vcc_lo, {k}""")


def stamp_flush(kid, swave, b, wgmask=255):
    if not DIAG:
        return
    v = _st['v']
    w(f"""    s_load_dwordx2 s[{b}:{b + 1}], s[0:1], 104
    s_waitcnt lgkmcnt(0)
    s_add_u32 s{b}, s{b}, {STAMP_BASE + kid * 4 * 1024 * 1024}
    s_addc_u32 s{b + 1}, s{b + 1}, 0
    s_and_b32 s{b + 2}, s2, {wgmask}
    s_lshl_b32 s{b + 2}, s{b + 2}, 4
    s_add_u32 s{b + 2}, s{b + 2}, s{swave}
    s_lshl_b32 s{b + 2}, s{b + 2}, 8
    v_and_b32 v1, 63, v0
    v_lshlrev_b32 v1, 2, v1
    v_add_u32 v1, s{b + 2}, v1
    global_store_dword v1, v{v}, s[{b}:{b + 1}]""")
    sys.stderr.write(f"kernel {kid}: {_st['n']} stamps\n")


P1_LDS = 1024 + TS
ROTN = 1
for a_ in sys.argv:
    if a_.startswith('rot='):
        ROTN = int(a_[4:])
NBIN = 196
NBLK = 209
BSTR = 776
NOVB = (NBLK - NBIN) if "smallovf" not in sys.argv else 1
A_CNT = 0
A_OVF = 1008
A_INC = A_OVF + 4
A_STG = 1024
assert A_STG + NBLK * BSTR <= 163840
NPW = 8
KCH = 4
HEAD = [0, 6400]
B_DUMMY = 12800
BUF0 = 13056
WREG = 9 * 2048
assert BUF0 + NPW * WREG <= 163840
PAT = [5, 4, 5, 4, 5, 4]
for a_ in sys.argv:
    if a_.startswith("pat="):
        PAT = [int(x) for x in a_[4:].split(",")]
NIL = B_DUMMY // 16
NITB = -(-NBLK // NPW)
assert sum(PAT) == NITB and all(n <= (5, 4)[c % 2] for c, n in enumerate(PAT))
NCHK = len(PAT)
JMAP = [(c, k) for c, n in enumerate(PAT) for k in range(n)]
ST_FL = " sc1" if "nosc1" not in sys.argv else ""

w(HDR.rstrip("\n"))
w(f"; @launch kernel=part_kernel grid=(512,1,1) block=(512,1,1) lds={P1_LDS}")
w(f"; @launch kernel=acc_kernel grid=(256,1,1) block=(1024,1,1) lds=163840")
w('.amdgcn_target "amdgcn-amd-amdhsa--gfx950"\n.text')

w(head("part_kernel"))
RB = 16
KB = 88
TMP = 4
_st.update(n=0, v=116)
w(f"""    s_cmp_ge_u32 s2, {NT}
    s_cbranch_scc1 p1_done
    s_load_dwordx4 s[4:7], s[0:1], 8
    s_load_dwordx2 s[28:29], s[0:1], 32    ; angle
    s_load_dwordx2 s[30:31], s[0:1], 104   ; ws
    v_lshlrev_b32 v1, 4, v0
    v_lshlrev_b32 v2, 3, v0
    v_mov_b32 v3, 3
    v_readfirstlane_b32 s3, v0
    s_lshr_b32 s3, s3, 6
    s_mul_i32 s32, s2, {S * 4}
    s_mul_i32 s33, s2, {S * 2}
    s_mov_b32 s34, {MAGIC}
    s_mov_b32 s35, {(-EO * 4) & 0xffffffff}
    v_lshlrev_b32 v4, 2, v0
    v_mov_b32 v5, 0
    v_cmp_gt_u32 vcc, 256, v0
    s_mov_b64 exec, vcc
    ds_write_b32 v4, v5
    s_mov_b64 exec, -1
    v_add_u32 v12, 1024, v1
    v_add_u32 v13, {1024 + 65536}, v1
    v_cmp_gt_u32 vcc, {TS // 16 - 9 * 512}, v0
    s_nop 1
    v_cndmask_b32 v14, 2.0, v1, vcc
    s_waitcnt lgkmcnt(0)
    s_barrier""")
stamp()
w(srd(8, 4, T * 4))
w(srd(12, 6, T * 4))
w(srd(16, 28, T * 2))
w(srd(20, 30, NT * TS))
w(f"""    s_add_u32 s30, s30, {OFFS_BASE}
    s_addc_u32 s31, s31, 0""")
w(srd(24, 30, NT * 1024))


def p1_loads(r):
    b = RB + r * 10
    w(f"""    s_add_u32 s36, s32, {r * 8192}
    s_add_u32 s37, s33, {r * 4096}
    buffer_load_dwordx4 v[{b + 4}:{b + 7}], v1, s[12:15], s36 offen
    buffer_load_dwordx4 v[{b}:{b + 3}], v1, s[8:11], s36 offen
    buffer_load_dwordx2 v[{b + 8}:{b + 9}], v2, s[16:19], s37 offen""")


NPART = S // 4 - 6 * 512
PMASK = (1 << NPART) - 1


def wave0_partial(tag, fn):
    w(f"""    s_cmp_lg_u32 s3, 0
    s_cbranch_scc1 {tag}
    s_mov_b32 exec_lo, {PMASK & 0xffffffff}
    s_mov_b32 exec_hi, {PMASK >> 32}""")
    fn()
    w(f"""    s_mov_b64 exec, -1
{tag}:""")


def p1_hist(r):
    b = RB + r * 10
    for i in range(4):
        vin = b + i
        vo = b + 4 + i
        t = TMP + i
        w(f"""    v_mul_hi_u32_u24 v{t}, s34, v{vo}
    v_lshlrev_b32 v{vo}, 2, v{vo}
    v_mad_i32_i24 v{vo}, v{t}, s35, v{vo}
    v_lshl_or_b32 v{vin}, v{vin}, 13, v{vo}
    v_lshlrev_b32 v{vo}, 2, v{t}
    ds_add_rtn_u32 v{KB + r * 4 + i}, v{vo}, v3""")


def p1_base(r):
    b = RB + r * 10
    for i in range(4):
        vo = b + 4 + i
        w(f"    ds_read_b32 v{vo}, v{vo}")


def p1_scatter(r):
    b = RB + r * 10
    for i in range(4):
        vin = b + i
        vo = b + 4 + i
        k = KB + r * 4 + i
        t = TMP + i
        va = b + 8 + i // 2
        wr = "ds_write_b16" if i % 2 == 0 else "ds_write_b16_d16_hi"
        w(f"""    v_add_lshl_u32 v{k}, v{vo}, v{k}, 1
    v_and_b32 v{t}, 2, v{k}
    v_add_u32 v{vo}, v{k}, v{t}
    v_mad_i32_i24 v{k}, v{t}, -2, v{k}
    ds_write_b32 v{vo}, v{vin}
    {wr} v{k}, v{va} offset:4""")


w("""    s_cmp_ge_u32 s2, 256
    s_cbranch_scc1 p1_lowprio
    s_setprio 3
p1_lowprio:""")
wave0_partial("p1_l3skip", lambda: p1_loads(6))
for r in range(6):
    p1_loads(r)
w("    s_setprio 2")
stamp()
for r in range(6):
    w(f"    s_waitcnt vmcnt({15 - 3 * r})")
    p1_hist(r)
    if r == 0:
        wave0_partial("p1_h3skip", lambda: p1_hist(6))
w("    s_waitcnt lgkmcnt(0)")
stamp()
w(f"""    s_barrier
    s_cmp_lg_u32 s3, 0
    s_cbranch_scc1 p1_scan_skip
    ds_read_b128 v[4:7], v1
    s_waitcnt lgkmcnt(0)
    v_add_u32 v5, v4, v5
    v_add_u32 v6, v5, v6
    v_add_u32 v7, v6, v7
    v_mov_b32 v8, v7
    s_nop 1
    v_add_u32_dpp v8, v8, v8 row_shr:1 row_mask:0xf bank_mask:0xf bound_ctrl:0
    s_nop 1
    v_add_u32_dpp v8, v8, v8 row_shr:2 row_mask:0xf bank_mask:0xf bound_ctrl:0
    s_nop 1
    v_add_u32_dpp v8, v8, v8 row_shr:4 row_mask:0xf bank_mask:0xf bound_ctrl:0
    s_nop 1
    v_add_u32_dpp v8, v8, v8 row_shr:8 row_mask:0xf bank_mask:0xf bound_ctrl:0
    s_nop 1
    v_add_u32_dpp v8, v8, v8 row_bcast:15 row_mask:0xa bank_mask:0xf
    s_nop 1
    v_add_u32_dpp v8, v8, v8 row_bcast:31 row_mask:0xc bank_mask:0xf
    v_sub_u32 v9, v8, v7
    v_add_u32 v10, v9, v4
    v_add_u32 v11, v9, v5
    v_add_u32 v15, v9, v6
    v_lshl_or_b32 v4, v10, 16, v9
    v_lshl_or_b32 v5, v11, 16, v10
    v_lshl_or_b32 v6, v15, 16, v11
    v_lshl_or_b32 v7, v8, 16, v15
    v_add_u32 v8, 512, v9
    v_add_u32 v9, 512, v10
    v_add_u32 v10, 512, v11
    v_add_u32 v11, 512, v15
    ds_write_b128 v1, v[8:11]
    s_lshl_b32 s36, s2, 10
    s_waitcnt lgkmcnt(0)
    s_barrier
    buffer_store_dwordx4 v[4:7], v1, s[24:27], s36 offen{ST_FL}
    s_nop 1
    s_branch p1_scan_done
p1_scan_skip:
    s_barrier
p1_scan_done:""")
stamp()
wave0_partial("p1_b3skip", lambda: (p1_base(6), w("    s_waitcnt lgkmcnt(0)"), p1_scatter(6)))
p1_base(0)
p1_base(1)
for r in range(6):
    if r + 2 < 6:
        p1_base(r + 2)
    w("    s_waitcnt lgkmcnt(%d)" % (8 if r == 0 else (4 if r + 2 < 6 else 0) + 8))
    p1_scatter(r)
w("    s_waitcnt lgkmcnt(0)")
stamp()
w("    s_barrier")
stamp()
stg = [16 + 4 * r for r in range(10)]
for r in range(10):
    a, off = (12, r * 8192) if r < 8 else (13, (r - 8) * 8192)
    w(f"    ds_read_b128 v[{stg[r]}:{stg[r] + 3}], v{a} offset:{off}")
w(f"    s_mul_i32 s36, s2, {TS}")
for r in range(10):
    w(f"""    s_waitcnt lgkmcnt({9 - r})
    buffer_store_dwordx4 v[{stg[r]}:{stg[r] + 3}], v{1 if r < 9 else 14}, s[20:23], s36 offen{ST_FL}
    s_add_u32 s36, s36, 8192""")
stamp()
if DIAG:
    w("    s_waitcnt vmcnt(0)")
stamp()
if DIAG:
    w("""    s_cmp_ge_u32 s2, 256
    s_cselect_b32 s38, 8, 0
    s_add_u32 s3, s3, s38""")
stamp_flush(0, 3, 40)
w("""p1_done:
    s_endpgm""")
w(kd("part_kernel", 120 if DIAG else 116, 48))

w(head("acc_kernel"))
S_WAVE = 3
S_MI = 4
S_REC = 8
S_OFFS = 12
S_OUT = 12
S_SKIP = 16
S_IT = 17
S_RA = 18
S_RB = 20
S_REM = 22
S_INC = 23
S_BK4 = 24
S_E0 = 25
S_T0, S_T1 = 26, 27
S_K = 28
S_K2 = 30
S_TODO = 32
S_MYINC = 33
S_768 = 34
S_ROT = 35
S_MASK = 36
BM = [(8, 10), (12, 14), (32, 100)]
SW_SBF = 36
SW_RBF = 84
S_DIST = 60
S_CENT = 64
S_MB = 68

DA = 6
V_REC = [4 * i + 4 for i in range(DA)]
V_E0, V_E1, V_W0, V_W1, V_BASE, V_L12 = [r + 3 for r in V_REC]
V_L6, V_L6P, V_TWO = 1, 2, 3
V_T = 28
V_JUNK = 42
V_S = [44 + 12 * q for q in range(4)]
V_CH = 3
V_PK = [92 + 4 * q for q in range(4)]
V_MR = [108 + 2 * q for q in range(4)]
V_SI = 1
V_SL = 2
V_TB2 = 4
V_KC = [16, 18]
V_HIM = 19
V_CN = 20
V_L4 = 21
V_BLK = [24, 32, 40]
V_RW = [48 + 2 * j for j in range(NITB)]
V_RA = [102 + j for j in range(NITB - 1)] + [23]
_st.update(n=0, v=43)
t = V_T

w(f"""    s_cmp_ge_u32 s2, 256
    s_cbranch_scc1 p2_done
    s_load_dwordx2 s[{S_MI}:{S_MI + 1}], s[0:1], 0
    v_readfirstlane_b32 s{S_WAVE}, v0
    s_lshr_b32 s{S_WAVE}, s{S_WAVE}, 6
    s_and_b32 s{S_T1}, s2, 7
    s_lshl_b32 s{S_T1}, s{S_T1}, 5
    s_lshr_b32 s{S_T0}, s2, 3
    s_add_u32 s{S_T1}, s{S_T1}, s{S_T0}        ; bucket
    s_mul_i32 s{S_E0}, s{S_T1}, {EO}
    s_lshl_b32 s{S_BK4}, s{S_T1}, 2
    s_and_b32 s{S_ROT}, s{S_T0}, {ROTN - 1}
    s_mul_i32 s{S_ROT}, s{S_ROT}, {416 // ROTN}
    s_lshr_b32 s{S_ROT}, s{S_ROT}, 1
    s_mov_b32 s{S_SKIP}, 0
    s_mov_b64 s[{S_RA}:{S_RA + 1}], -1
    s_mov_b64 s[{S_RB}:{S_RB + 1}], -1
    s_movk_i32 s{S_768}, {BSTR}
    s_cmp_lt_u32 s{S_WAVE}, {NPW}
    s_cbranch_scc1 a_batch""")
for i in range(48):
    w(f"    v_mov_b32 v{V_S[0] + i}, 0")
w(f"""a_batch:
    s_load_dwordx2 s[{S_REC}:{S_REC + 1}], s[0:1], 104
    s_setprio 3
    v_lshlrev_b32 v{t + 2}, 2, v0
    v_mov_b32 v{t + 3}, 0
    v_cmp_gt_u32 vcc, 256, v0
    s_mov_b64 exec, vcc
    ds_write_b32 v{t + 2}, v{t + 3} offset:{A_CNT}
    s_mov_b64 exec, -1
    v_and_b32 v{t + 4}, 31, v0
    v_lshrrev_b32 v{t + 5}, 5, v0
    v_lshl_add_u32 v{t + 5}, v{t + 5}, 4, v{t + 4}      ; tile
    v_lshlrev_b32 v{t}, 10, v{t + 5}
    v_cmp_gt_u32 vcc, 16, v{t + 4}
    v_mul_u32_u24 v{V_L6}, 6, v{t + 4}
    v_add_u32 v{V_L6P}, 3, v{V_L6}
    v_cndmask_b32 v{t}, 2.0, v{t}, vcc
    v_lshlrev_b32 v{V_L12}, 1, v{V_L6}
    v_and_b32 v{V_BASE}, 32, v0
    v_lshlrev_b32 v{V_BASE}, 2, v{V_BASE}
    v_mov_b32 v{V_TWO}, 2
    s_mov_b32 s{S_T0}, {TS}
    v_mul_lo_u32 v{V_E0}, v{t + 5}, s{S_T0}
    s_waitcnt lgkmcnt(0)
    s_add_u32 s{S_OFFS}, s{S_REC}, {OFFS_BASE}
    s_addc_u32 s{S_OFFS + 1}, s{S_REC + 1}, 0
    s_and_b32 s{S_OFFS + 1}, s{S_OFFS + 1}, 0xffff
    s_mov_b32 s{S_OFFS + 2}, {NT * 1024}
    s_mov_b32 s{S_OFFS + 3}, 0x00020000
    buffer_load_dword v{t + 1}, v{t}, s[{S_OFFS}:{S_OFFS + 3}], s{S_BK4} offen
    s_and_b32 s{S_REC + 1}, s{S_REC + 1}, 0xffff
    s_mov_b32 s{S_REC + 2}, {NT * TS}
    s_mov_b32 s{S_REC + 3}, 0x00020000
    s_and_b32 s{S_MI + 1}, s{S_MI + 1}, 0xffff
    s_or_b32 s{S_MI + 1}, s{S_MI + 1}, 0x80000
    s_mov_b32 s{S_MI + 2}, {E}
    s_mov_b32 s{S_MI + 3}, 0x00020000
    s_mov_b32 s{S_IT}, 0
    s_mov_b32 s{S_REM}, -1
    s_mov_b32 s{S_MYINC}, 0""")
stamp()
w(f"""    s_barrier
    s_waitcnt vmcnt(0)
    v_and_b32 v{t + 2}, 0xffff, v{t + 1}               ; s3
    v_lshrrev_b32 v{t + 3}, 16, v{t + 1}               ; e3
    v_and_b32 v{t + 4}, 1, v{t + 1}
    v_mul_u32_u24 v{t + 4}, 3, v{t + 4}                ; relS
    v_sub_u32 v{t + 2}, v{t + 2}, v{t + 4}             ; hb
    v_sub_u32 v{t + 3}, v{t + 3}, v{t + 2}             ; relE
    v_lshl_add_u32 v{V_E0}, v{t + 2}, 1, v{V_E0}
    v_lshl_or_b32 v{V_E1}, v{t + 4}, 16, v{t + 3}
    v_cmp_lt_u32 vcc, v{t + 4}, v{t + 3}
    s_or_b32 s{S_TODO}, vcc_lo, vcc_hi""")
stamp()


def pop(tag, fetch):
    w(f"""    s_cmp_lg_u32 s{S_TODO}, 0
    s_cbranch_scc1 {tag}_have
    s_cmp_lg_u32 s{S_REM}, -1
    s_cbranch_scc1 {tag}_none
    v_and_b32 v{t}, 0xffff, v{V_E1}
    v_subrev_u32 v{t}, 192, v{t}
    v_max_i32 v{V_E1}, 0, v{t}
    v_add_u32 v{V_E0}, 384, v{V_E0}
    v_cmp_lt_u32 vcc, 0, v{V_E1}
    s_or_b32 s{S_TODO}, vcc_lo, vcc_hi
    s_cbranch_scc1 {tag}_have
    s_mov_b32 s{S_REM}, {DA}
    s_branch {tag}_none
{tag}_have:
    s_ff1_i32_b32 s{S_T0}, s{S_TODO}
    s_bitset0_b32 s{S_TODO}, s{S_T0}""")
    if fetch:
        w(f"""    s_lshl_b32 s{S_T0}, s{S_T0}, 2
    v_add_u32 v{t}, s{S_T0}, v{V_BASE}
    ds_bpermute_b32 v{V_W0}, v{t}, v{V_E0}
    ds_bpermute_b32 v{V_W1}, v{t}, v{V_E1}""")
    w(f"{tag}_none:")


def issue_rec(u, tag):
    R = V_REC[u]
    mA = S_MASK + u * 4
    mB = mA + 2
    sd0 = "src0_sel:DWORD src1_sel:WORD_0"
    sd1 = "src0_sel:DWORD src1_sel:WORD_1"
    w(f"""    s_waitcnt lgkmcnt(0)
    v_add_u32 v{t + 1}, v{V_W0}, v{V_L12}
    v_cmp_lt_u32_sdwa vcc, v{V_L6}, v{V_W1} {sd0}
    v_cmp_ge_u32_sdwa s[{mA}:{mA + 1}], v{V_L6}, v{V_W1} {sd1}
    v_cmp_lt_u32_sdwa s[{mB}:{mB + 1}], v{V_L6P}, v{V_W1} {sd0}
    s_or_b64 exec, vcc, 1
    buffer_load_dwordx3 v[{R}:{R + 2}], v{t + 1}, s[{S_REC}:{S_REC + 3}], 0 offen
    s_mov_b64 exec, -1
    s_and_b64 s[{mA}:{mA + 1}], s[{mA}:{mA + 1}], vcc""")
    pop(tag, True)


def place(u):
    if "xnoplace" in sys.argv:
        w(f"    s_add_u32 s{S_IT}, s{S_IT}, 1")
        return
    R = V_REC[u]
    mA = S_MASK + u * 4
    mB = mA + 2
    bA, bB, rA, rB, xA, xB = t + 4, t + 5, t + 6, t + 7, t + 8, t + 9
    sb3 = "dst_sel:DWORD dst_unused:UNUSED_PAD src0_sel:DWORD src1_sel:BYTE_3"
    w(f"""    v_lshlrev_b32_sdwa v{xA}, 2, v{R} {sb3}
    v_lshlrev_b32_sdwa v{xB}, 2, v{R + 2} {sb3}
    s_mov_b64 exec, s[{mA}:{mA + 1}]
    ds_add_rtn_u32 v{rA}, v{xA}, v{V_TWO} offset:{A_CNT}
    s_mov_b64 exec, s[{mB}:{mB + 1}]
    ds_add_rtn_u32 v{rB}, v{xB}, v{V_TWO} offset:{A_CNT}
    s_mov_b64 exec, -1
    v_mul_u32_u24_sdwa v{bA}, s{S_768}, v{R} {sb3}
    v_mul_u32_u24_sdwa v{bB}, s{S_768}, v{R + 2} {sb3}
    s_waitcnt lgkmcnt(0)
    v_cmp_lt_u32 vcc, 0xff, v{rA}
    s_and_b64 s[{S_K}:{S_K + 1}], vcc, s[{mA}:{mA + 1}]
    v_cmp_lt_u32 vcc, 0xff, v{rB}
    s_and_b64 s[{S_K2}:{S_K2 + 1}], vcc, s[{mB}:{mB + 1}]
    s_or_b64 vcc, s[{S_K}:{S_K + 1}], s[{S_K2}:{S_K2 + 1}]
    s_cbranch_scc0 a_noovf{u}
    v_mov_b32 v{xA}, 0
    s_mov_b64 exec, s[{S_K}:{S_K + 1}]
    ds_add_rtn_u32 v{rA}, v{xA}, v{V_TWO} offset:{A_OVF}
    s_mov_b64 exec, s[{S_K2}:{S_K2 + 1}]
    ds_add_rtn_u32 v{rB}, v{xA}, v{V_TWO} offset:{A_OVF}
    s_waitcnt lgkmcnt(0)
    v_lshrrev_b32 v{bB}, 8, v{rB}
    v_cmp_le_u32 vcc, {NOVB}, v{bB}
    v_add_u32 v{bB}, {NBIN}, v{bB}
    v_mul_u32_u24 v{bB}, s{S_768}, v{bB}
    v_and_b32 v{rB}, 0xff, v{rB}
    s_mov_b64 s[{S_K2}:{S_K2 + 1}], vcc
    s_mov_b64 exec, s[{S_K}:{S_K + 1}]
    v_lshrrev_b32 v{bA}, 8, v{rA}
    v_cmp_le_u32 vcc, {NOVB}, v{bA}
    v_add_u32 v{bA}, {NBIN}, v{bA}
    v_mul_u32_u24 v{bA}, s{S_768}, v{bA}
    v_and_b32 v{rA}, 0xff, v{rA}
    s_mov_b64 s[{S_K}:{S_K + 1}], vcc
    s_mov_b64 exec, -1
    s_or_b64 vcc, s[{S_K}:{S_K + 1}], s[{S_K2}:{S_K2 + 1}]
    s_cbranch_scc0 a_noovf{u}
    s_mov_b64 s[{S_RA}:{S_RA + 1}], s[{S_K}:{S_K + 1}]
    s_mov_b64 s[{S_RB}:{S_RB + 1}], s[{S_K2}:{S_K2 + 1}]
    s_andn2_b64 s[{mA}:{mA + 1}], s[{mA}:{mA + 1}], s[{S_K}:{S_K + 1}]
    s_andn2_b64 s[{mB}:{mB + 1}], s[{mB}:{mB + 1}], s[{S_K2}:{S_K2 + 1}]
    s_mov_b32 s{S_MYINC}, 1
a_noovf{u}:
    v_lshl_add_u32 v{xA}, v{rA}, 1, v{bA}
    v_lshl_add_u32 v{xB}, v{rB}, 1, v{bB}
    v_add_u32 v{rA}, v{rA}, v{bA}
    v_add_u32 v{rB}, v{rB}, v{bB}
    s_mov_b64 exec, s[{mA}:{mA + 1}]
    ds_write_b32 v{xA}, v{R} offset:{A_STG}
    ds_write_b16 v{rA}, v{R + 1} offset:{A_STG + 512}
    s_mov_b64 exec, s[{mB}:{mB + 1}]
    ds_write_b32 v{xB}, v{R + 2} offset:{A_STG}
    ds_write_b16_d16_hi v{rB}, v{R + 1} offset:{A_STG + 512}
    s_mov_b64 exec, -1
    s_cmp_lg_u32 s{S_MYINC}, 0
    s_cbranch_scc1 a_stop
    s_add_u32 s{S_IT}, s{S_IT}, 1""")


w(f"""    s_mov_b32 s{S_T1}, s{S_SKIP}
a_replay:
    s_cmp_eq_u32 s{S_T1}, 0
    s_cbranch_scc1 a_replay_done""")
pop("a_rp", False)
w(f"""    s_sub_u32 s{S_T1}, s{S_T1}, 1
    s_branch a_replay
a_replay_done:""")
for i in range(DA * 2):
    w(f"    s_mov_b64 s[{S_MASK + 2 * i}:{S_MASK + 2 * i + 1}], 0")
pop("a_p0", True)
for u in range(DA - 1):
    w(f"""    s_cmp_lg_u32 s{S_REM}, -1
    s_cbranch_scc1 a_pro_done""")
    issue_rec(u, f"a_pi{u}")
    if u == 0:
        w(f"""    s_and_b64 s[{S_MASK}:{S_MASK + 1}], s[{S_MASK}:{S_MASK + 1}], s[{S_RA}:{S_RA + 1}]
    s_and_b64 s[{S_MASK + 2}:{S_MASK + 3}], s[{S_MASK + 2}:{S_MASK + 3}], s[{S_RB}:{S_RB + 1}]
    s_mov_b64 s[{S_RA}:{S_RA + 1}], -1
    s_mov_b64 s[{S_RB}:{S_RB + 1}], -1""")
w("a_pro_done:")
if "pfA" in sys.argv:
    w(f"""    s_lshr_b32 s{S_T0}, s2, 3
    s_mul_i32 s{S_T0}, s{S_T0}, 12500
    v_lshlrev_b32 v{t + 2}, 4, v0
    v_add_u32 v{t + 2}, s{S_T0}, v{t + 2}
    v_cmp_gt_u32 vcc, 783, v0
    s_or_b64 exec, vcc, 1
    buffer_load_dword v{V_JUNK}, v{t + 2}, s[{S_MI}:{S_MI + 3}], 0 idxen
    s_mov_b64 exec, -1""")
w("a_loop:")
for u in range(DA):
    un = (u + DA - 1) % DA
    if u % 3 == 0 and "noprioA" not in sys.argv:
        w(f"""    s_cmp_lt_u32 s{S_IT}, 3
    s_cbranch_scc1 a_pr{u}
    s_setprio 2
    s_cmp_lt_u32 s{S_IT}, 6
    s_cbranch_scc1 a_pr{u}
    s_setprio 1
    s_cmp_lt_u32 s{S_IT}, 9
    s_cbranch_scc1 a_pr{u}
    s_setprio 0
a_pr{u}:""")
    w(f"""    s_cmp_lg_u32 s{S_REM}, -1
    s_cbranch_scc1 a_cd{u}""")
    issue_rec(un, f"a_li{u}")
    w(f"""    s_waitcnt vmcnt({DA - 1})
    s_branch a_go{u}
a_cd{u}:
    s_sub_u32 s{S_REM}, s{S_REM}, 1
    s_cmp_eq_u32 s{S_REM}, 0
    s_cbranch_scc1 a_end
    s_mov_b64 s[{S_MASK + un * 4}:{S_MASK + un * 4 + 1}], 0
    s_mov_b64 s[{S_MASK + un * 4 + 2}:{S_MASK + un * 4 + 3}], 0
    s_waitcnt vmcnt(0)
a_go{u}:""")
    place(u)
w(f"""    s_branch a_loop
a_stop:
    v_mov_b32 v{t}, 0
    v_mov_b32 v{t + 1}, 1
    ds_write_b32 v{t}, v{t + 1} offset:{A_INC}
a_end:
    s_add_u32 s{S_SKIP}, s{S_SKIP}, s{S_IT}
    s_load_dwordx2 s[{S_DIST}:{S_DIST + 1}], s[0:1], 24
    s_load_dwordx2 s[{S_CENT}:{S_CENT + 1}], s[0:1], 40
    s_load_dwordx2 s[{S_MB}:{S_MB + 1}], s[0:1], 0
    s_waitcnt vmcnt(0) lgkmcnt(0)
    s_load_dwordx4 s[{S_CENT}:{S_CENT + 3}], s[{S_CENT}:{S_CENT + 1}], 0
    s_and_b32 s{S_DIST + 1}, s{S_DIST + 1}, 0xffff
    s_mov_b32 s{S_DIST + 2}, {E * 2}
    s_mov_b32 s{S_DIST + 3}, 0x00020000
    s_and_b32 s{S_MB + 1}, s{S_MB + 1}, 0xffff
    s_mov_b32 s{S_MB + 2}, {E * 8}
    s_mov_b32 s{S_MB + 3}, 0x00020000""")
stamp()
w(f"""    s_barrier
    v_mov_b32 v{t}, 0
    ds_read_b64 v[{t + 2}:{t + 3}], v{t} offset:{A_OVF}""")
t2 = V_TB2
if DIAG:
    w("    v_mov_b32 v22, v43")
    _st["v"] = 22
w(f"""    s_cmp_ge_u32 s{S_WAVE}, {NPW}
    s_cbranch_scc1 b_consumer""")
NB2 = NITB * NPW
w(f"""    v_and_b32 v{t2}, 63, v0                       ; lane
    s_add_u32 s{S_T0}, s{S_WAVE}, s{S_ROT}
    v_mul_u32_u24 v{t2 + 1}, {NPW}, v{t2}
    v_add_u32 v{t2 + 1}, s{S_T0}, v{t2 + 1}
    v_subrev_u32 v{t2 + 2}, {NB2}, v{t2 + 1}
    v_min_u32 v{t2 + 1}, v{t2 + 1}, v{t2 + 2}
    v_min_u32 v{t2 + 2}, {NBIN - 1}, v{t2 + 1}
    v_lshlrev_b32 v{t2 + 2}, 2, v{t2 + 2}
    ds_read_b32 v{V_CN}, v{t2 + 2} offset:{A_CNT}
    v_lshlrev_b32 v{t2 + 3}, 3, v{t2}
    v_lshlrev_b32 v{V_L4}, 2, v{t2}
    s_mul_i32 s{S_T0}, s{S_T0}, {BSTR}""")
for j in range(NITB):
    w(f"""    v_add_u32 v{t2 + 6 + 2 * (j % 2)}, s{S_T0}, v{t2 + 3}
    v_add_u32 v{t2 + 7 + 2 * (j % 2)}, s{S_T0}, v{V_L4}
    s_add_u32 s{S_T0}, s{S_T0}, {NPW * BSTR}
    s_sub_u32 s{S_T1}, s{S_T0}, {NB2 * BSTR}
    s_min_u32 s{S_T0}, s{S_T0}, s{S_T1}
    ds_read_b64 v[{V_RW[j]}:{V_RW[j] + 1}], v{t2 + 6 + 2 * (j % 2)} offset:{A_STG}
    ds_read_b32 v{V_RA[j]}, v{t2 + 7 + 2 * (j % 2)} offset:{A_STG + 512}""")
w(f"""    s_waitcnt lgkmcnt(0)
    v_readfirstlane_b32 s{S_INC}, v{t + 3}
    v_min_u32 v{t + 2}, {NOVB * 256}, v{t + 2}
    v_subrev_u32 v{t2 + 5}, {NBIN}, v{t2 + 1}
    v_lshlrev_b32 v{t2 + 5}, 8, v{t2 + 5}
    v_sub_u32 v{t2 + 5}, v{t + 2}, v{t2 + 5}
    v_cmp_gt_u32 vcc, {NBIN}, v{t2 + 1}
    v_max_i32 v{t2 + 5}, 0, v{t2 + 5}
    s_barrier
    v_cndmask_b32 v{V_CN}, v{t2 + 5}, v{V_CN}, vcc
    v_min_u32 v{V_CN}, 0x100, v{V_CN}""")
stamp(3)


def gather(j):
    u = j % 3
    B = V_BLK[u]
    mA, mB = BM[u]
    W = V_RW[j]
    w(f"""    v_readlane_b32 s{S_T0}, v{V_CN}, {j}
    v_lshrrev_b32 v{t2}, 13, v{W}
    v_lshrrev_b32 v{t2 + 1}, 13, v{W + 1}
    s_sub_u32 s{S_T1}, s{S_T0}, 2
    v_cmp_gt_u32 s[{mA}:{mA + 1}], s{S_T0}, v{V_L4}
    v_cmp_gt_i32 s[{mB}:{mB + 1}], s{S_T1}, v{V_L4}
    s_or_b64 exec, s[{mA}:{mA + 1}], 1
    buffer_load_dwordx2 v[{B}:{B + 1}], v{t2}, s[{S_MI}:{S_MI + 3}], 0 idxen
    s_or_b64 exec, s[{mB}:{mB + 1}], 1
    buffer_load_dwordx2 v[{B + 4}:{B + 5}], v{t2 + 1}, s[{S_MI}:{S_MI + 3}], 0 idxen
    s_mov_b64 exec, -1""")


def build(j, vm):
    u = j % 3
    c_, k = JMAP[j]
    p = c_ % 2
    so = (k + 5 * p) * 2048
    B = V_BLK[u]
    mA, mB = BM[u]
    W, A = V_RW[j], V_RA[j]
    t = t2
    idx0 = so // 16
    a2, c1, c2, c3 = t + 2, t + 4, t + 6, t + 8
    K0, K1 = V_KC
    lo = "op_sel:[0,0] op_sel_hi:[1,0]"
    hi = "op_sel:[0,1] op_sel_hi:[1,1]"
    w(f"""    v_and_b32 v{t + 10}, 0x1ffc, v{W}
    v_and_b32 v{t + 11}, 0x1ffc, v{W + 1}
    v_add_u32 v{t}, {idx0}, v{V_SI}
    v_add_u32 v{t + 1}, {idx0 + 64}, v{V_SI}
    s_mov_b64 exec, s[{mA}:{mA + 1}]
    ds_wrxchg_rtn_b32 v{B + 3}, v{t + 10}, v{t} offset:{HEAD[p]}
    s_mov_b64 exec, s[{mB}:{mB + 1}]
    ds_wrxchg_rtn_b32 v{B + 7}, v{t + 11}, v{t + 1} offset:{HEAD[p]}
    s_mov_b64 exec, -1
    v_lshlrev_b32 v{a2}, 16, v{A}
    v_and_b32 v{a2 + 1}, 0xffff0000, v{A}
    v_pk_mul_f32 v[{c3}:{c3 + 1}], v[{a2}:{a2 + 1}], v[{K0}:{K0 + 1}] {hi}
    v_pk_mul_f32 v[{c1}:{c1 + 1}], v[{a2}:{a2 + 1}], v[{K0}:{K0 + 1}] {lo}
    v_cvt_pk_bf16_f32 v{c3 + 1}, v{c3}, v{c3 + 1}
    v_fract_f32 v{c1}, v{c1}
    v_fract_f32 v{c1 + 1}, v{c1 + 1}
    v_lshlrev_b32 v{c3}, 16, v{c3 + 1}
    v_and_b32 v{c3 + 1}, 0xffff0000, v{c3 + 1}
    v_cos_f32 v{c1}, v{c1}
    v_cos_f32 v{c1 + 1}, v{c1 + 1}
    v_pk_mul_f32 v[{c3}:{c3 + 1}], v[{c3}:{c3 + 1}], v[{K0}:{K0 + 1}] {lo}
    v_pk_add_f32 v[{c2}:{c2 + 1}], v[{c1}:{c1 + 1}], v[{c1}:{c1 + 1}]
    v_fract_f32 v{c3}, v{c3}
    v_fract_f32 v{c3 + 1}, v{c3 + 1}
    v_pk_fma_f32 v[{c2}:{c2 + 1}], v[{c2}:{c2 + 1}], v[{c1}:{c1 + 1}], v[{K1}:{K1 + 1}] op_sel:[0,0,0] op_sel_hi:[1,1,0]
    v_cos_f32 v{c3}, v{c3}
    v_cos_f32 v{c3 + 1}, v{c3 + 1}
    v_cvt_pk_bf16_f32 v{B + 2}, v{c1}, v{c2}
    v_cvt_pk_bf16_f32 v{B + 6}, v{c1 + 1}, v{c2 + 1}
    v_cvt_pk_bf16_f32 v{t}, v{c3}, v{c3 + 1}
    s_waitcnt lgkmcnt(0)
    v_lshl_or_b32 v{B + 3}, v{t}, 16, v{B + 3}
    v_and_or_b32 v{B + 7}, v{t}, v{V_HIM}, v{B + 7}
    s_waitcnt vmcnt({vm})
    ds_write_b128 v{V_SL}, v[{B}:{B + 3}] offset:{so}
    ds_write_b128 v{V_SL}, v[{B + 4}:{B + 7}] offset:{so + 1024}""")


w("    s_setprio 3")
gather(0)
gather(1)
w(f"""    v_mov_b32 v{V_KC[0]}, 0.15915494
    v_mov_b32 v{V_KC[0] + 1}, 0x40400000
    v_mov_b32 v{V_KC[1]}, -1.0
    v_mov_b32 v{V_HIM}, 0xffff0000
    s_mul_i32 s{S_T0}, s{S_WAVE}, {WREG}
    s_add_u32 s{S_T0}, s{S_T0}, {BUF0}
    v_lshlrev_b32 v{V_SL}, 2, v{V_L4}
    v_add_u32 v{V_SL}, s{S_T0}, v{V_SL}
    v_lshrrev_b32 v{V_SI}, 4, v{V_SL}
    s_barrier""")
stamp(4)
for j in range(NITB):
    c_, k_ = JMAP[j]
    w(f"    s_setprio {min(2, PAT[c_] - 1 - k_) + (0 if 'consprio' in sys.argv else 1)}")
    if j + 2 < NITB:
        gather(j + 2)
        vm = 4
    else:
        vm = 2 * (NITB - 1 - j)
    build(j, vm)
    if k_ == PAT[c_] - 1:
        w("    s_waitcnt lgkmcnt(0)")
        stamp(10 + 2 * c_)
        w("    s_barrier")
        stamp(11 + 2 * c_)
w(f"""    s_cmp_lg_u32 s{S_INC}, 0
    s_cbranch_scc0 b_pdone
    s_barrier
    s_branch a_batch
b_pdone:""")
stamp(7)
stamp_flush(1, S_WAVE, 36)
w("    s_endpgm")

c2 = 4
V_PFI = 116
PF0 = int([a_[4:] for a_ in sys.argv if a_.startswith("pf0=")][0]) if any(a_.startswith("pf0=") for a_ in sys.argv) else 256
PFN = int([a_[4:] for a_ in sys.argv if a_.startswith("pfn=")][0]) if any(a_.startswith("pfn=") for a_ in sys.argv) else 160


def prefetch(n, tag):
    if "pf" not in sys.argv:
        return
    w(f"""    v_cmp_gt_u32 vcc, {n * 4}, v{V_CH}
    s_cbranch_vccz {tag}
    s_mov_b64 exec, vcc
    buffer_load_dword v{V_PFI + 1}, v{V_PFI}, s[{S_MI}:{S_MI + 3}], 0 idxen
    s_mov_b64 exec, -1
{tag}:
    v_add_u32 v{V_PFI}, {n * 32 * 16}, v{V_PFI}""")


w(f"""b_consumer:
    s_setprio 3
    v_subrev_u32 v{V_CH}, {NPW * 64}, v0
    s_lshr_b32 s{S_T0}, s2, 3
    s_lshl_b32 s{S_T0}, s{S_T0}, 4
    v_lshlrev_b32 v{V_PFI}, 9, v{V_CH}
    v_add_u32 v{V_PFI}, s{S_T0}, v{V_PFI}
    v_add_u32 v{c2}, s{S_E0}, v{V_CH}
    v_lshlrev_b32 v{V_CH}, 2, v{V_CH}
    s_waitcnt lgkmcnt(0)
    v_readfirstlane_b32 s{S_INC}, v{t + 3}
    v_lshlrev_b32 v{c2 + 1}, 1, v{c2}
    v_lshlrev_b32 v{c2 + 2}, 3, v{c2}""")
prefetch(PF0, "b_pf0")
for q in range(4):
    w(f"    buffer_load_ushort v{c2 + 4 + q}, v{c2 + 1}, s[{S_DIST}:{S_DIST + 3}], 0 offen offset:{q * 1024}")
for q in range(4):
    w(f"""    s_movk_i32 s{S_T0}, {q * 4096}
    buffer_load_dwordx2 v[{V_MR[q]}:{V_MR[q] + 1}], v{c2 + 2}, s[{S_MB}:{S_MB + 3}], s{S_T0} offen""")
w(f"""    v_mov_b32 v{c2 + 8}, {NIL}
    v_mov_b32 v{c2 + 9}, {NIL}
    v_mov_b32 v{c2 + 10}, {NIL}
    v_mov_b32 v{c2 + 11}, {NIL}
    v_mov_b32 v{c2 + 12}, 0
    v_mov_b32 v{c2 + 13}, 0
    v_mov_b32 v{c2 + 14}, 0
    v_mov_b32 v{c2 + 15}, {NIL}
    v_lshlrev_b32 v{c2 + 3}, 2, v{V_CH}
    v_cmp_gt_u32 vcc, 4608, v{c2 + 3}
    s_barrier
    ds_write_b128 v{c2 + 3}, v[{c2 + 8}:{c2 + 11}]
    s_mov_b64 exec, vcc
    ds_write_b128 v{c2 + 3}, v[{c2 + 8}:{c2 + 11}] offset:8192
    s_mov_b64 exec, -1
    ds_write_b128 v{c2 + 12}, v[{c2 + 12}:{c2 + 15}] offset:{B_DUMMY}
    s_waitcnt lgkmcnt(0)
    s_barrier
    s_setprio 0
    s_waitcnt vmcnt(0)""")
d0, tmp = c2 + 4, c2 + 8
for i in range(4):
    w(f"    v_lshlrev_b32 v{d0 + i}, 16, v{d0 + i}")
for p in range(4):
    w(f"""    s_lshl_b32 s{S_T0}, s{S_CENT + p}, 16
    s_and_b32 s{S_T1}, s{S_CENT + p}, 0xffff0000""")
    for e in range(4):
        a, b, tt = tmp + 2 * e, tmp + 1 + 2 * e, V_PK[e] + p
        d = d0 + e
        w(f"""    v_subrev_f32 v{a}, s{S_T0}, v{d}
    v_subrev_f32 v{b}, s{S_T1}, v{d}
    v_cvt_pk_bf16_f32 v{tt}, v{a}, v{b}
    v_lshlrev_b32 v{a}, 16, v{tt}
    v_and_b32 v{b}, 0xffff0000, v{tt}
    v_mul_f32 v{a}, v{a}, v{a}
    v_mul_f32 v{b}, v{b}, v{b}
    v_cvt_pk_bf16_f32 v{tt}, v{a}, v{b}
    v_lshlrev_b32 v{a}, 16, v{tt}
    v_and_b32 v{b}, 0xffff0000, v{tt}
    v_mul_f32 v{a}, 0xc1200000, v{a}
    v_mul_f32 v{b}, 0xc1200000, v{b}
    v_cvt_pk_bf16_f32 v{tt}, v{a}, v{b}
    v_lshlrev_b32 v{a}, 16, v{tt}
    v_and_b32 v{b}, 0xffff0000, v{tt}
    v_mul_f32 v{a}, 0x3fb8aa3b, v{a}
    v_mul_f32 v{b}, 0x3fb8aa3b, v{b}
    v_exp_f32 v{a}, v{a}
    v_exp_f32 v{b}, v{b}
    s_nop 0
    v_cvt_pk_bf16_f32 v{tt}, v{a}, v{b}""")
SWD2, SWU2 = 8, 4
w(f"""    s_load_dwordx8 s[8:15], s[0:1], 56
    s_waitcnt lgkmcnt(0)
    s_load_dwordx16 s[{SW_RBF}:{SW_RBF + 15}], s[8:9], 0
    s_load_dwordx16 s[{SW_SBF}:{SW_SBF + 15}], s[10:11], 0
    s_load_dwordx16 s[{SW_SBF + 16}:{SW_SBF + 31}], s[10:11], 64
    s_load_dwordx16 s[{SW_SBF + 32}:{SW_SBF + 47}], s[10:11], 128
    s_mov_b64 s[100:101], s[14:15]
    s_load_dwordx8 s[8:15], s[12:13], 0
    s_waitcnt lgkmcnt(0)
    s_setprio {3 if 'consprio' in sys.argv else 0}""")
prefetch(PFN, "b_pf1")


def walk(p, n, tag):
    r = [c2 + 4 * i for i in range(4)]
    M0, C1 = 24, 26
    ad, nil = 1, 2
    for i in range(n):
        w(f"    ds_read_b32 v{r[i]}, v{V_CH} offset:{HEAD[p] + i * 2048}")
    w(f"    v_mov_b32 v{nil}, {NIL}")
    for i in range(n):
        w(f"""    s_waitcnt lgkmcnt({n - 1 - i + 2 * i})
    v_lshlrev_b32 v{ad}, 4, v{r[i]}
    ds_write_b32 v{V_CH}, v{nil} offset:{HEAD[p] + i * 2048}
    ds_read_b128 v[{r[i]}:{r[i] + 3}], v{ad}""")
    w(f"""    v_mov_b32 v{nil}, {B_DUMMY}
{tag}:""")
    for i in range(n):
        R, Sx = r[i], V_S[i]
        X = 28 + 4 * (i % 2)
        w(f"""    s_waitcnt lgkmcnt({n - 1})
    v_lshlrev_b32_sdwa v{ad}, 4, v{R + 3} dst_sel:DWORD dst_unused:UNUSED_PAD src0_sel:DWORD src1_sel:WORD_0
    v_lshlrev_b32 v{M0}, 16, v{R}
    v_lshlrev_b32 v{M0 + 1}, 16, v{R + 1}
    v_lshlrev_b32 v{C1}, 16, v{R + 2}
    v_and_b32 v{X}, 0xffff0000, v{R}
    v_and_b32 v{X + 1}, 0xffff0000, v{R + 1}
    v_and_b32 v{X + 2}, 0xffff0000, v{R + 2}
    v_and_b32 v{X + 3}, 0xffff0000, v{R + 3}
    ds_read_b128 v[{R}:{R + 3}], v{ad}""")
        if i == 0:
            w(f"    v_cmp_ne_u32 vcc, v{ad}, v{nil}")
        else:
            w(f"    v_cmp_ne_u32 s[{S_K}:{S_K + 1}], v{ad}, v{nil}")
        for l in range(3):
            cp = C1 if l == 0 else X + 2
            sel = "op_sel:[0,1,0] op_sel_hi:[1,1,1]" if l == 2 else "op_sel:[0,0,0] op_sel_hi:[1,0,1]"
            for h, mm in ((0, M0), (1, X)):
                s_ = Sx + 4 * l + 2 * h
                w(f"    v_pk_fma_f32 v[{s_}:{s_ + 1}], v[{mm}:{mm + 1}], v[{cp}:{cp + 1}], v[{s_}:{s_ + 1}] {sel}")
        if i > 0:
            w(f"    s_or_b64 vcc, vcc, s[{S_K}:{S_K + 1}]")
    w(f"""    s_cbranch_vccnz {tag}
    s_waitcnt lgkmcnt(0)""")


w(f"""    s_mov_b32 s{S_REM}, {NCHK}
b_cloop:""")
for p in range(2):
    w("    s_barrier")
    prefetch(PFN, f"b_pfl{p}")
    w(f"""    s_cmp_eq_u32 s{S_WAVE}, {NPW}
    s_cbranch_scc1 b_w4{p}""")
    walk(p, 3, f"b_wa{p}")
    w(f"""    s_branch b_wdone{p}
b_w4{p}:""")
    walk(p, 4, f"b_wb{p}")
    w(f"b_wdone{p}:")
    stamp(8 + p)
    w(f"""    s_sub_u32 s{S_REM}, s{S_REM}, 1
    s_cmp_eq_u32 s{S_REM}, 0
    s_cbranch_scc1 b_cend""")
w(f"""    s_branch b_cloop
b_cend:
    s_waitcnt vmcnt(0)
    s_cmp_lg_u32 s{S_INC}, 0
    s_cbranch_scc0 b_final
    s_barrier
    s_branch a_batch
b_final:
    s_load_dwordx8 s[16:23], s[100:101], 0            ; w_up
    s_load_dwordx2 s[4:5], s[0:1], 88                 ; out
    s_lshl_b32 s{S_E0}, s{S_E0}, 3
    v_lshlrev_b32 v{V_CH}, 1, v{V_CH}                 ; c*8""")
stamp(6)
SWD2, SWU2, S_OUT = 8, 16, 4


def fin_group(edges, first):
    R = [dict(AG=4 + 12 * i, U=8 + 12 * i, G=12 + 12 * i) for i in range(len(edges))]
    if DIAG:
        R = [dict(AG=b, U=b + 4, G=b + 8) for b in (4, 24, 80)][:len(edges)] if False else [dict(AG=b, U=b + 4, G=b + 8) for b in (4, 24, 118 - 2)][:len(edges)]
    for l in range(3):
        for p in range(4):
            r0 = (2 * p) * 3 + l
            r1 = (2 * p + 1) * 3 + l
            for dp in range(2):
                sa, sb = SW_SBF + r0 * 2 + dp, SW_SBF + r1 * 2 + dp
                w(f"""    s_pack_ll_b32_b16 s{S_T0}, s{sa}, s{sb}
    s_pack_hh_b32_b16 s{S_T1}, s{sa}, s{sb}""")
                for i, q in enumerate(edges):
                    for h, st_ in ((0, S_T0), (1, S_T1)):
                        g = R[i]['G'] + dp * 2 + h
                        c = "0" if p == 0 else f"v{g}"
                        w(f"    v_dot2_f32_bf16 v{g}, v{V_PK[q] + p}, s{st_}, {c}")
        for k in range(4):
            for dp in range(2):
                sg = SWD2 + k * 2 + dp
                w(f"""    s_lshl_b32 s{S_T0}, s{sg}, 16
    s_and_b32 s{S_T1}, s{sg}, 0xffff0000""")
                for i, q in enumerate(edges):
                    for h, st_ in ((0, S_T0), (1, S_T1)):
                        u_ = R[i]['U'] + dp * 2 + h
                        op = "v_mul_f32" if k == 0 else "v_fmac_f32"
                        w(f"    {op} v{u_}, s{st_}, v{V_S[q] + 4 * l + [0, 2, 1, 3][k]}")
        for i, q in enumerate(edges):
            for j in range(4):
                op = "v_mul_f32" if l == 0 else "v_fmac_f32"
                w(f"    {op} v{R[i]['AG'] + j}, v{R[i]['G'] + j}, v{R[i]['U'] + j}")
        w("    s_nop 2")
    for p in range(4):
        for dp in range(2):
            sa, sb = SW_RBF + (2 * p) * 2 + dp, SW_RBF + (2 * p + 1) * 2 + dp
            w(f"""    s_pack_ll_b32_b16 s{S_T0}, s{sa}, s{sb}
    s_pack_hh_b32_b16 s{S_T1}, s{sa}, s{sb}""")
            for i, q in enumerate(edges):
                for h, st_ in ((0, S_T0), (1, S_T1)):
                    g = R[i]['G'] + dp * 2 + h
                    c = "0" if p == 0 else f"v{g}"
                    w(f"    v_dot2_f32_bf16 v{g}, v{V_PK[q] + p}, s{st_}, {c}")
    if first:
        w(f"""    s_waitcnt lgkmcnt(0)
    s_and_b32 s{S_OUT + 1}, s{S_OUT + 1}, 0xffff
    s_mov_b32 s{S_OUT + 2}, {E * 8}
    s_mov_b32 s{S_OUT + 3}, 0x00020000""")
    for k in range(4):
        for dp in range(2):
            sg = SWU2 + k * 2 + dp
            w(f"""    s_lshl_b32 s{S_T0}, s{sg}, 16
    s_and_b32 s{S_T1}, s{sg}, 0xffff0000""")
            for i, q in enumerate(edges):
                for h, st_ in ((0, S_T0), (1, S_T1)):
                    u_ = R[i]['U'] + dp * 2 + h
                    op = "v_mul_f32" if k == 0 else "v_fmac_f32"
                    w(f"    {op} v{u_}, s{st_}, v{R[i]['AG'] + k}")
    for i, q in enumerate(edges):
        for dp in range(2):
            u0 = R[i]['U'] + 2 * dp
            r0 = R[i]['G'] + 2 * dp
            mr = V_MR[q] + dp
            a, b = R[i]['AG'], R[i]['AG'] + 1
            w(f"""    v_cvt_pk_bf16_f32 v{u0 + 1}, v{u0}, v{u0 + 1}
    v_cvt_pk_bf16_f32 v{r0 + 1}, v{r0}, v{r0 + 1}
    v_lshlrev_b32 v{u0}, 16, v{u0 + 1}
    v_and_b32 v{u0 + 1}, 0xffff0000, v{u0 + 1}
    v_lshlrev_b32 v{r0}, 16, v{r0 + 1}
    v_and_b32 v{r0 + 1}, 0xffff0000, v{r0 + 1}
    v_mul_f32 v{u0}, v{u0}, v{r0}
    v_mul_f32 v{u0 + 1}, v{u0 + 1}, v{r0 + 1}
    v_cvt_pk_bf16_f32 v{u0 + 1}, v{u0}, v{u0 + 1}
    v_lshlrev_b32 v{u0}, 16, v{u0 + 1}
    v_and_b32 v{u0 + 1}, 0xffff0000, v{u0 + 1}
    v_lshlrev_b32 v{a}, 16, v{mr}
    v_and_b32 v{b}, 0xffff0000, v{mr}
    v_add_f32 v{u0}, v{u0}, v{a}
    v_add_f32 v{u0 + 1}, v{u0 + 1}, v{b}
    v_cvt_pk_bf16_f32 v{mr}, v{u0}, v{u0 + 1}""")
        w(f"""    s_add_u32 s{S_T0}, s{S_E0}, {q * 4096}
    buffer_store_dwordx2 v[{V_MR[q]}:{V_MR[q] + 1}], v{V_CH}, s[{S_OUT}:{S_OUT + 3}], s{S_T0} offen""")


fin_group([0, 1, 2], True)
w(f"""    s_cmp_lg_u32 s{S_WAVE}, {NPW}
    s_cbranch_scc1 b_fin_done
    v_cmp_gt_u32 vcc, {(EO - 1536) * 8}, v{V_CH}
    s_nop 1
    v_cndmask_b32 v{V_CH}, 2.0, v{V_CH}, vcc""")
fin_group([3], False)
w("b_fin_done:")
stamp(7)
stamp_flush(1, S_WAVE, 36)
w("""p2_done:
    s_endpgm""")
w(kd("acc_kernel", 128, 102))
print("\n".join(out))
```

```python
import sys
E = 400000
T = 6400000
EO = 1563
MAGIC = -(-(1 << 32) // EO)
S = 12500
NT = 512
TS = 75008
OFFS_BASE = 40 * 1024 * 1024
assert all(((i * MAGIC) >> 32) == i // EO for i in range(0, E, 1))
assert MAGIC < (1 << 24)

HDR = open('standalone__molecular_angular_gemnet__graph.s.ref').read().split('; Override launch')[0]
out = []


def w(s):
    out.append(s)


def kd(name, vgpr, sgpr):
    return f""".section .rodata,"a"
.p2align 6
.amdhsa_kernel {name}
  .amdhsa_next_free_vgpr {vgpr}
  .amdhsa_next_free_sgpr {sgpr}
  .amdhsa_accum_offset {(vgpr + 3) // 4 * 4}
  .amdhsa_group_segment_fixed_size 0
  .amdhsa_kernarg_size 112
  .amdhsa_user_sgpr_count 2
  .amdhsa_user_sgpr_kernarg_segment_ptr 1
  .amdhsa_system_sgpr_workgroup_id_x 1
  .amdhsa_float_denorm_mode_32 3
.end_amdhsa_kernel
.text
"""


def head(name):
    return f""".globl {name}
.p2align 8
.type {name},@function
{name}:"""


def srd(d, b, nbytes):
    return f"""    s_mov_b32 s{d}, s{b}
    s_and_b32 s{d + 1}, s{b + 1}, 0xffff
    s_mov_b32 s{d + 2}, {nbytes}
    s_mov_b32 s{d + 3}, 0x00020000"""


DIAG = "diag" in sys.argv
STAMP_BASE = 200 * 1024 * 1024
_st = {"n": 0, "s": 0}


def stamp(k=None):
    if not DIAG:
        return
    if k is None:
        k = _st["n"]
    _st["n"] = k + 1
    b = _st["s"]
    v = _st["v"]
    w(f"""    s_memrealtime vcc
    s_waitcnt lgkmcnt(0)
    v_writelane_b32 v{v}, vcc_lo, {k}""")


def stamp_flush(kid, swave, b, wgmask=255):
    if not DIAG:
        return
    v = _st['v']
    w(f"""    s_load_dwordx2 s[{b}:{b + 1}], s[0:1], 104
    s_waitcnt lgkmcnt(0)
    s_add_u32 s{b}, s{b}, {STAMP_BASE + kid * 4 * 1024 * 1024}
    s_addc_u32 s{b + 1}, s{b + 1}, 0
    s_and_b32 s{b + 2}, s2, {wgmask}
    s_lshl_b32 s{b + 2}, s{b + 2}, 4
    s_add_u32 s{b + 2}, s{b + 2}, s{swave}
    s_lshl_b32 s{b + 2}, s{b + 2}, 8
    v_and_b32 v1, 63, v0
    v_lshlrev_b32 v1, 2, v1
    v_add_u32 v1, s{b + 2}, v1
    global_store_dword v1, v{v}, s[{b}:{b + 1}]""")
    sys.stderr.write(f"kernel {kid}: {_st['n']} stamps\n")


P1_LDS = 1024 + TS
ROTN = 1
for a_ in sys.argv:
    if a_.startswith('rot='):
        ROTN = int(a_[4:])
NBIN = 196
NBLK = 209
BSTR = 776
NOVB = (NBLK - NBIN) if "smallovf" not in sys.argv else 1
A_CNT = 0
A_OVF = 1008
A_INC = A_OVF + 4
A_STG = 1024
assert A_STG + NBLK * BSTR <= 163840
NPW = 8
KCH = 4
HEAD = [0, 6400]
B_DUMMY = 12800
BUF0 = 13056
WREG = 9 * 2048
assert BUF0 + NPW * WREG <= 163840
PAT = [5, 4, 5, 4, 5, 4]
for a_ in sys.argv:
    if a_.startswith("pat="):
        PAT = [int(x) for x in a_[4:].split(",")]
NIL = B_DUMMY // 16
NITB = -(-NBLK // NPW)
assert sum(PAT) == NITB and all(n <= (5, 4)[c % 2] for c, n in enumerate(PAT))
NCHK = len(PAT)
JMAP = [(c, k) for c, n in enumerate(PAT) for k in range(n)]
ST_FL = " sc1" if "nosc1" not in sys.argv else ""

w(HDR.rstrip("\n"))
w(f"; @launch kernel=part_kernel grid=(512,1,1) block=(512,1,1) lds={P1_LDS}")
w(f"; @launch kernel=acc_kernel grid=(256,1,1) block=(1024,1,1) lds=163840")
w('.amdgcn_target "amdgcn-amd-amdhsa--gfx950"\n.text')

w(head("part_kernel"))
RB = 16
KB = 88
TMP = 4
_st.update(n=0, v=116)
w(f"""    s_cmp_ge_u32 s2, {NT}
    s_cbranch_scc1 p1_done
    s_load_dwordx4 s[4:7], s[0:1], 8
    s_load_dwordx2 s[28:29], s[0:1], 32    ; angle
    s_load_dwordx2 s[30:31], s[0:1], 104   ; ws
    v_lshlrev_b32 v1, 4, v0
    v_lshlrev_b32 v2, 3, v0
    v_mov_b32 v3, 3
    v_readfirstlane_b32 s3, v0
    s_lshr_b32 s3, s3, 6
    s_mul_i32 s32, s2, {S * 4}
    s_mul_i32 s33, s2, {S * 2}
    s_mov_b32 s34, {MAGIC}
    s_mov_b32 s35, {(-EO * 4) & 0xffffffff}
    v_lshlrev_b32 v4, 2, v0
    v_mov_b32 v5, 0
    v_cmp_gt_u32 vcc, 256, v0
    s_mov_b64 exec, vcc
    ds_write_b32 v4, v5
    s_mov_b64 exec, -1
    v_add_u32 v12, 1024, v1
    v_add_u32 v13, {1024 + 65536}, v1
    v_cmp_gt_u32 vcc, {TS // 16 - 9 * 512}, v0
    s_nop 1
    v_cndmask_b32 v14, 2.0, v1, vcc
    s_waitcnt lgkmcnt(0)
    s_barrier""")
stamp()
w(srd(8, 4, T * 4))
w(srd(12, 6, T * 4))
w(srd(16, 28, T * 2))
w(srd(20, 30, NT * TS))
w(f"""    s_add_u32 s30, s30, {OFFS_BASE}
    s_addc_u32 s31, s31, 0""")
w(srd(24, 30, NT * 1024))


def p1_loads(r):
    b = RB + r * 10
    w(f"""    s_add_u32 s36, s32, {r * 8192}
    s_add_u32 s37, s33, {r * 4096}
    buffer_load_dwordx4 v[{b + 4}:{b + 7}], v1, s[12:15], s36 offen
    buffer_load_dwordx4 v[{b}:{b + 3}], v1, s[8:11], s36 offen
    buffer_load_dwordx2 v[{b + 8}:{b + 9}], v2, s[16:19], s37 offen""")


NPART = S // 4 - 6 * 512
PMASK = (1 << NPART) - 1


def wave0_partial(tag, fn):
    w(f"""    s_cmp_lg_u32 s3, 0
    s_cbranch_scc1 {tag}
    s_mov_b32 exec_lo, {PMASK & 0xffffffff}
    s_mov_b32 exec_hi, {PMASK >> 32}""")
    fn()
    w(f"""    s_mov_b64 exec, -1
{tag}:""")


def p1_hist(r):
    b = RB + r * 10
    for i in range(4):
        vin = b + i
        vo = b + 4 + i
        t = TMP + i
        w(f"""    v_mul_hi_u32_u24 v{t}, s34, v{vo}
    v_lshlrev_b32 v{vo}, 2, v{vo}
    v_mad_i32_i24 v{vo}, v{t}, s35, v{vo}
    v_lshl_or_b32 v{vin}, v{vin}, 13, v{vo}
    v_lshlrev_b32 v{vo}, 2, v{t}
    ds_add_rtn_u32 v{KB + r * 4 + i}, v{vo}, v3""")


def p1_base(r):
    b = RB + r * 10
    for i in range(4):
        vo = b + 4 + i
        w(f"    ds_read_b32 v{vo}, v{vo}")


def p1_scatter(r):
    b = RB + r * 10
    for i in range(4):
        vin = b + i
        vo = b + 4 + i
        k = KB + r * 4 + i
        t = TMP + i
        va = b + 8 + i // 2
        wr = "ds_write_b16" if i % 2 == 0 else "ds_write_b16_d16_hi"
        w(f"""    v_add_lshl_u32 v{k}, v{vo}, v{k}, 1
    v_and_b32 v{t}, 2, v{k}
    v_add_u32 v{vo}, v{k}, v{t}
    v_mad_i32_i24 v{k}, v{t}, -2, v{k}
    ds_write_b32 v{vo}, v{vin}
    {wr} v{k}, v{va} offset:4""")


w("""    s_setprio 1
    s_cmp_ge_u32 s2, 256
    s_cbranch_scc1 p1_lowprio
    s_setprio 3
p1_lowprio:""")
wave0_partial("p1_l3skip", lambda: p1_loads(6))
for r in range(6):
    p1_loads(r)
w("    s_setprio 2")
stamp()
for r in range(6):
    w(f"    s_waitcnt vmcnt({15 - 3 * r})")
    p1_hist(r)
    if r == 0:
        wave0_partial("p1_h3skip", lambda: p1_hist(6))
w("    s_waitcnt lgkmcnt(0)")
stamp()
w(f"""    s_barrier
    s_cmp_lg_u32 s3, 0
    s_cbranch_scc1 p1_scan_skip
    ds_read_b128 v[4:7], v1
    s_waitcnt lgkmcnt(0)
    v_add_u32 v5, v4, v5
    v_add_u32 v6, v5, v6
    v_add_u32 v7, v6, v7
    v_mov_b32 v8, v7
    s_nop 1
    v_add_u32_dpp v8, v8, v8 row_shr:1 row_mask:0xf bank_mask:0xf bound_ctrl:0
    s_nop 1
    v_add_u32_dpp v8, v8, v8 row_shr:2 row_mask:0xf bank_mask:0xf bound_ctrl:0
    s_nop 1
    v_add_u32_dpp v8, v8, v8 row_shr:4 row_mask:0xf bank_mask:0xf bound_ctrl:0
    s_nop 1
    v_add_u32_dpp v8, v8, v8 row_shr:8 row_mask:0xf bank_mask:0xf bound_ctrl:0
    s_nop 1
    v_add_u32_dpp v8, v8, v8 row_bcast:15 row_mask:0xa bank_mask:0xf
    s_nop 1
    v_add_u32_dpp v8, v8, v8 row_bcast:31 row_mask:0xc bank_mask:0xf
    v_sub_u32 v9, v8, v7
    v_add_u32 v10, v9, v4
    v_add_u32 v11, v9, v5
    v_add_u32 v15, v9, v6
    v_lshl_or_b32 v4, v10, 16, v9
    v_lshl_or_b32 v5, v11, 16, v10
    v_lshl_or_b32 v6, v15, 16, v11
    v_lshl_or_b32 v7, v8, 16, v15
    v_add_u32 v8, 512, v9
    v_add_u32 v9, 512, v10
    v_add_u32 v10, 512, v11
    v_add_u32 v11, 512, v15
    ds_write_b128 v1, v[8:11]
    s_lshl_b32 s36, s2, 10
    s_waitcnt lgkmcnt(0)
    s_barrier
    buffer_store_dwordx4 v[4:7], v1, s[24:27], s36 offen{ST_FL}
    s_nop 1
    s_branch p1_scan_done
p1_scan_skip:
    s_barrier
p1_scan_done:""")
stamp()
wave0_partial("p1_b3skip", lambda: (p1_base(6), w("    s_waitcnt lgkmcnt(0)"), p1_scatter(6)))
p1_base(0)
p1_base(1)
for r in range(6):
    if r + 2 < 6:
        p1_base(r + 2)
    w("    s_waitcnt lgkmcnt(%d)" % (8 if r == 0 else (4 if r + 2 < 6 else 0) + 8))
    p1_scatter(r)
w("    s_waitcnt lgkmcnt(0)")
stamp()
w("    s_barrier")
stamp()
if "oldprio" not in sys.argv:
    w("    s_setprio 0")
stg = [16 + 4 * r for r in range(10)]
for r in range(10):
    a, off = (12, r * 8192) if r < 8 else (13, (r - 8) * 8192)
    w(f"    ds_read_b128 v[{stg[r]}:{stg[r] + 3}], v{a} offset:{off}")
w(f"    s_mul_i32 s36, s2, {TS}")
for r in range(10):
    w(f"""    s_waitcnt lgkmcnt({9 - r})
    buffer_store_dwordx4 v[{stg[r]}:{stg[r] + 3}], v{1 if r < 9 else 14}, s[20:23], s36 offen{ST_FL}
    s_add_u32 s36, s36, 8192""")
stamp()
if DIAG:
    w("    s_waitcnt vmcnt(0)")
stamp()
if DIAG:
    w("""    s_cmp_ge_u32 s2, 256
    s_cselect_b32 s38, 8, 0
    s_add_u32 s3, s3, s38""")
stamp_flush(0, 3, 40)
w("""p1_done:
    s_endpgm""")
w(kd("part_kernel", 120 if DIAG else 116, 48))

w(head("acc_kernel"))
S_WAVE = 3
S_MI = 4
S_REC = 8
S_OFFS = 12
S_OUT = 12
S_SKIP = 16
S_IT = 17
S_RA = 18
S_RB = 20
S_REM = 22
S_INC = 23
S_BK4 = 24
S_E0 = 25
S_T0, S_T1 = 26, 27
S_K = 28
S_K2 = 30
S_TODO = 32
S_MYINC = 33
S_768 = 34
S_ROT = 35
S_MASK = 36
BM = [(8, 10), (12, 14), (32, 100)]
SW_SBF = 36
SW_RBF = 84
S_DIST = 60
S_CENT = 64
S_MB = 68

DA = 6
V_REC = [4 * i + 4 for i in range(DA)]
V_E0, V_E1, V_W0, V_W1, V_BASE, V_L12 = [r + 3 for r in V_REC]
V_L6, V_L6P, V_TWO = 1, 2, 3
V_T = 28
V_JUNK = 42
V_S = [44 + 12 * q for q in range(4)]
V_CH = 3
V_PK = [4, 8, 12, 120]
V_G = [28, 92, 106]
V_MR = [42, 124, 126, 42]
V_SI = 1
V_SL = 2
V_TB2 = 4
V_KC = [16, 18]
V_HIM = 19
V_CN = 20
V_L4 = 21
V_BLK = [24, 32, 40]
V_RW = [48 + 2 * j for j in range(NITB)]
V_RA = [102 + j for j in range(NITB - 1)] + [23]
_st.update(n=0, v=43)
t = V_T

w(f"""    s_cmp_ge_u32 s2, 256
    s_cbranch_scc1 p2_done
    s_load_dwordx2 s[{S_MI}:{S_MI + 1}], s[0:1], 0
    v_readfirstlane_b32 s{S_WAVE}, v0
    s_lshr_b32 s{S_WAVE}, s{S_WAVE}, 6
    s_and_b32 s{S_T1}, s2, 7
    s_lshl_b32 s{S_T1}, s{S_T1}, 5
    s_lshr_b32 s{S_T0}, s2, 3
    s_add_u32 s{S_T1}, s{S_T1}, s{S_T0}        ; bucket
    s_mul_i32 s{S_E0}, s{S_T1}, {EO}
    s_lshl_b32 s{S_BK4}, s{S_T1}, 2
    s_and_b32 s{S_ROT}, s{S_T0}, {ROTN - 1}
    s_mul_i32 s{S_ROT}, s{S_ROT}, {416 // ROTN}
    s_lshr_b32 s{S_ROT}, s{S_ROT}, 1
    s_mov_b32 s{S_SKIP}, 0
    s_mov_b64 s[{S_RA}:{S_RA + 1}], -1
    s_mov_b64 s[{S_RB}:{S_RB + 1}], -1
    s_movk_i32 s{S_768}, {BSTR}
    s_cmp_lt_u32 s{S_WAVE}, {NPW}
    s_cbranch_scc1 a_batch""")
for i in range(48):
    w(f"    v_mov_b32 v{V_S[0] + i}, 0")
w(f"""a_batch:
    s_load_dwordx2 s[{S_REC}:{S_REC + 1}], s[0:1], 104
    s_setprio 3
    v_lshlrev_b32 v{t + 2}, 2, v0
    v_mov_b32 v{t + 3}, 0
    v_cmp_gt_u32 vcc, 256, v0
    s_mov_b64 exec, vcc
    ds_write_b32 v{t + 2}, v{t + 3} offset:{A_CNT}
    s_mov_b64 exec, -1
    v_and_b32 v{t + 4}, 31, v0
    v_lshrrev_b32 v{t + 5}, 5, v0
    v_lshl_add_u32 v{t + 5}, v{t + 5}, 4, v{t + 4}      ; tile
    v_lshlrev_b32 v{t}, 10, v{t + 5}
    v_cmp_gt_u32 vcc, 16, v{t + 4}
    v_mul_u32_u24 v{V_L6}, 6, v{t + 4}
    v_add_u32 v{V_L6P}, 3, v{V_L6}
    v_cndmask_b32 v{t}, 2.0, v{t}, vcc
    v_lshlrev_b32 v{V_L12}, 1, v{V_L6}
    v_and_b32 v{V_BASE}, 32, v0
    v_lshlrev_b32 v{V_BASE}, 2, v{V_BASE}
    v_mov_b32 v{V_TWO}, 2
    s_mov_b32 s{S_T0}, {TS}
    v_mul_lo_u32 v{V_E0}, v{t + 5}, s{S_T0}
    s_waitcnt lgkmcnt(0)
    s_add_u32 s{S_OFFS}, s{S_REC}, {OFFS_BASE}
    s_addc_u32 s{S_OFFS + 1}, s{S_REC + 1}, 0
    s_and_b32 s{S_OFFS + 1}, s{S_OFFS + 1}, 0xffff
    s_mov_b32 s{S_OFFS + 2}, {NT * 1024}
    s_mov_b32 s{S_OFFS + 3}, 0x00020000
    buffer_load_dword v{t + 1}, v{t}, s[{S_OFFS}:{S_OFFS + 3}], s{S_BK4} offen
    s_and_b32 s{S_REC + 1}, s{S_REC + 1}, 0xffff
    s_mov_b32 s{S_REC + 2}, {NT * TS}
    s_mov_b32 s{S_REC + 3}, 0x00020000
    s_and_b32 s{S_MI + 1}, s{S_MI + 1}, 0xffff
    s_or_b32 s{S_MI + 1}, s{S_MI + 1}, 0x80000
    s_mov_b32 s{S_MI + 2}, {E}
    s_mov_b32 s{S_MI + 3}, 0x00020000
    s_mov_b32 s{S_IT}, 0
    s_mov_b32 s{S_REM}, -1
    s_mov_b32 s{S_MYINC}, 0""")
stamp()
w(f"""    s_barrier
    s_waitcnt vmcnt(0)
    v_and_b32 v{t + 2}, 0xffff, v{t + 1}               ; s3
    v_lshrrev_b32 v{t + 3}, 16, v{t + 1}               ; e3
    v_and_b32 v{t + 4}, 1, v{t + 1}
    v_mul_u32_u24 v{t + 4}, 3, v{t + 4}                ; relS
    v_sub_u32 v{t + 2}, v{t + 2}, v{t + 4}             ; hb
    v_sub_u32 v{t + 3}, v{t + 3}, v{t + 2}             ; relE
    v_lshl_add_u32 v{V_E0}, v{t + 2}, 1, v{V_E0}
    v_lshl_or_b32 v{V_E1}, v{t + 4}, 16, v{t + 3}
    v_cmp_lt_u32 vcc, v{t + 4}, v{t + 3}
    s_or_b32 s{S_TODO}, vcc_lo, vcc_hi""")
stamp()


def pop(tag, fetch):
    w(f"""    s_cmp_lg_u32 s{S_TODO}, 0
    s_cbranch_scc1 {tag}_have
    s_cmp_lg_u32 s{S_REM}, -1
    s_cbranch_scc1 {tag}_none
    v_and_b32 v{t}, 0xffff, v{V_E1}
    v_subrev_u32 v{t}, 192, v{t}
    v_max_i32 v{V_E1}, 0, v{t}
    v_add_u32 v{V_E0}, 384, v{V_E0}
    v_cmp_lt_u32 vcc, 0, v{V_E1}
    s_or_b32 s{S_TODO}, vcc_lo, vcc_hi
    s_cbranch_scc1 {tag}_have
    s_mov_b32 s{S_REM}, {DA}
    s_branch {tag}_none
{tag}_have:
    s_ff1_i32_b32 s{S_T0}, s{S_TODO}
    s_bitset0_b32 s{S_TODO}, s{S_T0}""")
    if fetch:
        w(f"""    s_lshl_b32 s{S_T0}, s{S_T0}, 2
    v_add_u32 v{t}, s{S_T0}, v{V_BASE}
    ds_bpermute_b32 v{V_W0}, v{t}, v{V_E0}
    ds_bpermute_b32 v{V_W1}, v{t}, v{V_E1}""")
    w(f"{tag}_none:")


def issue_rec(u, tag):
    R = V_REC[u]
    mA = S_MASK + u * 4
    mB = mA + 2
    sd0 = "src0_sel:DWORD src1_sel:WORD_0"
    sd1 = "src0_sel:DWORD src1_sel:WORD_1"
    w(f"""    s_waitcnt lgkmcnt(0)
    v_add_u32 v{t + 1}, v{V_W0}, v{V_L12}
    v_cmp_lt_u32_sdwa vcc, v{V_L6}, v{V_W1} {sd0}
    v_cmp_ge_u32_sdwa s[{mA}:{mA + 1}], v{V_L6}, v{V_W1} {sd1}
    v_cmp_lt_u32_sdwa s[{mB}:{mB + 1}], v{V_L6P}, v{V_W1} {sd0}
    s_or_b64 exec, vcc, 1
    buffer_load_dwordx3 v[{R}:{R + 2}], v{t + 1}, s[{S_REC}:{S_REC + 3}], 0 offen
    s_mov_b64 exec, -1
    s_and_b64 s[{mA}:{mA + 1}], s[{mA}:{mA + 1}], vcc""")
    pop(tag, True)


def place(u):
    if "xnoplace" in sys.argv:
        w(f"    s_add_u32 s{S_IT}, s{S_IT}, 1")
        return
    R = V_REC[u]
    mA = S_MASK + u * 4
    mB = mA + 2
    bA, bB, rA, rB, xA, xB = t + 4, t + 5, t + 6, t + 7, t + 8, t + 9
    sb3 = "dst_sel:DWORD dst_unused:UNUSED_PAD src0_sel:DWORD src1_sel:BYTE_3"
    w(f"""    v_lshlrev_b32_sdwa v{xA}, 2, v{R} {sb3}
    v_lshlrev_b32_sdwa v{xB}, 2, v{R + 2} {sb3}
    s_mov_b64 exec, s[{mA}:{mA + 1}]
    ds_add_rtn_u32 v{rA}, v{xA}, v{V_TWO} offset:{A_CNT}
    s_mov_b64 exec, s[{mB}:{mB + 1}]
    ds_add_rtn_u32 v{rB}, v{xB}, v{V_TWO} offset:{A_CNT}
    s_mov_b64 exec, -1
    v_mul_u32_u24_sdwa v{bA}, s{S_768}, v{R} {sb3}
    v_mul_u32_u24_sdwa v{bB}, s{S_768}, v{R + 2} {sb3}
    s_waitcnt lgkmcnt(0)
    v_cmp_lt_u32 vcc, 0xff, v{rA}
    s_and_b64 s[{S_K}:{S_K + 1}], vcc, s[{mA}:{mA + 1}]
    v_cmp_lt_u32 vcc, 0xff, v{rB}
    s_and_b64 s[{S_K2}:{S_K2 + 1}], vcc, s[{mB}:{mB + 1}]
    s_or_b64 vcc, s[{S_K}:{S_K + 1}], s[{S_K2}:{S_K2 + 1}]
    s_cbranch_scc0 a_noovf{u}
    v_mov_b32 v{xA}, 0
    s_mov_b64 exec, s[{S_K}:{S_K + 1}]
    ds_add_rtn_u32 v{rA}, v{xA}, v{V_TWO} offset:{A_OVF}
    s_mov_b64 exec, s[{S_K2}:{S_K2 + 1}]
    ds_add_rtn_u32 v{rB}, v{xA}, v{V_TWO} offset:{A_OVF}
    s_waitcnt lgkmcnt(0)
    v_lshrrev_b32 v{bB}, 8, v{rB}
    v_cmp_le_u32 vcc, {NOVB}, v{bB}
    v_add_u32 v{bB}, {NBIN}, v{bB}
    v_mul_u32_u24 v{bB}, s{S_768}, v{bB}
    v_and_b32 v{rB}, 0xff, v{rB}
    s_mov_b64 s[{S_K2}:{S_K2 + 1}], vcc
    s_mov_b64 exec, s[{S_K}:{S_K + 1}]
    v_lshrrev_b32 v{bA}, 8, v{rA}
    v_cmp_le_u32 vcc, {NOVB}, v{bA}
    v_add_u32 v{bA}, {NBIN}, v{bA}
    v_mul_u32_u24 v{bA}, s{S_768}, v{bA}
    v_and_b32 v{rA}, 0xff, v{rA}
    s_mov_b64 s[{S_K}:{S_K + 1}], vcc
    s_mov_b64 exec, -1
    s_or_b64 vcc, s[{S_K}:{S_K + 1}], s[{S_K2}:{S_K2 + 1}]
    s_cbranch_scc0 a_noovf{u}
    s_mov_b64 s[{S_RA}:{S_RA + 1}], s[{S_K}:{S_K + 1}]
    s_mov_b64 s[{S_RB}:{S_RB + 1}], s[{S_K2}:{S_K2 + 1}]
    s_andn2_b64 s[{mA}:{mA + 1}], s[{mA}:{mA + 1}], s[{S_K}:{S_K + 1}]
    s_andn2_b64 s[{mB}:{mB + 1}], s[{mB}:{mB + 1}], s[{S_K2}:{S_K2 + 1}]
    s_mov_b32 s{S_MYINC}, 1
a_noovf{u}:
    v_lshl_add_u32 v{xA}, v{rA}, 1, v{bA}
    v_lshl_add_u32 v{xB}, v{rB}, 1, v{bB}
    v_add_u32 v{rA}, v{rA}, v{bA}
    v_add_u32 v{rB}, v{rB}, v{bB}
    s_mov_b64 exec, s[{mA}:{mA + 1}]
    ds_write_b32 v{xA}, v{R} offset:{A_STG}
    ds_write_b16 v{rA}, v{R + 1} offset:{A_STG + 512}
    s_mov_b64 exec, s[{mB}:{mB + 1}]
    ds_write_b32 v{xB}, v{R + 2} offset:{A_STG}
    ds_write_b16_d16_hi v{rB}, v{R + 1} offset:{A_STG + 512}
    s_mov_b64 exec, -1
    s_cmp_lg_u32 s{S_MYINC}, 0
    s_cbranch_scc1 a_stop
    s_add_u32 s{S_IT}, s{S_IT}, 1""")


w(f"""    s_mov_b32 s{S_T1}, s{S_SKIP}
a_replay:
    s_cmp_eq_u32 s{S_T1}, 0
    s_cbranch_scc1 a_replay_done""")
pop("a_rp", False)
w(f"""    s_sub_u32 s{S_T1}, s{S_T1}, 1
    s_branch a_replay
a_replay_done:""")
for i in range(DA * 2):
    w(f"    s_mov_b64 s[{S_MASK + 2 * i}:{S_MASK + 2 * i + 1}], 0")
pop("a_p0", True)
for u in range(DA - 1):
    w(f"""    s_cmp_lg_u32 s{S_REM}, -1
    s_cbranch_scc1 a_pro_done""")
    issue_rec(u, f"a_pi{u}")
    if u == 0:
        w(f"""    s_and_b64 s[{S_MASK}:{S_MASK + 1}], s[{S_MASK}:{S_MASK + 1}], s[{S_RA}:{S_RA + 1}]
    s_and_b64 s[{S_MASK + 2}:{S_MASK + 3}], s[{S_MASK + 2}:{S_MASK + 3}], s[{S_RB}:{S_RB + 1}]
    s_mov_b64 s[{S_RA}:{S_RA + 1}], -1
    s_mov_b64 s[{S_RB}:{S_RB + 1}], -1""")
w("a_pro_done:")
if "pfA" in sys.argv:
    w(f"""    s_lshr_b32 s{S_T0}, s2, 3
    s_mul_i32 s{S_T0}, s{S_T0}, 12500
    v_lshlrev_b32 v{t + 2}, 4, v0
    v_add_u32 v{t + 2}, s{S_T0}, v{t + 2}
    v_cmp_gt_u32 vcc, 783, v0
    s_or_b64 exec, vcc, 1
    buffer_load_dword v{V_JUNK}, v{t + 2}, s[{S_MI}:{S_MI + 3}], 0 idxen
    s_mov_b64 exec, -1""")
w("a_loop:")
for u in range(DA):
    un = (u + DA - 1) % DA
    if u % 3 == 0 and "noprioA" not in sys.argv:
        w(f"""    s_cmp_lt_u32 s{S_IT}, 3
    s_cbranch_scc1 a_pr{u}
    s_setprio 2
    s_cmp_lt_u32 s{S_IT}, 6
    s_cbranch_scc1 a_pr{u}
    s_setprio 1
    s_cmp_lt_u32 s{S_IT}, 9
    s_cbranch_scc1 a_pr{u}
    s_setprio 0
a_pr{u}:""")
    w(f"""    s_cmp_lg_u32 s{S_REM}, -1
    s_cbranch_scc1 a_cd{u}""")
    issue_rec(un, f"a_li{u}")
    w(f"""    s_waitcnt vmcnt({DA - 1})
    s_branch a_go{u}
a_cd{u}:
    s_sub_u32 s{S_REM}, s{S_REM}, 1
    s_cmp_eq_u32 s{S_REM}, 0
    s_cbranch_scc1 a_end
    s_mov_b64 s[{S_MASK + un * 4}:{S_MASK + un * 4 + 1}], 0
    s_mov_b64 s[{S_MASK + un * 4 + 2}:{S_MASK + un * 4 + 3}], 0
    s_waitcnt vmcnt(0)
a_go{u}:""")
    place(u)
w(f"""    s_branch a_loop
a_stop:
    v_mov_b32 v{t}, 0
    v_mov_b32 v{t + 1}, 1
    ds_write_b32 v{t}, v{t + 1} offset:{A_INC}
a_end:
    s_add_u32 s{S_SKIP}, s{S_SKIP}, s{S_IT}
    s_load_dwordx2 s[{S_DIST}:{S_DIST + 1}], s[0:1], 24
    s_load_dwordx2 s[{S_CENT}:{S_CENT + 1}], s[0:1], 40
    s_load_dwordx2 s[{S_MB}:{S_MB + 1}], s[0:1], 0
    s_waitcnt vmcnt(0) lgkmcnt(0)
    s_load_dwordx4 s[{S_CENT}:{S_CENT + 3}], s[{S_CENT}:{S_CENT + 1}], 0
    s_and_b32 s{S_DIST + 1}, s{S_DIST + 1}, 0xffff
    s_mov_b32 s{S_DIST + 2}, {E * 2}
    s_mov_b32 s{S_DIST + 3}, 0x00020000
    s_and_b32 s{S_MB + 1}, s{S_MB + 1}, 0xffff
    s_mov_b32 s{S_MB + 2}, {E * 8}
    s_mov_b32 s{S_MB + 3}, 0x00020000""")
stamp()
w(f"""    s_barrier
    v_mov_b32 v{t}, 0
    ds_read_b64 v[{t + 2}:{t + 3}], v{t} offset:{A_OVF}""")
t2 = V_TB2
if DIAG:
    w("    v_mov_b32 v22, v43")
    _st["v"] = 22
w(f"""    s_cmp_ge_u32 s{S_WAVE}, {NPW}
    s_cbranch_scc1 b_consumer""")
NB2 = NITB * NPW
w(f"""    v_and_b32 v{t2}, 63, v0                       ; lane
    s_add_u32 s{S_T0}, s{S_WAVE}, s{S_ROT}
    v_mul_u32_u24 v{t2 + 1}, {NPW}, v{t2}
    v_add_u32 v{t2 + 1}, s{S_T0}, v{t2 + 1}
    v_subrev_u32 v{t2 + 2}, {NB2}, v{t2 + 1}
    v_min_u32 v{t2 + 1}, v{t2 + 1}, v{t2 + 2}
    v_min_u32 v{t2 + 2}, {NBIN - 1}, v{t2 + 1}
    v_lshlrev_b32 v{t2 + 2}, 2, v{t2 + 2}
    ds_read_b32 v{V_CN}, v{t2 + 2} offset:{A_CNT}
    v_lshlrev_b32 v{t2 + 3}, 3, v{t2}
    v_lshlrev_b32 v{V_L4}, 2, v{t2}
    s_mul_i32 s{S_T0}, s{S_T0}, {BSTR}""")
for j in range(NITB):
    w(f"""    v_add_u32 v{t2 + 6 + 2 * (j % 2)}, s{S_T0}, v{t2 + 3}
    v_add_u32 v{t2 + 7 + 2 * (j % 2)}, s{S_T0}, v{V_L4}
    s_add_u32 s{S_T0}, s{S_T0}, {NPW * BSTR}
    s_sub_u32 s{S_T1}, s{S_T0}, {NB2 * BSTR}
    s_min_u32 s{S_T0}, s{S_T0}, s{S_T1}
    ds_read_b64 v[{V_RW[j]}:{V_RW[j] + 1}], v{t2 + 6 + 2 * (j % 2)} offset:{A_STG}
    ds_read_b32 v{V_RA[j]}, v{t2 + 7 + 2 * (j % 2)} offset:{A_STG + 512}""")
w(f"""    s_waitcnt lgkmcnt(0)
    v_readfirstlane_b32 s{S_INC}, v{t + 3}
    v_min_u32 v{t + 2}, {NOVB * 256}, v{t + 2}
    v_subrev_u32 v{t2 + 5}, {NBIN}, v{t2 + 1}
    v_lshlrev_b32 v{t2 + 5}, 8, v{t2 + 5}
    v_sub_u32 v{t2 + 5}, v{t + 2}, v{t2 + 5}
    v_cmp_gt_u32 vcc, {NBIN}, v{t2 + 1}
    v_max_i32 v{t2 + 5}, 0, v{t2 + 5}
    s_barrier
    v_cndmask_b32 v{V_CN}, v{t2 + 5}, v{V_CN}, vcc
    v_min_u32 v{V_CN}, 0x100, v{V_CN}""")
stamp(3)


def gather(j):
    u = j % 3
    B = V_BLK[u]
    mA, mB = BM[u]
    W = V_RW[j]
    w(f"""    v_readlane_b32 s{S_T0}, v{V_CN}, {j}
    v_lshrrev_b32 v{t2}, 13, v{W}
    v_lshrrev_b32 v{t2 + 1}, 13, v{W + 1}
    s_sub_u32 s{S_T1}, s{S_T0}, 2
    v_cmp_gt_u32 s[{mA}:{mA + 1}], s{S_T0}, v{V_L4}
    v_cmp_gt_i32 s[{mB}:{mB + 1}], s{S_T1}, v{V_L4}
    s_or_b64 exec, s[{mA}:{mA + 1}], 1
    buffer_load_dwordx2 v[{B}:{B + 1}], v{t2}, s[{S_MI}:{S_MI + 3}], 0 idxen
    s_or_b64 exec, s[{mB}:{mB + 1}], 1
    buffer_load_dwordx2 v[{B + 4}:{B + 5}], v{t2 + 1}, s[{S_MI}:{S_MI + 3}], 0 idxen
    s_mov_b64 exec, -1""")


def build(j, vm):
    u = j % 3
    c_, k = JMAP[j]
    p = c_ % 2
    so = (k + 5 * p) * 2048
    B = V_BLK[u]
    mA, mB = BM[u]
    W, A = V_RW[j], V_RA[j]
    t = t2
    idx0 = so // 16
    a2, c1, c2, c3 = t + 2, t + 4, t + 6, t + 8
    K0, K1 = V_KC
    lo = "op_sel:[0,0] op_sel_hi:[1,0]"
    hi = "op_sel:[0,1] op_sel_hi:[1,1]"
    w(f"""    v_and_b32 v{t + 10}, 0x1ffc, v{W}
    v_and_b32 v{t + 11}, 0x1ffc, v{W + 1}
    v_add_u32 v{t}, {idx0}, v{V_SI}
    v_add_u32 v{t + 1}, {idx0 + 64}, v{V_SI}
    s_mov_b64 exec, s[{mA}:{mA + 1}]
    ds_wrxchg_rtn_b32 v{B + 3}, v{t + 10}, v{t} offset:{HEAD[p]}
    s_mov_b64 exec, s[{mB}:{mB + 1}]
    ds_wrxchg_rtn_b32 v{B + 7}, v{t + 11}, v{t + 1} offset:{HEAD[p]}
    s_mov_b64 exec, -1
    v_lshlrev_b32 v{a2}, 16, v{A}
    v_and_b32 v{a2 + 1}, 0xffff0000, v{A}
    v_pk_mul_f32 v[{c3}:{c3 + 1}], v[{a2}:{a2 + 1}], v[{K0}:{K0 + 1}] {hi}
    v_pk_mul_f32 v[{c1}:{c1 + 1}], v[{a2}:{a2 + 1}], v[{K0}:{K0 + 1}] {lo}
    v_cvt_pk_bf16_f32 v{c3 + 1}, v{c3}, v{c3 + 1}
    v_fract_f32 v{c1}, v{c1}
    v_fract_f32 v{c1 + 1}, v{c1 + 1}
    v_lshlrev_b32 v{c3}, 16, v{c3 + 1}
    v_and_b32 v{c3 + 1}, 0xffff0000, v{c3 + 1}
    v_cos_f32 v{c1}, v{c1}
    v_cos_f32 v{c1 + 1}, v{c1 + 1}
    v_pk_mul_f32 v[{c3}:{c3 + 1}], v[{c3}:{c3 + 1}], v[{K0}:{K0 + 1}] {lo}
    v_pk_add_f32 v[{c2}:{c2 + 1}], v[{c1}:{c1 + 1}], v[{c1}:{c1 + 1}]
    v_fract_f32 v{c3}, v{c3}
    v_fract_f32 v{c3 + 1}, v{c3 + 1}
    v_pk_fma_f32 v[{c2}:{c2 + 1}], v[{c2}:{c2 + 1}], v[{c1}:{c1 + 1}], v[{K1}:{K1 + 1}] op_sel:[0,0,0] op_sel_hi:[1,1,0]
    v_cos_f32 v{c3}, v{c3}
    v_cos_f32 v{c3 + 1}, v{c3 + 1}
    v_cvt_pk_bf16_f32 v{B + 2}, v{c1}, v{c2}
    v_cvt_pk_bf16_f32 v{B + 6}, v{c1 + 1}, v{c2 + 1}
    v_cvt_pk_bf16_f32 v{t}, v{c3}, v{c3 + 1}
    s_waitcnt lgkmcnt(0)
    v_lshl_or_b32 v{B + 3}, v{t}, 16, v{B + 3}
    v_and_or_b32 v{B + 7}, v{t}, v{V_HIM}, v{B + 7}
    s_waitcnt vmcnt({vm})
    ds_write_b128 v{V_SL}, v[{B}:{B + 3}] offset:{so}
    ds_write_b128 v{V_SL}, v[{B + 4}:{B + 7}] offset:{so + 1024}""")


w("    s_setprio 3")
gather(0)
gather(1)
w(f"""    v_mov_b32 v{V_KC[0]}, 0.15915494
    v_mov_b32 v{V_KC[0] + 1}, 0x40400000
    v_mov_b32 v{V_KC[1]}, -1.0
    v_mov_b32 v{V_HIM}, 0xffff0000
    s_mul_i32 s{S_T0}, s{S_WAVE}, {WREG}
    s_add_u32 s{S_T0}, s{S_T0}, {BUF0}
    v_lshlrev_b32 v{V_SL}, 2, v{V_L4}
    v_add_u32 v{V_SL}, s{S_T0}, v{V_SL}
    v_lshrrev_b32 v{V_SI}, 4, v{V_SL}
    s_barrier""")
stamp(4)
for j in range(NITB):
    c_, k_ = JMAP[j]
    w(f"    s_setprio {min(2, PAT[c_] - 1 - k_) + (0 if 'consprio' in sys.argv else 1)}")
    if j + 2 < NITB:
        gather(j + 2)
        vm = 4
    else:
        vm = 2 * (NITB - 1 - j)
    build(j, vm)
    if k_ == PAT[c_] - 1:
        w("    s_waitcnt lgkmcnt(0)")
        stamp(10 + 2 * c_)
        w("    s_barrier")
        stamp(11 + 2 * c_)
w(f"""    s_cmp_lg_u32 s{S_INC}, 0
    s_cbranch_scc0 b_pdone
    s_barrier
    s_branch a_batch
b_pdone:""")
stamp(7)
stamp_flush(1, S_WAVE, 36)
w("    s_endpgm")

c2 = 4
w(f"""b_consumer:
    s_setprio 3
    v_subrev_u32 v{V_CH}, {NPW * 64}, v0
    v_add_u32 v1, s{S_E0}, v{V_CH}
    v_lshlrev_b32 v{V_CH}, 2, v{V_CH}
    s_waitcnt lgkmcnt(0)
    v_readfirstlane_b32 s{S_INC}, v{t + 3}
    v_lshlrev_b32 v1, 1, v1""")
d0, tmp = 16, 24
for q in range(4):
    w(f"    buffer_load_ushort v{d0 + q}, v1, s[{S_DIST}:{S_DIST + 3}], 0 offen offset:{q * 1024}")
w(f"""    v_mov_b32 v4, {NIL}
    v_mov_b32 v5, {NIL}
    v_mov_b32 v6, {NIL}
    v_mov_b32 v7, {NIL}
    v_mov_b32 v8, 0
    v_mov_b32 v9, 0
    v_mov_b32 v10, 0
    v_mov_b32 v11, {NIL}
    v_lshlrev_b32 v2, 2, v{V_CH}
    v_cmp_gt_u32 vcc, 4608, v2
    s_barrier
    ds_write_b128 v2, v[4:7]
    s_mov_b64 exec, vcc
    ds_write_b128 v2, v[4:7] offset:8192
    s_mov_b64 exec, -1
    ds_write_b128 v8, v[8:11] offset:{B_DUMMY}
    s_waitcnt lgkmcnt(0)
    s_barrier
    s_setprio 0
    s_load_dwordx8 s[8:15], s[0:1], 56
    s_waitcnt vmcnt(0)""")
for i in range(4):
    w(f"    v_lshlrev_b32 v{d0 + i}, 16, v{d0 + i}")
for p in range(4):
    w(f"""    s_lshl_b32 s{S_T0}, s{S_CENT + p}, 16
    s_and_b32 s{S_T1}, s{S_CENT + p}, 0xffff0000""")
    for e in range(4):
        a, b, tt = tmp + 2 * (e % 2), tmp + 1 + 2 * (e % 2), V_PK[e] + p
        d = d0 + e
        w(f"""    v_subrev_f32 v{a}, s{S_T0}, v{d}
    v_subrev_f32 v{b}, s{S_T1}, v{d}
    v_cvt_pk_bf16_f32 v{tt}, v{a}, v{b}
    v_lshlrev_b32 v{a}, 16, v{tt}
    v_and_b32 v{b}, 0xffff0000, v{tt}
    v_mul_f32 v{a}, v{a}, v{a}
    v_mul_f32 v{b}, v{b}, v{b}
    v_cvt_pk_bf16_f32 v{tt}, v{a}, v{b}
    v_lshlrev_b32 v{a}, 16, v{tt}
    v_and_b32 v{b}, 0xffff0000, v{tt}
    v_mul_f32 v{a}, 0xc1200000, v{a}
    v_mul_f32 v{b}, 0xc1200000, v{b}
    v_cvt_pk_bf16_f32 v{tt}, v{a}, v{b}
    v_lshlrev_b32 v{a}, 16, v{tt}
    v_and_b32 v{b}, 0xffff0000, v{tt}
    v_mul_f32 v{a}, 0x3fb8aa3b, v{a}
    v_mul_f32 v{b}, 0x3fb8aa3b, v{b}
    v_exp_f32 v{a}, v{a}
    v_exp_f32 v{b}, v{b}
    s_nop 0
    v_cvt_pk_bf16_f32 v{tt}, v{a}, v{b}""")
w(f"""    s_waitcnt lgkmcnt(0)
    s_load_dwordx16 s[{SW_RBF}:{SW_RBF + 15}], s[8:9], 0
    s_load_dwordx16 s[{SW_SBF}:{SW_SBF + 15}], s[10:11], 0
    s_load_dwordx16 s[{SW_SBF + 16}:{SW_SBF + 31}], s[10:11], 64
    s_load_dwordx16 s[{SW_SBF + 32}:{SW_SBF + 47}], s[10:11], 128
    s_mov_b64 s[100:101], s[14:15]
    s_load_dwordx8 s[8:15], s[12:13], 0
    s_waitcnt lgkmcnt(0)""")


def gr_code(edges, G, Rt):
    for p in range(4):
        for dp in range(2):
            sa, sb = SW_RBF + (2 * p) * 2 + dp, SW_RBF + (2 * p + 1) * 2 + dp
            w(f"""    s_pack_ll_b32_b16 s{S_T0}, s{sa}, s{sb}
    s_pack_hh_b32_b16 s{S_T1}, s{sa}, s{sb}""")
            for i, q in enumerate(edges):
                for h, st_ in ((0, S_T0), (1, S_T1)):
                    g = Rt[i] + dp * 2 + h
                    c = "0" if p == 0 else f"v{g}"
                    w(f"    v_dot2_f32_bf16 v{g}, v{V_PK[q] + p}, s{st_}, {c}")
    for l in range(3):
        for p in range(4):
            r0 = (2 * p) * 3 + l
            r1 = (2 * p + 1) * 3 + l
            for dp in range(2):
                sa, sb = SW_SBF + r0 * 2 + dp, SW_SBF + r1 * 2 + dp
                w(f"""    s_pack_ll_b32_b16 s{S_T0}, s{sa}, s{sb}
    s_pack_hh_b32_b16 s{S_T1}, s{sa}, s{sb}""")
                for i, q in enumerate(edges):
                    for h, st_ in ((0, S_T0), (1, S_T1)):
                        g = G[i] + 4 * l + dp * 2 + h
                        c = "0" if p == 0 else f"v{g}"
                        w(f"    v_dot2_f32_bf16 v{g}, v{V_PK[q] + p}, s{st_}, {c}")
    for i, q in enumerate(edges):
        w(f"""    v_cvt_pk_bf16_f32 v{G[i] + 12}, v{Rt[i]}, v{Rt[i] + 1}
    v_cvt_pk_bf16_f32 v{G[i] + 13}, v{Rt[i] + 2}, v{Rt[i] + 3}""")
    w("    s_nop 2")


gr_code([0, 1, 2], V_G, [16, 24, 124])
w(f"    s_setprio {3 if 'consprio' in sys.argv else 0}")


def prefetch(n, tag):
    pass


PFN = 0


def walk(p, n, tag):
    r = [c2 + 4 * i for i in range(4)]
    M0, C1 = 20, 42
    ad, nil = 1, 2
    for i in range(n):
        w(f"    ds_read_b32 v{r[i]}, v{V_CH} offset:{HEAD[p] + i * 2048}")
    w(f"    v_mov_b32 v{nil}, {NIL}")
    for i in range(n):
        w(f"""    s_waitcnt lgkmcnt({n - 1 - i + 2 * i})
    v_lshlrev_b32 v{ad}, 4, v{r[i]}
    ds_write_b32 v{V_CH}, v{nil} offset:{HEAD[p] + i * 2048}
    ds_read_b128 v[{r[i]}:{r[i] + 3}], v{ad}""")
    w(f"""    v_mov_b32 v{nil}, {B_DUMMY}
{tag}:""")
    for i in range(n):
        R, Sx = r[i], V_S[i]
        X = 24
        w(f"""    s_waitcnt lgkmcnt({n - 1})
    v_lshlrev_b32_sdwa v{ad}, 4, v{R + 3} dst_sel:DWORD dst_unused:UNUSED_PAD src0_sel:DWORD src1_sel:WORD_0
    v_lshlrev_b32 v{M0}, 16, v{R}
    v_lshlrev_b32 v{M0 + 1}, 16, v{R + 1}
    v_lshlrev_b32 v{C1}, 16, v{R + 2}
    v_and_b32 v{X}, 0xffff0000, v{R}
    v_and_b32 v{X + 1}, 0xffff0000, v{R + 1}
    v_and_b32 v{X + 2}, 0xffff0000, v{R + 2}
    v_and_b32 v{X + 3}, 0xffff0000, v{R + 3}
    ds_read_b128 v[{R}:{R + 3}], v{ad}""")
        if i == 0:
            w(f"    v_cmp_ne_u32 vcc, v{ad}, v{nil}")
        else:
            w(f"    v_cmp_ne_u32 s[{S_K}:{S_K + 1}], v{ad}, v{nil}")
        for l in range(3):
            cp = C1 if l == 0 else X + 2
            sel = "op_sel:[0,1,0] op_sel_hi:[1,1,1]" if l == 2 else "op_sel:[0,0,0] op_sel_hi:[1,0,1]"
            for h, mm in ((0, M0), (1, X)):
                s_ = Sx + 4 * l + 2 * h
                w(f"    v_pk_fma_f32 v[{s_}:{s_ + 1}], v[{mm}:{mm + 1}], v[{cp}:{cp + 1}], v[{s_}:{s_ + 1}] {sel}")
        if i > 0:
            w(f"    s_or_b64 vcc, vcc, s[{S_K}:{S_K + 1}]")
    w(f"""    s_cbranch_vccnz {tag}
    s_waitcnt lgkmcnt(0)""")


w(f"""    s_mov_b32 s{S_REM}, {NCHK}
b_cloop:""")
for p in range(2):
    w("    s_barrier")
    prefetch(PFN, f"b_pfl{p}")
    w(f"""    s_cmp_eq_u32 s{S_WAVE}, {NPW}
    s_cbranch_scc1 b_w4{p}""")
    walk(p, 3, f"b_wa{p}")
    w(f"""    s_branch b_wdone{p}
b_w4{p}:""")
    walk(p, 4, f"b_wb{p}")
    w(f"b_wdone{p}:")
    stamp(8 + p)
    w(f"""    s_sub_u32 s{S_REM}, s{S_REM}, 1
    s_cmp_eq_u32 s{S_REM}, 0
    s_cbranch_scc1 b_cend""")
w(f"""    s_branch b_cloop
b_cend:
    s_waitcnt vmcnt(0)
    s_cmp_lg_u32 s{S_INC}, 0
    s_cbranch_scc0 b_final
    s_barrier
    s_branch a_batch
b_final:
    s_load_dwordx8 s[16:23], s[100:101], 0            ; w_up
    s_load_dwordx2 s[28:29], s[0:1], 88               ; out
    v_lshrrev_b32 v1, 2, v{V_CH}
    v_add_u32 v1, s{S_E0}, v1
    v_add_u32 v2, 512, v1
    buffer_load_dwordx2 v[{V_MR[0]}:{V_MR[0] + 1}], v1, s[{S_MI}:{S_MI + 3}], 0 idxen
    buffer_load_dwordx2 v[{V_MR[1]}:{V_MR[1] + 1}], v2, s[{S_MI}:{S_MI + 3}], 0 idxen
    v_add_u32 v2, 1024, v1
    s_lshl_b32 s{S_E0}, s{S_E0}, 3
    buffer_load_dwordx2 v[{V_MR[2]}:{V_MR[2] + 1}], v2, s[{S_MI}:{S_MI + 3}], 0 idxen
    v_lshlrev_b32 v{V_CH}, 1, v{V_CH}                 ; c*8""")
stamp(6)
SWD2, SWU2, S_OUT = 8, 16, 28


def fin_group(edges, G, first):
    R = [dict(AG=4 + 8 * i, U=8 + 8 * i) for i in range(len(edges))]
    if DIAG:
        R[-1] = dict(AG=V_S[0], U=24) if len(edges) == 3 else R[-1]
    for l in range(3):
        for k in range(4):
            for dp in range(2):
                sg = SWD2 + k * 2 + dp
                w(f"""    s_lshl_b32 s{S_T0}, s{sg}, 16
    s_and_b32 s{S_T1}, s{sg}, 0xffff0000""")
                for i, q in enumerate(edges):
                    for h, st_ in ((0, S_T0), (1, S_T1)):
                        u_ = R[i]['U'] + dp * 2 + h
                        op = "v_mul_f32" if k == 0 else "v_fmac_f32"
                        w(f"    {op} v{u_}, s{st_}, v{V_S[q] + 4 * l + [0, 2, 1, 3][k]}")
        for i, q in enumerate(edges):
            for j in range(4):
                op = "v_mul_f32" if l == 0 else "v_fmac_f32"
                w(f"    {op} v{R[i]['AG'] + j}, v{G[i] + 4 * l + j}, v{R[i]['U'] + j}")
    if first:
        w(f"""    s_waitcnt lgkmcnt(0)
    s_and_b32 s{S_OUT + 1}, s{S_OUT + 1}, 0xffff
    s_mov_b32 s{S_OUT + 2}, {E * 8}
    s_mov_b32 s{S_OUT + 3}, 0x00020000""")
    for k in range(4):
        for dp in range(2):
            sg = SWU2 + k * 2 + dp
            w(f"""    s_lshl_b32 s{S_T0}, s{sg}, 16
    s_and_b32 s{S_T1}, s{sg}, 0xffff0000""")
            for i, q in enumerate(edges):
                for h, st_ in ((0, S_T0), (1, S_T1)):
                    u_ = R[i]['U'] + dp * 2 + h
                    op = "v_mul_f32" if k == 0 else "v_fmac_f32"
                    w(f"    {op} v{u_}, s{st_}, v{R[i]['AG'] + k}")
    w("    s_waitcnt vmcnt(0)")
    for i, q in enumerate(edges):
        for dp in range(2):
            u0 = R[i]['U'] + 2 * dp
            rp = G[i] + 12 + dp
            mr = V_MR[q] + dp
            a, b = R[i]['AG'], R[i]['AG'] + 1
            w(f"""    v_cvt_pk_bf16_f32 v{u0 + 1}, v{u0}, v{u0 + 1}
    v_lshlrev_b32 v{a}, 16, v{rp}
    v_and_b32 v{b}, 0xffff0000, v{rp}
    v_lshlrev_b32 v{u0}, 16, v{u0 + 1}
    v_and_b32 v{u0 + 1}, 0xffff0000, v{u0 + 1}
    v_mul_f32 v{u0}, v{u0}, v{a}
    v_mul_f32 v{u0 + 1}, v{u0 + 1}, v{b}
    v_cvt_pk_bf16_f32 v{u0 + 1}, v{u0}, v{u0 + 1}
    v_lshlrev_b32 v{a}, 16, v{mr}
    v_and_b32 v{b}, 0xffff0000, v{mr}
    v_lshlrev_b32 v{u0}, 16, v{u0 + 1}
    v_and_b32 v{u0 + 1}, 0xffff0000, v{u0 + 1}
    v_add_f32 v{u0}, v{u0}, v{a}
    v_add_f32 v{u0 + 1}, v{u0 + 1}, v{b}
    v_cvt_pk_bf16_f32 v{rp}, v{u0}, v{u0 + 1}""")
        w(f"""    s_add_u32 s{S_T0}, s{S_E0}, {q * 4096}
    buffer_store_dwordx2 v[{G[i] + 12}:{G[i] + 13}], v{V_CH}, s[{S_OUT}:{S_OUT + 3}], s{S_T0} offen""")


fin_group([0, 1, 2], V_G, True)
w(f"""    s_cmp_lg_u32 s{S_WAVE}, {NPW}
    s_cbranch_scc1 b_fin_done
    v_cmp_gt_u32 vcc, {(EO - 1536) * 8}, v{V_CH}
    v_add_u32 v2, 1536, v1
    buffer_load_dwordx2 v[{V_MR[3]}:{V_MR[3] + 1}], v2, s[{S_MI}:{S_MI + 3}], 0 idxen
    v_cndmask_b32 v{V_CH}, 2.0, v{V_CH}, vcc""")
gr_code([3], [44], [60])
fin_group([3], [44], False)
w("b_fin_done:")
stamp(7)
stamp_flush(1, S_WAVE, 36)
w("""p2_done:
    s_endpgm""")
w(kd("acc_kernel", 128, 102))
print("\n".join(out))
```

```python
import sys
E = 400000
T = 6400000
EO = 1563
MAGIC = -(-(1 << 32) // EO)
S = 12500
NT = 512
TS = 75008
OFFS_BASE = 40 * 1024 * 1024
assert all(((i * MAGIC) >> 32) == i // EO for i in range(0, E, 1))
assert MAGIC < (1 << 24)

HDR = open('standalone__molecular_angular_gemnet__graph.s.ref').read().split('; Override launch')[0]
out = []


def w(s):
    out.append(s)


def kd(name, vgpr, sgpr):
    return f""".section .rodata,"a"
.p2align 6
.amdhsa_kernel {name}
  .amdhsa_next_free_vgpr {vgpr}
  .amdhsa_next_free_sgpr {sgpr}
  .amdhsa_accum_offset {(vgpr + 3) // 4 * 4}
  .amdhsa_group_segment_fixed_size 0
  .amdhsa_kernarg_size 112
  .amdhsa_user_sgpr_count 2
  .amdhsa_user_sgpr_kernarg_segment_ptr 1
  .amdhsa_system_sgpr_workgroup_id_x 1
  .amdhsa_float_denorm_mode_32 3
.end_amdhsa_kernel
.text
"""


def head(name):
    return f""".globl {name}
.p2align 8
.type {name},@function
{name}:"""


def srd(d, b, nbytes):
    return f"""    s_mov_b32 s{d}, s{b}
    s_and_b32 s{d + 1}, s{b + 1}, 0xffff
    s_mov_b32 s{d + 2}, {nbytes}
    s_mov_b32 s{d + 3}, 0x00020000"""


DIAG = "diag" in sys.argv
STAMP_BASE = 200 * 1024 * 1024
_st = {"n": 0, "s": 0}


def stamp(k=None):
    if not DIAG:
        return
    if k is None:
        k = _st["n"]
    _st["n"] = k + 1
    b = _st["s"]
    v = _st["v"]
    w(f"""    s_memrealtime vcc
    s_waitcnt lgkmcnt(0)
    v_writelane_b32 v{v}, vcc_lo, {k}""")


def stamp_flush(kid, swave, b, wgmask=255):
    if not DIAG:
        return
    v = _st['v']
    w(f"""    s_load_dwordx2 s[{b}:{b + 1}], s[0:1], 104
    s_waitcnt lgkmcnt(0)
    s_add_u32 s{b}, s{b}, {STAMP_BASE + kid * 4 * 1024 * 1024}
    s_addc_u32 s{b + 1}, s{b + 1}, 0
    s_and_b32 s{b + 2}, s2, {wgmask}
    s_lshl_b32 s{b + 2}, s{b + 2}, 4
    s_add_u32 s{b + 2}, s{b + 2}, s{swave}
    s_lshl_b32 s{b + 2}, s{b + 2}, 8
    v_and_b32 v1, 63, v0
    v_lshlrev_b32 v1, 2, v1
    v_add_u32 v1, s{b + 2}, v1
    global_store_dword v1, v{v}, s[{b}:{b + 1}]""")
    sys.stderr.write(f"kernel {kid}: {_st['n']} stamps\n")


P1_LDS = 1024 + TS
ROTN = 1
for a_ in sys.argv:
    if a_.startswith('rot='):
        ROTN = int(a_[4:])
NBIN = 196
NBLK = 209
BSTR = 776
NOVB = (NBLK - NBIN) if "smallovf" not in sys.argv else 1
A_CNT = 0
A_OVF = 1008
A_INC = A_OVF + 4
A_STG = 1024
assert A_STG + NBLK * BSTR <= 163840
NPW = 8
KCH = 4
HEAD = [0, 6400]
B_DUMMY = 12800
BUF0 = 13056
WREG = 9 * 2048
assert BUF0 + NPW * WREG <= 163840
PAT = [5, 4, 5, 4, 5, 4]
for a_ in sys.argv:
    if a_.startswith("pat="):
        PAT = [int(x) for x in a_[4:].split(",")]
NIL = B_DUMMY // 16
NITB = -(-NBLK // NPW)
assert sum(PAT) == NITB and all(n <= (5, 4)[c % 2] for c, n in enumerate(PAT))
NCHK = len(PAT)
JMAP = [(c, k) for c, n in enumerate(PAT) for k in range(n)]
ST_FL = " sc1" if "nosc1" not in sys.argv else ""

w(HDR.rstrip("\n"))
w(f"; @launch kernel=part_kernel grid=(512,1,1) block=(512,1,1) lds={P1_LDS}")
w(f"; @launch kernel=acc_kernel grid=(256,1,1) block=(1024,1,1) lds=163840")
w('.amdgcn_target "amdgcn-amd-amdhsa--gfx950"\n.text')

w(head("part_kernel"))
RB = 16
KB = 88
TMP = 4
_st.update(n=0, v=116)
w(f"""    s_cmp_ge_u32 s2, {NT}
    s_cbranch_scc1 p1_done
    s_load_dwordx4 s[4:7], s[0:1], 8
    s_load_dwordx2 s[28:29], s[0:1], 32    ; angle
    s_load_dwordx2 s[30:31], s[0:1], 104   ; ws
    s_load_dwordx2 s[40:41], s[0:1], 0     ; m
    s_load_dwordx2 s[44:45], s[0:1], 24    ; dist
    v_lshlrev_b32 v1, 4, v0
    v_lshlrev_b32 v2, 3, v0
    v_mov_b32 v3, 3
    v_readfirstlane_b32 s3, v0
    s_lshr_b32 s3, s3, 6
    s_mul_i32 s32, s2, {S * 4}
    s_mul_i32 s33, s2, {S * 2}
    s_mov_b32 s34, {MAGIC}
    s_mov_b32 s35, {(-EO * 4) & 0xffffffff}
    v_lshlrev_b32 v4, 2, v0
    v_mov_b32 v5, 0
    v_cmp_gt_u32 vcc, 256, v0
    s_mov_b64 exec, vcc
    ds_write_b32 v4, v5
    s_mov_b64 exec, -1
    v_add_u32 v12, 1024, v1
    v_add_u32 v13, {1024 + 65536}, v1
    v_cmp_gt_u32 vcc, {TS // 16 - 9 * 512}, v0
    s_nop 1
    v_cndmask_b32 v14, 2.0, v1, vcc
    s_waitcnt lgkmcnt(0)
    s_barrier""")
stamp()
w(srd(8, 4, T * 4))
w(srd(12, 6, T * 4))
w(srd(16, 28, T * 2))
w(srd(20, 30, NT * TS))
w(f"""    s_add_u32 s30, s30, {OFFS_BASE}
    s_addc_u32 s31, s31, 0""")
w(srd(24, 30, NT * 1024))


def p1_loads(r):
    b = RB + r * 10
    w(f"""    s_add_u32 s36, s32, {r * 8192}
    s_add_u32 s37, s33, {r * 4096}
    buffer_load_dwordx4 v[{b + 4}:{b + 7}], v1, s[12:15], s36 offen
    buffer_load_dwordx4 v[{b}:{b + 3}], v1, s[8:11], s36 offen
    buffer_load_dwordx2 v[{b + 8}:{b + 9}], v2, s[16:19], s37 offen""")


NPART = S // 4 - 6 * 512
PMASK = (1 << NPART) - 1


def wave0_partial(tag, fn):
    w(f"""    s_cmp_lg_u32 s3, 0
    s_cbranch_scc1 {tag}
    s_mov_b32 exec_lo, {PMASK & 0xffffffff}
    s_mov_b32 exec_hi, {PMASK >> 32}""")
    fn()
    w(f"""    s_mov_b64 exec, -1
{tag}:""")


def p1_hist(r):
    b = RB + r * 10
    for i in range(4):
        vin = b + i
        vo = b + 4 + i
        t = TMP + i
        w(f"""    v_mul_hi_u32_u24 v{t}, s34, v{vo}
    v_lshlrev_b32 v{vo}, 2, v{vo}
    v_mad_i32_i24 v{vo}, v{t}, s35, v{vo}
    v_lshl_or_b32 v{vin}, v{vin}, 13, v{vo}
    v_lshlrev_b32 v{vo}, 2, v{t}
    ds_add_rtn_u32 v{KB + r * 4 + i}, v{vo}, v3""")


def p1_base(r):
    b = RB + r * 10
    for i in range(4):
        vo = b + 4 + i
        w(f"    ds_read_b32 v{vo}, v{vo}")


def p1_scatter(r):
    b = RB + r * 10
    for i in range(4):
        vin = b + i
        vo = b + 4 + i
        k = KB + r * 4 + i
        t = TMP + i
        va = b + 8 + i // 2
        wr = "ds_write_b16" if i % 2 == 0 else "ds_write_b16_d16_hi"
        w(f"""    v_add_lshl_u32 v{k}, v{vo}, v{k}, 1
    v_and_b32 v{t}, 2, v{k}
    v_add_u32 v{vo}, v{k}, v{t}
    v_mad_i32_i24 v{k}, v{t}, -2, v{k}
    ds_write_b32 v{vo}, v{vin}
    {wr} v{k}, v{va} offset:4""")


if "notouch" not in sys.argv:
    w(f"""    s_cmp_lg_u32 s3, 7
    s_cbranch_scc1 p1_notouch
    s_and_b32 s41, s41, 0xffff
    s_mov_b32 s42, {E * 8}
    s_mov_b32 s43, 0x00020000
    s_and_b32 s45, s45, 0xffff
    s_mov_b32 s46, {E * 2}
    s_mov_b32 s47, 0x00020000
    v_and_b32 v6, 63, v0
    v_lshlrev_b32 v6, 7, v6
    s_mul_i32 s36, s2, 6272
    s_mul_i32 s37, s2, 1664
    s_mov_b64 exec, {(1 << 49) - 1:#x}
    buffer_load_dword v86, v6, s[40:43], s36 offen
    s_mov_b64 exec, 0x1fff
    buffer_load_dword v87, v6, s[44:47], s37 offen
    s_mov_b64 exec, -1
p1_notouch:""".replace("s_mov_b64 exec, 0x1ffffffffffff", "s_mov_b32 exec_hi, 0x1ffff"))
w("""    s_setprio 1
    s_cmp_ge_u32 s2, 256
    s_cbranch_scc1 p1_lowprio
    s_setprio 3
p1_lowprio:""")
wave0_partial("p1_l3skip", lambda: p1_loads(6))
for r in range(6):
    p1_loads(r)
w("    s_setprio 2")
stamp()
for r in range(6):
    w(f"    s_waitcnt vmcnt({15 - 3 * r})")
    p1_hist(r)
    if r == 0:
        wave0_partial("p1_h3skip", lambda: p1_hist(6))
w("    s_waitcnt lgkmcnt(0)")
stamp()
w(f"""    s_barrier
    s_cmp_lg_u32 s3, 0
    s_cbranch_scc1 p1_scan_skip
    ds_read_b128 v[4:7], v1
    s_waitcnt lgkmcnt(0)
    v_add_u32 v5, v4, v5
    v_add_u32 v6, v5, v6
    v_add_u32 v7, v6, v7
    v_mov_b32 v8, v7
    s_nop 1
    v_add_u32_dpp v8, v8, v8 row_shr:1 row_mask:0xf bank_mask:0xf bound_ctrl:0
    s_nop 1
    v_add_u32_dpp v8, v8, v8 row_shr:2 row_mask:0xf bank_mask:0xf bound_ctrl:0
    s_nop 1
    v_add_u32_dpp v8, v8, v8 row_shr:4 row_mask:0xf bank_mask:0xf bound_ctrl:0
    s_nop 1
    v_add_u32_dpp v8, v8, v8 row_shr:8 row_mask:0xf bank_mask:0xf bound_ctrl:0
    s_nop 1
    v_add_u32_dpp v8, v8, v8 row_bcast:15 row_mask:0xa bank_mask:0xf
    s_nop 1
    v_add_u32_dpp v8, v8, v8 row_bcast:31 row_mask:0xc bank_mask:0xf
    v_sub_u32 v9, v8, v7
    v_add_u32 v10, v9, v4
    v_add_u32 v11, v9, v5
    v_add_u32 v15, v9, v6
    v_lshl_or_b32 v4, v10, 16, v9
    v_lshl_or_b32 v5, v11, 16, v10
    v_lshl_or_b32 v6, v15, 16, v11
    v_lshl_or_b32 v7, v8, 16, v15
    v_add_u32 v8, 512, v9
    v_add_u32 v9, 512, v10
    v_add_u32 v10, 512, v11
    v_add_u32 v11, 512, v15
    ds_write_b128 v1, v[8:11]
    s_lshl_b32 s36, s2, 10
    s_waitcnt lgkmcnt(0)
    s_barrier
    buffer_store_dwordx4 v[4:7], v1, s[24:27], s36 offen{ST_FL}
    s_nop 1
    s_branch p1_scan_done
p1_scan_skip:
    s_barrier
p1_scan_done:""")
stamp()
wave0_partial("p1_b3skip", lambda: (p1_base(6), w("    s_waitcnt lgkmcnt(0)"), p1_scatter(6)))
p1_base(0)
p1_base(1)
for r in range(6):
    if r + 2 < 6:
        p1_base(r + 2)
    w("    s_waitcnt lgkmcnt(%d)" % (8 if r == 0 else (4 if r + 2 < 6 else 0) + 8))
    p1_scatter(r)
w("    s_waitcnt lgkmcnt(0)")
stamp()
w("    s_barrier")
stamp()
if "oldprio" not in sys.argv:
    w("    s_setprio 0")
stg = [16 + 4 * r for r in range(10)]
for r in range(10):
    a, off = (12, r * 8192) if r < 8 else (13, (r - 8) * 8192)
    w(f"    ds_read_b128 v[{stg[r]}:{stg[r] + 3}], v{a} offset:{off}")
w(f"    s_mul_i32 s36, s2, {TS}")
for r in range(10):
    w(f"""    s_waitcnt lgkmcnt({9 - r})
    buffer_store_dwordx4 v[{stg[r]}:{stg[r] + 3}], v{1 if r < 9 else 14}, s[20:23], s36 offen{ST_FL}
    s_add_u32 s36, s36, 8192""")
stamp()
if DIAG:
    w("    s_waitcnt vmcnt(0)")
stamp()
if DIAG:
    w("""    s_cmp_ge_u32 s2, 256
    s_cselect_b32 s38, 8, 0
    s_add_u32 s3, s3, s38""")
stamp_flush(0, 3, 40)
w("""p1_done:
    s_endpgm""")
w(kd("part_kernel", 120 if DIAG else 116, 48))

w(head("acc_kernel"))
S_WAVE = 3
S_MI = 4
S_REC = 8
S_OFFS = 12
S_OUT = 12
S_SKIP = 16
S_IT = 17
S_RA = 18
S_RB = 20
S_REM = 22
S_INC = 23
S_BK4 = 24
S_E0 = 25
S_T0, S_T1 = 26, 27
S_K = 28
S_K2 = 30
S_TODO = 32
S_MYINC = 33
S_768 = 34
S_ROT = 35
S_MASK = 36
BM = [(8, 10), (12, 14), (32, 100)]
SW_SBF = 36
SW_RBF = 84
S_DIST = 60
S_CENT = 64
S_MB = 68

DA = 6
V_REC = [4 * i + 4 for i in range(DA)]
V_E0, V_E1, V_W0, V_W1, V_BASE, V_L12 = [r + 3 for r in V_REC]
V_L6, V_L6P, V_TWO = 1, 2, 3
V_T = 28
V_JUNK = 42
V_S = [44 + 12 * q for q in range(4)]
V_CH = 3
V_PK = [4, 8, 12, 120]
V_G = [28, 92, 106]
V_MR = [42, 124, 126, 42]
V_SI = 1
V_SL = 2
V_TB2 = 4
V_KC = [16, 18]
V_HIM = 19
V_CN = 20
V_L4 = 21
V_BLK = [24, 32, 40]
V_RW = [48 + 2 * j for j in range(NITB)]
V_RA = [102 + j for j in range(NITB - 1)] + [23]
_st.update(n=0, v=43)
t = V_T

w(f"""    s_cmp_ge_u32 s2, 256
    s_cbranch_scc1 p2_done
    s_load_dwordx2 s[{S_MI}:{S_MI + 1}], s[0:1], 0
    v_readfirstlane_b32 s{S_WAVE}, v0
    s_lshr_b32 s{S_WAVE}, s{S_WAVE}, 6
    s_and_b32 s{S_T1}, s2, 7
    s_lshl_b32 s{S_T1}, s{S_T1}, 5
    s_lshr_b32 s{S_T0}, s2, 3
    s_add_u32 s{S_T1}, s{S_T1}, s{S_T0}        ; bucket
    s_mul_i32 s{S_E0}, s{S_T1}, {EO}
    s_lshl_b32 s{S_BK4}, s{S_T1}, 2
    s_and_b32 s{S_ROT}, s{S_T0}, {ROTN - 1}
    s_mul_i32 s{S_ROT}, s{S_ROT}, {416 // ROTN}
    s_lshr_b32 s{S_ROT}, s{S_ROT}, 1
    s_mov_b32 s{S_SKIP}, 0
    s_mov_b64 s[{S_RA}:{S_RA + 1}], -1
    s_mov_b64 s[{S_RB}:{S_RB + 1}], -1
    s_movk_i32 s{S_768}, {BSTR}
    s_cmp_lt_u32 s{S_WAVE}, {NPW}
    s_cbranch_scc1 a_batch""")
for i in range(48):
    w(f"    v_mov_b32 v{V_S[0] + i}, 0")
w(f"""a_batch:
    s_load_dwordx2 s[{S_REC}:{S_REC + 1}], s[0:1], 104
    s_setprio 3
    v_lshlrev_b32 v{t + 2}, 2, v0
    v_mov_b32 v{t + 3}, 0
    v_cmp_gt_u32 vcc, 256, v0
    s_mov_b64 exec, vcc
    ds_write_b32 v{t + 2}, v{t + 3} offset:{A_CNT}
    s_mov_b64 exec, -1
    v_and_b32 v{t + 4}, 31, v0
    v_lshrrev_b32 v{t + 5}, 5, v0
    v_lshl_add_u32 v{t + 5}, v{t + 5}, 4, v{t + 4}      ; tile
    v_lshlrev_b32 v{t}, 10, v{t + 5}
    v_cmp_gt_u32 vcc, 16, v{t + 4}
    v_mul_u32_u24 v{V_L6}, 6, v{t + 4}
    v_add_u32 v{V_L6P}, 3, v{V_L6}
    v_cndmask_b32 v{t}, 2.0, v{t}, vcc
    v_lshlrev_b32 v{V_L12}, 1, v{V_L6}
    v_and_b32 v{V_BASE}, 32, v0
    v_lshlrev_b32 v{V_BASE}, 2, v{V_BASE}
    v_mov_b32 v{V_TWO}, 2
    s_mov_b32 s{S_T0}, {TS}
    v_mul_lo_u32 v{V_E0}, v{t + 5}, s{S_T0}
    s_waitcnt lgkmcnt(0)
    s_add_u32 s{S_OFFS}, s{S_REC}, {OFFS_BASE}
    s_addc_u32 s{S_OFFS + 1}, s{S_REC + 1}, 0
    s_and_b32 s{S_OFFS + 1}, s{S_OFFS + 1}, 0xffff
    s_mov_b32 s{S_OFFS + 2}, {NT * 1024}
    s_mov_b32 s{S_OFFS + 3}, 0x00020000
    buffer_load_dword v{t + 1}, v{t}, s[{S_OFFS}:{S_OFFS + 3}], s{S_BK4} offen
    s_and_b32 s{S_REC + 1}, s{S_REC + 1}, 0xffff
    s_mov_b32 s{S_REC + 2}, {NT * TS}
    s_mov_b32 s{S_REC + 3}, 0x00020000
    s_and_b32 s{S_MI + 1}, s{S_MI + 1}, 0xffff
    s_or_b32 s{S_MI + 1}, s{S_MI + 1}, 0x80000
    s_mov_b32 s{S_MI + 2}, {E}
    s_mov_b32 s{S_MI + 3}, 0x00020000
    s_mov_b32 s{S_IT}, 0
    s_mov_b32 s{S_REM}, -1
    s_mov_b32 s{S_MYINC}, 0""")
stamp()
w(f"""    s_barrier
    s_waitcnt vmcnt(0)
    v_and_b32 v{t + 2}, 0xffff, v{t + 1}               ; s3
    v_lshrrev_b32 v{t + 3}, 16, v{t + 1}               ; e3
    v_and_b32 v{t + 4}, 1, v{t + 1}
    v_mul_u32_u24 v{t + 4}, 3, v{t + 4}                ; relS
    v_sub_u32 v{t + 2}, v{t + 2}, v{t + 4}             ; hb
    v_sub_u32 v{t + 3}, v{t + 3}, v{t + 2}             ; relE
    v_lshl_add_u32 v{V_E0}, v{t + 2}, 1, v{V_E0}
    v_lshl_or_b32 v{V_E1}, v{t + 4}, 16, v{t + 3}
    v_cmp_lt_u32 vcc, v{t + 4}, v{t + 3}
    s_or_b32 s{S_TODO}, vcc_lo, vcc_hi""")
stamp()


def pop(tag, fetch):
    w(f"""    s_cmp_lg_u32 s{S_TODO}, 0
    s_cbranch_scc1 {tag}_have
    s_cmp_lg_u32 s{S_REM}, -1
    s_cbranch_scc1 {tag}_none
    v_and_b32 v{t}, 0xffff, v{V_E1}
    v_subrev_u32 v{t}, 192, v{t}
    v_max_i32 v{V_E1}, 0, v{t}
    v_add_u32 v{V_E0}, 384, v{V_E0}
    v_cmp_lt_u32 vcc, 0, v{V_E1}
    s_or_b32 s{S_TODO}, vcc_lo, vcc_hi
    s_cbranch_scc1 {tag}_have
    s_mov_b32 s{S_REM}, {DA}
    s_branch {tag}_none
{tag}_have:
    s_ff1_i32_b32 s{S_T0}, s{S_TODO}
    s_bitset0_b32 s{S_TODO}, s{S_T0}""")
    if fetch:
        w(f"""    s_lshl_b32 s{S_T0}, s{S_T0}, 2
    v_add_u32 v{t}, s{S_T0}, v{V_BASE}
    ds_bpermute_b32 v{V_W0}, v{t}, v{V_E0}
    ds_bpermute_b32 v{V_W1}, v{t}, v{V_E1}""")
    w(f"{tag}_none:")


def issue_rec(u, tag):
    R = V_REC[u]
    mA = S_MASK + u * 4
    mB = mA + 2
    sd0 = "src0_sel:DWORD src1_sel:WORD_0"
    sd1 = "src0_sel:DWORD src1_sel:WORD_1"
    w(f"""    s_waitcnt lgkmcnt(0)
    v_add_u32 v{t + 1}, v{V_W0}, v{V_L12}
    v_cmp_lt_u32_sdwa vcc, v{V_L6}, v{V_W1} {sd0}
    v_cmp_ge_u32_sdwa s[{mA}:{mA + 1}], v{V_L6}, v{V_W1} {sd1}
    v_cmp_lt_u32_sdwa s[{mB}:{mB + 1}], v{V_L6P}, v{V_W1} {sd0}
    s_or_b64 exec, vcc, 1
    buffer_load_dwordx3 v[{R}:{R + 2}], v{t + 1}, s[{S_REC}:{S_REC + 3}], 0 offen
    s_mov_b64 exec, -1
    s_and_b64 s[{mA}:{mA + 1}], s[{mA}:{mA + 1}], vcc""")
    pop(tag, True)


def place(u):
    if "xnoplace" in sys.argv:
        w(f"    s_add_u32 s{S_IT}, s{S_IT}, 1")
        return
    R = V_REC[u]
    mA = S_MASK + u * 4
    mB = mA + 2
    bA, bB, rA, rB, xA, xB = t + 4, t + 5, t + 6, t + 7, t + 8, t + 9
    sb3 = "dst_sel:DWORD dst_unused:UNUSED_PAD src0_sel:DWORD src1_sel:BYTE_3"
    w(f"""    v_lshlrev_b32_sdwa v{xA}, 2, v{R} {sb3}
    v_lshlrev_b32_sdwa v{xB}, 2, v{R + 2} {sb3}
    s_mov_b64 exec, s[{mA}:{mA + 1}]
    ds_add_rtn_u32 v{rA}, v{xA}, v{V_TWO} offset:{A_CNT}
    s_mov_b64 exec, s[{mB}:{mB + 1}]
    ds_add_rtn_u32 v{rB}, v{xB}, v{V_TWO} offset:{A_CNT}
    s_mov_b64 exec, -1
    v_mul_u32_u24_sdwa v{bA}, s{S_768}, v{R} {sb3}
    v_mul_u32_u24_sdwa v{bB}, s{S_768}, v{R + 2} {sb3}
    s_waitcnt lgkmcnt(0)
    v_cmp_lt_u32 vcc, 0xff, v{rA}
    s_and_b64 s[{S_K}:{S_K + 1}], vcc, s[{mA}:{mA + 1}]
    v_cmp_lt_u32 vcc, 0xff, v{rB}
    s_and_b64 s[{S_K2}:{S_K2 + 1}], vcc, s[{mB}:{mB + 1}]
    s_or_b64 vcc, s[{S_K}:{S_K + 1}], s[{S_K2}:{S_K2 + 1}]
    s_cbranch_scc0 a_noovf{u}
    v_mov_b32 v{xA}, 0
    s_mov_b64 exec, s[{S_K}:{S_K + 1}]
    ds_add_rtn_u32 v{rA}, v{xA}, v{V_TWO} offset:{A_OVF}
    s_mov_b64 exec, s[{S_K2}:{S_K2 + 1}]
    ds_add_rtn_u32 v{rB}, v{xA}, v{V_TWO} offset:{A_OVF}
    s_waitcnt lgkmcnt(0)
    v_lshrrev_b32 v{bB}, 8, v{rB}
    v_cmp_le_u32 vcc, {NOVB}, v{bB}
    v_add_u32 v{bB}, {NBIN}, v{bB}
    v_mul_u32_u24 v{bB}, s{S_768}, v{bB}
    v_and_b32 v{rB}, 0xff, v{rB}
    s_mov_b64 s[{S_K2}:{S_K2 + 1}], vcc
    s_mov_b64 exec, s[{S_K}:{S_K + 1}]
    v_lshrrev_b32 v{bA}, 8, v{rA}
    v_cmp_le_u32 vcc, {NOVB}, v{bA}
    v_add_u32 v{bA}, {NBIN}, v{bA}
    v_mul_u32_u24 v{bA}, s{S_768}, v{bA}
    v_and_b32 v{rA}, 0xff, v{rA}
    s_mov_b64 s[{S_K}:{S_K + 1}], vcc
    s_mov_b64 exec, -1
    s_or_b64 vcc, s[{S_K}:{S_K + 1}], s[{S_K2}:{S_K2 + 1}]
    s_cbranch_scc0 a_noovf{u}
    s_mov_b64 s[{S_RA}:{S_RA + 1}], s[{S_K}:{S_K + 1}]
    s_mov_b64 s[{S_RB}:{S_RB + 1}], s[{S_K2}:{S_K2 + 1}]
    s_andn2_b64 s[{mA}:{mA + 1}], s[{mA}:{mA + 1}], s[{S_K}:{S_K + 1}]
    s_andn2_b64 s[{mB}:{mB + 1}], s[{mB}:{mB + 1}], s[{S_K2}:{S_K2 + 1}]
    s_mov_b32 s{S_MYINC}, 1
a_noovf{u}:
    v_lshl_add_u32 v{xA}, v{rA}, 1, v{bA}
    v_lshl_add_u32 v{xB}, v{rB}, 1, v{bB}
    v_add_u32 v{rA}, v{rA}, v{bA}
    v_add_u32 v{rB}, v{rB}, v{bB}
    s_mov_b64 exec, s[{mA}:{mA + 1}]
    ds_write_b32 v{xA}, v{R} offset:{A_STG}
    ds_write_b16 v{rA}, v{R + 1} offset:{A_STG + 512}
    s_mov_b64 exec, s[{mB}:{mB + 1}]
    ds_write_b32 v{xB}, v{R + 2} offset:{A_STG}
    ds_write_b16_d16_hi v{rB}, v{R + 1} offset:{A_STG + 512}
    s_mov_b64 exec, -1
    s_cmp_lg_u32 s{S_MYINC}, 0
    s_cbranch_scc1 a_stop
    s_add_u32 s{S_IT}, s{S_IT}, 1""")


w(f"""    s_mov_b32 s{S_T1}, s{S_SKIP}
a_replay:
    s_cmp_eq_u32 s{S_T1}, 0
    s_cbranch_scc1 a_replay_done""")
pop("a_rp", False)
w(f"""    s_sub_u32 s{S_T1}, s{S_T1}, 1
    s_branch a_replay
a_replay_done:""")
for i in range(DA * 2):
    w(f"    s_mov_b64 s[{S_MASK + 2 * i}:{S_MASK + 2 * i + 1}], 0")
pop("a_p0", True)
for u in range(DA - 1):
    w(f"""    s_cmp_lg_u32 s{S_REM}, -1
    s_cbranch_scc1 a_pro_done""")
    issue_rec(u, f"a_pi{u}")
    if u == 0:
        w(f"""    s_and_b64 s[{S_MASK}:{S_MASK + 1}], s[{S_MASK}:{S_MASK + 1}], s[{S_RA}:{S_RA + 1}]
    s_and_b64 s[{S_MASK + 2}:{S_MASK + 3}], s[{S_MASK + 2}:{S_MASK + 3}], s[{S_RB}:{S_RB + 1}]
    s_mov_b64 s[{S_RA}:{S_RA + 1}], -1
    s_mov_b64 s[{S_RB}:{S_RB + 1}], -1""")
w("a_pro_done:")
if "pfA" in sys.argv:
    w(f"""    s_lshr_b32 s{S_T0}, s2, 3
    s_mul_i32 s{S_T0}, s{S_T0}, 12500
    v_lshlrev_b32 v{t + 2}, 4, v0
    v_add_u32 v{t + 2}, s{S_T0}, v{t + 2}
    v_cmp_gt_u32 vcc, 783, v0
    s_or_b64 exec, vcc, 1
    buffer_load_dword v{V_JUNK}, v{t + 2}, s[{S_MI}:{S_MI + 3}], 0 idxen
    s_mov_b64 exec, -1""")
w("a_loop:")
for u in range(DA):
    un = (u + DA - 1) % DA
    if u % 3 == 0 and "noprioA" not in sys.argv:
        w(f"""    s_cmp_lt_u32 s{S_IT}, 3
    s_cbranch_scc1 a_pr{u}
    s_setprio 2
    s_cmp_lt_u32 s{S_IT}, 6
    s_cbranch_scc1 a_pr{u}
    s_setprio 1
    s_cmp_lt_u32 s{S_IT}, 9
    s_cbranch_scc1 a_pr{u}
    s_setprio 0
a_pr{u}:""")
    w(f"""    s_cmp_lg_u32 s{S_REM}, -1
    s_cbranch_scc1 a_cd{u}""")
    issue_rec(un, f"a_li{u}")
    w(f"""    s_waitcnt vmcnt({DA - 1})
    s_branch a_go{u}
a_cd{u}:
    s_sub_u32 s{S_REM}, s{S_REM}, 1
    s_cmp_eq_u32 s{S_REM}, 0
    s_cbranch_scc1 a_end
    s_mov_b64 s[{S_MASK + un * 4}:{S_MASK + un * 4 + 1}], 0
    s_mov_b64 s[{S_MASK + un * 4 + 2}:{S_MASK + un * 4 + 3}], 0
    s_waitcnt vmcnt(0)
a_go{u}:""")
    place(u)
w(f"""    s_branch a_loop
a_stop:
    v_mov_b32 v{t}, 0
    v_mov_b32 v{t + 1}, 1
    ds_write_b32 v{t}, v{t + 1} offset:{A_INC}
a_end:
    s_add_u32 s{S_SKIP}, s{S_SKIP}, s{S_IT}
    s_load_dwordx2 s[{S_DIST}:{S_DIST + 1}], s[0:1], 24
    s_load_dwordx2 s[{S_CENT}:{S_CENT + 1}], s[0:1], 40
    s_load_dwordx2 s[{S_MB}:{S_MB + 1}], s[0:1], 0
    s_waitcnt vmcnt(0) lgkmcnt(0)
    s_load_dwordx4 s[{S_CENT}:{S_CENT + 3}], s[{S_CENT}:{S_CENT + 1}], 0
    s_and_b32 s{S_DIST + 1}, s{S_DIST + 1}, 0xffff
    s_mov_b32 s{S_DIST + 2}, {E * 2}
    s_mov_b32 s{S_DIST + 3}, 0x00020000
    s_and_b32 s{S_MB + 1}, s{S_MB + 1}, 0xffff
    s_mov_b32 s{S_MB + 2}, {E * 8}
    s_mov_b32 s{S_MB + 3}, 0x00020000""")
stamp()
w(f"""    s_barrier
    v_mov_b32 v{t}, 0
    ds_read_b64 v[{t + 2}:{t + 3}], v{t} offset:{A_OVF}""")
t2 = V_TB2
if DIAG:
    w("    v_mov_b32 v22, v43")
    _st["v"] = 22
w(f"""    s_cmp_ge_u32 s{S_WAVE}, {NPW}
    s_cbranch_scc1 b_consumer""")
NB2 = NITB * NPW
w(f"""    v_and_b32 v{t2}, 63, v0                       ; lane
    s_add_u32 s{S_T0}, s{S_WAVE}, s{S_ROT}
    v_mul_u32_u24 v{t2 + 1}, {NPW}, v{t2}
    v_add_u32 v{t2 + 1}, s{S_T0}, v{t2 + 1}
    v_subrev_u32 v{t2 + 2}, {NB2}, v{t2 + 1}
    v_min_u32 v{t2 + 1}, v{t2 + 1}, v{t2 + 2}
    v_min_u32 v{t2 + 2}, {NBIN - 1}, v{t2 + 1}
    v_lshlrev_b32 v{t2 + 2}, 2, v{t2 + 2}
    ds_read_b32 v{V_CN}, v{t2 + 2} offset:{A_CNT}
    v_lshlrev_b32 v{t2 + 3}, 3, v{t2}
    v_lshlrev_b32 v{V_L4}, 2, v{t2}
    s_mul_i32 s{S_T0}, s{S_T0}, {BSTR}""")
for j in range(NITB):
    w(f"""    v_add_u32 v{t2 + 6 + 2 * (j % 2)}, s{S_T0}, v{t2 + 3}
    v_add_u32 v{t2 + 7 + 2 * (j % 2)}, s{S_T0}, v{V_L4}
    s_add_u32 s{S_T0}, s{S_T0}, {NPW * BSTR}
    s_sub_u32 s{S_T1}, s{S_T0}, {NB2 * BSTR}
    s_min_u32 s{S_T0}, s{S_T0}, s{S_T1}
    ds_read_b64 v[{V_RW[j]}:{V_RW[j] + 1}], v{t2 + 6 + 2 * (j % 2)} offset:{A_STG}
    ds_read_b32 v{V_RA[j]}, v{t2 + 7 + 2 * (j % 2)} offset:{A_STG + 512}""")
w(f"""    s_waitcnt lgkmcnt(0)
    v_readfirstlane_b32 s{S_INC}, v{t + 3}
    v_min_u32 v{t + 2}, {NOVB * 256}, v{t + 2}
    v_subrev_u32 v{t2 + 5}, {NBIN}, v{t2 + 1}
    v_lshlrev_b32 v{t2 + 5}, 8, v{t2 + 5}
    v_sub_u32 v{t2 + 5}, v{t + 2}, v{t2 + 5}
    v_cmp_gt_u32 vcc, {NBIN}, v{t2 + 1}
    v_max_i32 v{t2 + 5}, 0, v{t2 + 5}
    s_barrier
    v_cndmask_b32 v{V_CN}, v{t2 + 5}, v{V_CN}, vcc
    v_min_u32 v{V_CN}, 0x100, v{V_CN}""")
stamp(3)


def gather(j):
    u = j % 3
    B = V_BLK[u]
    mA, mB = BM[u]
    W = V_RW[j]
    w(f"""    v_readlane_b32 s{S_T0}, v{V_CN}, {j}
    v_lshrrev_b32 v{t2}, 13, v{W}
    v_lshrrev_b32 v{t2 + 1}, 13, v{W + 1}
    s_sub_u32 s{S_T1}, s{S_T0}, 2
    v_cmp_gt_u32 s[{mA}:{mA + 1}], s{S_T0}, v{V_L4}
    v_cmp_gt_i32 s[{mB}:{mB + 1}], s{S_T1}, v{V_L4}
    s_or_b64 exec, s[{mA}:{mA + 1}], 1
    buffer_load_dwordx2 v[{B}:{B + 1}], v{t2}, s[{S_MI}:{S_MI + 3}], 0 idxen
    s_or_b64 exec, s[{mB}:{mB + 1}], 1
    buffer_load_dwordx2 v[{B + 4}:{B + 5}], v{t2 + 1}, s[{S_MI}:{S_MI + 3}], 0 idxen
    s_mov_b64 exec, -1""")


def build(j, vm):
    u = j % 3
    c_, k = JMAP[j]
    p = c_ % 2
    so = (k + 5 * p) * 2048
    B = V_BLK[u]
    mA, mB = BM[u]
    W, A = V_RW[j], V_RA[j]
    t = t2
    idx0 = so // 16
    a2, c1, c2, c3 = t + 2, t + 4, t + 6, t + 8
    K0, K1 = V_KC
    lo = "op_sel:[0,0] op_sel_hi:[1,0]"
    hi = "op_sel:[0,1] op_sel_hi:[1,1]"
    w(f"""    v_and_b32 v{t + 10}, 0x1ffc, v{W}
    v_and_b32 v{t + 11}, 0x1ffc, v{W + 1}
    v_add_u32 v{t}, {idx0}, v{V_SI}
    v_add_u32 v{t + 1}, {idx0 + 64}, v{V_SI}
    s_mov_b64 exec, s[{mA}:{mA + 1}]
    ds_wrxchg_rtn_b32 v{B + 3}, v{t + 10}, v{t} offset:{HEAD[p]}
    s_mov_b64 exec, s[{mB}:{mB + 1}]
    ds_wrxchg_rtn_b32 v{B + 7}, v{t + 11}, v{t + 1} offset:{HEAD[p]}
    s_mov_b64 exec, -1
    v_lshlrev_b32 v{a2}, 16, v{A}
    v_and_b32 v{a2 + 1}, 0xffff0000, v{A}
    v_pk_mul_f32 v[{c3}:{c3 + 1}], v[{a2}:{a2 + 1}], v[{K0}:{K0 + 1}] {hi}
    v_pk_mul_f32 v[{c1}:{c1 + 1}], v[{a2}:{a2 + 1}], v[{K0}:{K0 + 1}] {lo}
    v_cvt_pk_bf16_f32 v{c3 + 1}, v{c3}, v{c3 + 1}
    v_fract_f32 v{c1}, v{c1}
    v_fract_f32 v{c1 + 1}, v{c1 + 1}
    v_lshlrev_b32 v{c3}, 16, v{c3 + 1}
    v_and_b32 v{c3 + 1}, 0xffff0000, v{c3 + 1}
    v_cos_f32 v{c1}, v{c1}
    v_cos_f32 v{c1 + 1}, v{c1 + 1}
    v_pk_mul_f32 v[{c3}:{c3 + 1}], v[{c3}:{c3 + 1}], v[{K0}:{K0 + 1}] {lo}
    v_pk_add_f32 v[{c2}:{c2 + 1}], v[{c1}:{c1 + 1}], v[{c1}:{c1 + 1}]
    v_fract_f32 v{c3}, v{c3}
    v_fract_f32 v{c3 + 1}, v{c3 + 1}
    v_pk_fma_f32 v[{c2}:{c2 + 1}], v[{c2}:{c2 + 1}], v[{c1}:{c1 + 1}], v[{K1}:{K1 + 1}] op_sel:[0,0,0] op_sel_hi:[1,1,0]
    v_cos_f32 v{c3}, v{c3}
    v_cos_f32 v{c3 + 1}, v{c3 + 1}
    v_cvt_pk_bf16_f32 v{B + 2}, v{c1}, v{c2}
    v_cvt_pk_bf16_f32 v{B + 6}, v{c1 + 1}, v{c2 + 1}
    v_cvt_pk_bf16_f32 v{t}, v{c3}, v{c3 + 1}
    s_waitcnt lgkmcnt(0)
    v_lshl_or_b32 v{B + 3}, v{t}, 16, v{B + 3}
    v_and_or_b32 v{B + 7}, v{t}, v{V_HIM}, v{B + 7}
    s_waitcnt vmcnt({vm})
    ds_write_b128 v{V_SL}, v[{B}:{B + 3}] offset:{so}
    ds_write_b128 v{V_SL}, v[{B + 4}:{B + 7}] offset:{so + 1024}""")


w("    s_setprio 3")
gather(0)
gather(1)
w(f"""    v_mov_b32 v{V_KC[0]}, 0.15915494
    v_mov_b32 v{V_KC[0] + 1}, 0x40400000
    v_mov_b32 v{V_KC[1]}, -1.0
    v_mov_b32 v{V_HIM}, 0xffff0000
    s_mul_i32 s{S_T0}, s{S_WAVE}, {WREG}
    s_add_u32 s{S_T0}, s{S_T0}, {BUF0}
    v_lshlrev_b32 v{V_SL}, 2, v{V_L4}
    v_add_u32 v{V_SL}, s{S_T0}, v{V_SL}
    v_lshrrev_b32 v{V_SI}, 4, v{V_SL}
    s_barrier""")
stamp(4)
for j in range(NITB):
    c_, k_ = JMAP[j]
    w(f"    s_setprio {min(2, PAT[c_] - 1 - k_) + (0 if 'consprio' in sys.argv else 1)}")
    if j + 2 < NITB:
        gather(j + 2)
        vm = 4
    else:
        vm = 2 * (NITB - 1 - j)
    build(j, vm)
    if k_ == PAT[c_] - 1:
        w("    s_waitcnt lgkmcnt(0)")
        stamp(10 + 2 * c_)
        w("    s_barrier")
        stamp(11 + 2 * c_)
w(f"""    s_cmp_lg_u32 s{S_INC}, 0
    s_cbranch_scc0 b_pdone
    s_barrier
    s_branch a_batch
b_pdone:""")
stamp(7)
stamp_flush(1, S_WAVE, 36)
w("    s_endpgm")

c2 = 4
w(f"""b_consumer:
    s_setprio 3
    v_subrev_u32 v{V_CH}, {NPW * 64}, v0
    v_add_u32 v1, s{S_E0}, v{V_CH}
    v_lshlrev_b32 v{V_CH}, 2, v{V_CH}
    s_waitcnt lgkmcnt(0)
    v_readfirstlane_b32 s{S_INC}, v{t + 3}
    v_lshlrev_b32 v1, 1, v1""")
d0, tmp = 16, 24
for q in range(4):
    w(f"    buffer_load_ushort v{d0 + q}, v1, s[{S_DIST}:{S_DIST + 3}], 0 offen offset:{q * 1024}")
w(f"""    v_mov_b32 v4, {NIL}
    v_mov_b32 v5, {NIL}
    v_mov_b32 v6, {NIL}
    v_mov_b32 v7, {NIL}
    v_mov_b32 v8, 0
    v_mov_b32 v9, 0
    v_mov_b32 v10, 0
    v_mov_b32 v11, {NIL}
    v_lshlrev_b32 v2, 2, v{V_CH}
    v_cmp_gt_u32 vcc, 4608, v2
    s_barrier
    ds_write_b128 v2, v[4:7]
    s_mov_b64 exec, vcc
    ds_write_b128 v2, v[4:7] offset:8192
    s_mov_b64 exec, -1
    ds_write_b128 v8, v[8:11] offset:{B_DUMMY}
    s_waitcnt lgkmcnt(0)
    s_barrier
    s_setprio 0
    s_load_dwordx8 s[8:15], s[0:1], 56
    s_waitcnt vmcnt(0)""")
for i in range(4):
    w(f"    v_lshlrev_b32 v{d0 + i}, 16, v{d0 + i}")
for p in range(4):
    w(f"""    s_lshl_b32 s{S_T0}, s{S_CENT + p}, 16
    s_and_b32 s{S_T1}, s{S_CENT + p}, 0xffff0000""")
    for e in range(4):
        a, b, tt = tmp + 2 * (e % 2), tmp + 1 + 2 * (e % 2), V_PK[e] + p
        d = d0 + e
        w(f"""    v_subrev_f32 v{a}, s{S_T0}, v{d}
    v_subrev_f32 v{b}, s{S_T1}, v{d}
    v_cvt_pk_bf16_f32 v{tt}, v{a}, v{b}
    v_lshlrev_b32 v{a}, 16, v{tt}
    v_and_b32 v{b}, 0xffff0000, v{tt}
    v_mul_f32 v{a}, v{a}, v{a}
    v_mul_f32 v{b}, v{b}, v{b}
    v_cvt_pk_bf16_f32 v{tt}, v{a}, v{b}
    v_lshlrev_b32 v{a}, 16, v{tt}
    v_and_b32 v{b}, 0xffff0000, v{tt}
    v_mul_f32 v{a}, 0xc1200000, v{a}
    v_mul_f32 v{b}, 0xc1200000, v{b}
    v_cvt_pk_bf16_f32 v{tt}, v{a}, v{b}
    v_lshlrev_b32 v{a}, 16, v{tt}
    v_and_b32 v{b}, 0xffff0000, v{tt}
    v_mul_f32 v{a}, 0x3fb8aa3b, v{a}
    v_mul_f32 v{b}, 0x3fb8aa3b, v{b}
    v_exp_f32 v{a}, v{a}
    v_exp_f32 v{b}, v{b}
    s_nop 0
    v_cvt_pk_bf16_f32 v{tt}, v{a}, v{b}""")
w(f"""    s_waitcnt lgkmcnt(0)
    s_load_dwordx16 s[{SW_RBF}:{SW_RBF + 15}], s[8:9], 0
    s_load_dwordx16 s[{SW_SBF}:{SW_SBF + 15}], s[10:11], 0
    s_load_dwordx16 s[{SW_SBF + 16}:{SW_SBF + 31}], s[10:11], 64
    s_load_dwordx16 s[{SW_SBF + 32}:{SW_SBF + 47}], s[10:11], 128
    s_mov_b64 s[100:101], s[14:15]
    s_load_dwordx8 s[8:15], s[12:13], 0
    s_waitcnt lgkmcnt(0)""")


def gr_code(edges, G, Rt):
    for p in range(4):
        for dp in range(2):
            sa, sb = SW_RBF + (2 * p) * 2 + dp, SW_RBF + (2 * p + 1) * 2 + dp
            w(f"""    s_pack_ll_b32_b16 s{S_T0}, s{sa}, s{sb}
    s_pack_hh_b32_b16 s{S_T1}, s{sa}, s{sb}""")
            for i, q in enumerate(edges):
                for h, st_ in ((0, S_T0), (1, S_T1)):
                    g = Rt[i] + dp * 2 + h
                    c = "0" if p == 0 else f"v{g}"
                    w(f"    v_dot2_f32_bf16 v{g}, v{V_PK[q] + p}, s{st_}, {c}")
    for l in range(3):
        for p in range(4):
            r0 = (2 * p) * 3 + l
            r1 = (2 * p + 1) * 3 + l
            for dp in range(2):
                sa, sb = SW_SBF + r0 * 2 + dp, SW_SBF + r1 * 2 + dp
                w(f"""    s_pack_ll_b32_b16 s{S_T0}, s{sa}, s{sb}
    s_pack_hh_b32_b16 s{S_T1}, s{sa}, s{sb}""")
                for i, q in enumerate(edges):
                    for h, st_ in ((0, S_T0), (1, S_T1)):
                        g = G[i] + 4 * l + dp * 2 + h
                        c = "0" if p == 0 else f"v{g}"
                        w(f"    v_dot2_f32_bf16 v{g}, v{V_PK[q] + p}, s{st_}, {c}")
    for i, q in enumerate(edges):
        w(f"""    v_cvt_pk_bf16_f32 v{G[i] + 12}, v{Rt[i]}, v{Rt[i] + 1}
    v_cvt_pk_bf16_f32 v{G[i] + 13}, v{Rt[i] + 2}, v{Rt[i] + 3}""")
    w("    s_nop 2")


gr_code([0, 1, 2], V_G, [16, 24, 124])
w(f"    s_setprio {3 if 'consprio' in sys.argv else 0}")


def prefetch(n, tag):
    pass


PFN = 0


def walk(p, n, tag):
    r = [c2 + 4 * i for i in range(4)]
    M0, C1 = 20, 42
    ad, nil = 1, 2
    for i in range(n):
        w(f"    ds_read_b32 v{r[i]}, v{V_CH} offset:{HEAD[p] + i * 2048}")
    w(f"    v_mov_b32 v{nil}, {NIL}")
    for i in range(n):
        w(f"""    s_waitcnt lgkmcnt({n - 1 - i + 2 * i})
    v_lshlrev_b32 v{ad}, 4, v{r[i]}
    ds_write_b32 v{V_CH}, v{nil} offset:{HEAD[p] + i * 2048}
    ds_read_b128 v[{r[i]}:{r[i] + 3}], v{ad}""")
    w(f"""    v_mov_b32 v{nil}, {B_DUMMY}
{tag}:""")
    for i in range(n):
        R, Sx = r[i], V_S[i]
        X = 24
        w(f"""    s_waitcnt lgkmcnt({n - 1})
    v_lshlrev_b32_sdwa v{ad}, 4, v{R + 3} dst_sel:DWORD dst_unused:UNUSED_PAD src0_sel:DWORD src1_sel:WORD_0
    v_lshlrev_b32 v{M0}, 16, v{R}
    v_lshlrev_b32 v{M0 + 1}, 16, v{R + 1}
    v_lshlrev_b32 v{C1}, 16, v{R + 2}
    v_and_b32 v{X}, 0xffff0000, v{R}
    v_and_b32 v{X + 1}, 0xffff0000, v{R + 1}
    v_and_b32 v{X + 2}, 0xffff0000, v{R + 2}
    v_and_b32 v{X + 3}, 0xffff0000, v{R + 3}
    ds_read_b128 v[{R}:{R + 3}], v{ad}""")
        if i == 0:
            w(f"    v_cmp_ne_u32 vcc, v{ad}, v{nil}")
        else:
            w(f"    v_cmp_ne_u32 s[{S_K}:{S_K + 1}], v{ad}, v{nil}")
        for l in range(3):
            cp = C1 if l == 0 else X + 2
            sel = "op_sel:[0,1,0] op_sel_hi:[1,1,1]" if l == 2 else "op_sel:[0,0,0] op_sel_hi:[1,0,1]"
            for h, mm in ((0, M0), (1, X)):
                s_ = Sx + 4 * l + 2 * h
                w(f"    v_pk_fma_f32 v[{s_}:{s_ + 1}], v[{mm}:{mm + 1}], v[{cp}:{cp + 1}], v[{s_}:{s_ + 1}] {sel}")
        if i > 0:
            w(f"    s_or_b64 vcc, vcc, s[{S_K}:{S_K + 1}]")
    w(f"""    s_cbranch_vccnz {tag}
    s_waitcnt lgkmcnt(0)""")


w(f"""    s_mov_b32 s{S_REM}, {NCHK}
b_cloop:""")
for p in range(2):
    w("    s_barrier")
    prefetch(PFN, f"b_pfl{p}")
    w(f"""    s_cmp_eq_u32 s{S_WAVE}, {NPW}
    s_cbranch_scc1 b_w4{p}""")
    walk(p, 3, f"b_wa{p}")
    w(f"""    s_branch b_wdone{p}
b_w4{p}:""")
    walk(p, 4, f"b_wb{p}")
    w(f"b_wdone{p}:")
    stamp(8 + p)
    w(f"""    s_sub_u32 s{S_REM}, s{S_REM}, 1
    s_cmp_eq_u32 s{S_REM}, 0
    s_cbranch_scc1 b_cend""")
w(f"""    s_branch b_cloop
b_cend:
    s_waitcnt vmcnt(0)
    s_cmp_lg_u32 s{S_INC}, 0
    s_cbranch_scc0 b_final
    s_barrier
    s_branch a_batch
b_final:
    s_load_dwordx8 s[16:23], s[100:101], 0            ; w_up
    s_load_dwordx2 s[28:29], s[0:1], 88               ; out
    v_lshrrev_b32 v1, 2, v{V_CH}
    v_add_u32 v1, s{S_E0}, v1
    v_add_u32 v2, 512, v1
    buffer_load_dwordx2 v[{V_MR[0]}:{V_MR[0] + 1}], v1, s[{S_MI}:{S_MI + 3}], 0 idxen
    buffer_load_dwordx2 v[{V_MR[1]}:{V_MR[1] + 1}], v2, s[{S_MI}:{S_MI + 3}], 0 idxen
    v_add_u32 v2, 1024, v1
    s_lshl_b32 s{S_E0}, s{S_E0}, 3
    buffer_load_dwordx2 v[{V_MR[2]}:{V_MR[2] + 1}], v2, s[{S_MI}:{S_MI + 3}], 0 idxen
    v_lshlrev_b32 v{V_CH}, 1, v{V_CH}                 ; c*8""")
stamp(6)
SWD2, SWU2, S_OUT = 8, 16, 28


def fin_group(edges, G, first):
    R = [dict(AG=4 + 8 * i, U=8 + 8 * i) for i in range(len(edges))]
    if DIAG:
        R[-1] = dict(AG=V_S[0], U=24) if len(edges) == 3 else R[-1]
    for l in range(3):
        for k in range(4):
            for dp in range(2):
                sg = SWD2 + k * 2 + dp
                w(f"""    s_lshl_b32 s{S_T0}, s{sg}, 16
    s_and_b32 s{S_T1}, s{sg}, 0xffff0000""")
                for i, q in enumerate(edges):
                    for h, st_ in ((0, S_T0), (1, S_T1)):
                        u_ = R[i]['U'] + dp * 2 + h
                        op = "v_mul_f32" if k == 0 else "v_fmac_f32"
                        w(f"    {op} v{u_}, s{st_}, v{V_S[q] + 4 * l + [0, 2, 1, 3][k]}")
        for i, q in enumerate(edges):
            for j in range(4):
                op = "v_mul_f32" if l == 0 else "v_fmac_f32"
                w(f"    {op} v{R[i]['AG'] + j}, v{G[i] + 4 * l + j}, v{R[i]['U'] + j}")
    if first:
        w(f"""    s_waitcnt lgkmcnt(0)
    s_and_b32 s{S_OUT + 1}, s{S_OUT + 1}, 0xffff
    s_mov_b32 s{S_OUT + 2}, {E * 8}
    s_mov_b32 s{S_OUT + 3}, 0x00020000""")
    for k in range(4):
        for dp in range(2):
            sg = SWU2 + k * 2 + dp
            w(f"""    s_lshl_b32 s{S_T0}, s{sg}, 16
    s_and_b32 s{S_T1}, s{sg}, 0xffff0000""")
            for i, q in enumerate(edges):
                for h, st_ in ((0, S_T0), (1, S_T1)):
                    u_ = R[i]['U'] + dp * 2 + h
                    op = "v_mul_f32" if k == 0 else "v_fmac_f32"
                    w(f"    {op} v{u_}, s{st_}, v{R[i]['AG'] + k}")
    w("    s_waitcnt vmcnt(0)")
    for i, q in enumerate(edges):
        for dp in range(2):
            u0 = R[i]['U'] + 2 * dp
            rp = G[i] + 12 + dp
            mr = V_MR[q] + dp
            a, b = R[i]['AG'], R[i]['AG'] + 1
            w(f"""    v_cvt_pk_bf16_f32 v{u0 + 1}, v{u0}, v{u0 + 1}
    v_lshlrev_b32 v{a}, 16, v{rp}
    v_and_b32 v{b}, 0xffff0000, v{rp}
    v_lshlrev_b32 v{u0}, 16, v{u0 + 1}
    v_and_b32 v{u0 + 1}, 0xffff0000, v{u0 + 1}
    v_mul_f32 v{u0}, v{u0}, v{a}
    v_mul_f32 v{u0 + 1}, v{u0 + 1}, v{b}
    v_cvt_pk_bf16_f32 v{u0 + 1}, v{u0}, v{u0 + 1}
    v_lshlrev_b32 v{a}, 16, v{mr}
    v_and_b32 v{b}, 0xffff0000, v{mr}
    v_lshlrev_b32 v{u0}, 16, v{u0 + 1}
    v_and_b32 v{u0 + 1}, 0xffff0000, v{u0 + 1}
    v_add_f32 v{u0}, v{u0}, v{a}
    v_add_f32 v{u0 + 1}, v{u0 + 1}, v{b}
    v_cvt_pk_bf16_f32 v{rp}, v{u0}, v{u0 + 1}""")
        w(f"""    s_add_u32 s{S_T0}, s{S_E0}, {q * 4096}
    buffer_store_dwordx2 v[{G[i] + 12}:{G[i] + 13}], v{V_CH}, s[{S_OUT}:{S_OUT + 3}], s{S_T0} offen""")


fin_group([0, 1, 2], V_G, True)
w(f"""    s_cmp_lg_u32 s{S_WAVE}, {NPW}
    s_cbranch_scc1 b_fin_done
    v_cmp_gt_u32 vcc, {(EO - 1536) * 8}, v{V_CH}
    v_add_u32 v2, 1536, v1
    buffer_load_dwordx2 v[{V_MR[3]}:{V_MR[3] + 1}], v2, s[{S_MI}:{S_MI + 3}], 0 idxen
    v_cndmask_b32 v{V_CH}, 2.0, v{V_CH}, vcc""")
gr_code([3], [44], [60])
fin_group([3], [44], False)
w("b_fin_done:")
stamp(7)
stamp_flush(1, S_WAVE, 36)
w("""p2_done:
    s_endpgm""")
w(kd("acc_kernel", 128, 102))
print("\n".join(out))
```

```python
import sys
E = 400000
T = 6400000
EO = 1563
MAGIC = -(-(1 << 32) // EO)
S = 12500
NT = 512
TS = 75008
OFFS_BASE = 40 * 1024 * 1024
assert all(((i * MAGIC) >> 32) == i // EO for i in range(0, E, 1))
assert MAGIC < (1 << 24)

HDR = open('standalone__molecular_angular_gemnet__graph.s.ref').read().split('; Override launch')[0]
out = []


def w(s):
    out.append(s)


def kd(name, vgpr, sgpr):
    return f""".section .rodata,"a"
.p2align 6
.amdhsa_kernel {name}
  .amdhsa_next_free_vgpr {vgpr}
  .amdhsa_next_free_sgpr {sgpr}
  .amdhsa_accum_offset {(vgpr + 3) // 4 * 4}
  .amdhsa_group_segment_fixed_size 0
  .amdhsa_kernarg_size 112
  .amdhsa_user_sgpr_count 2
  .amdhsa_user_sgpr_kernarg_segment_ptr 1
  .amdhsa_system_sgpr_workgroup_id_x 1
  .amdhsa_float_denorm_mode_32 3
.end_amdhsa_kernel
.text
"""


def head(name):
    return f""".globl {name}
.p2align 8
.type {name},@function
{name}:"""


def srd(d, b, nbytes):
    return f"""    s_mov_b32 s{d}, s{b}
    s_and_b32 s{d + 1}, s{b + 1}, 0xffff
    s_mov_b32 s{d + 2}, {nbytes}
    s_mov_b32 s{d + 3}, 0x00020000"""


DIAG = "diag" in sys.argv
STAMP_BASE = 200 * 1024 * 1024
_st = {"n": 0, "s": 0}


def stamp(k=None):
    if not DIAG:
        return
    if k is None:
        k = _st["n"]
    _st["n"] = k + 1
    b = _st["s"]
    v = _st["v"]
    w(f"""    s_memrealtime vcc
    s_waitcnt lgkmcnt(0)
    v_writelane_b32 v{v}, vcc_lo, {k}""")


def stamp_flush(kid, swave, b, wgmask=255):
    if not DIAG:
        return
    v = _st['v']
    w(f"""    s_load_dwordx2 s[{b}:{b + 1}], s[0:1], 104
    s_waitcnt lgkmcnt(0)
    s_add_u32 s{b}, s{b}, {STAMP_BASE + kid * 4 * 1024 * 1024}
    s_addc_u32 s{b + 1}, s{b + 1}, 0
    s_and_b32 s{b + 2}, s2, {wgmask}
    s_lshl_b32 s{b + 2}, s{b + 2}, 4
    s_add_u32 s{b + 2}, s{b + 2}, s{swave}
    s_lshl_b32 s{b + 2}, s{b + 2}, 8
    v_and_b32 v1, 63, v0
    v_lshlrev_b32 v1, 2, v1
    v_add_u32 v1, s{b + 2}, v1
    global_store_dword v1, v{v}, s[{b}:{b + 1}]""")
    sys.stderr.write(f"kernel {kid}: {_st['n']} stamps\n")


P1_LDS = 1024 + TS
ROTN = 1
for a_ in sys.argv:
    if a_.startswith('rot='):
        ROTN = int(a_[4:])
NBIN = 196
NBLK = 209
BSTR = 776
NOVB = (NBLK - NBIN) if "smallovf" not in sys.argv else 1
A_CNT = 0
A_OVF = 1008
A_INC = A_OVF + 4
A_STG = 1024
assert A_STG + NBLK * BSTR <= 163840
NPW = 8
KCH = 4
HEAD = [0, 6400]
B_DUMMY = 12800
BUF0 = 13056
WREG = 9 * 2048
assert BUF0 + NPW * WREG <= 163840
PAT = [5, 4, 5, 4, 5, 4]
for a_ in sys.argv:
    if a_.startswith("pat="):
        PAT = [int(x) for x in a_[4:].split(",")]
NIL = B_DUMMY // 16
NITB = -(-NBLK // NPW)
assert sum(PAT) == NITB and all(n <= (5, 4)[c % 2] for c, n in enumerate(PAT))
NCHK = len(PAT)
JMAP = [(c, k) for c, n in enumerate(PAT) for k in range(n)]
ST_FL = " sc1" if "nosc1" not in sys.argv else ""

w(HDR.rstrip("\n"))
w(f"; @launch kernel=part_kernel grid=(512,1,1) block=(512,1,1) lds={P1_LDS}")
w(f"; @launch kernel=acc_kernel grid=(256,1,1) block=(1024,1,1) lds=163840")
w('.amdgcn_target "amdgcn-amd-amdhsa--gfx950"\n.text')

w(head("part_kernel"))
RB = 16
KB = 88
TMP = 4
_st.update(n=0, v=116)
w(f"""    s_cmp_ge_u32 s2, {NT}
    s_cbranch_scc1 p1_done
    s_load_dwordx4 s[4:7], s[0:1], 8
    s_load_dwordx2 s[28:29], s[0:1], 32    ; angle
    s_load_dwordx2 s[30:31], s[0:1], 104   ; ws
    s_load_dwordx2 s[40:41], s[0:1], 0     ; m
    s_load_dwordx2 s[44:45], s[0:1], 24    ; dist
    v_lshlrev_b32 v1, 4, v0
    v_lshlrev_b32 v2, 3, v0
    v_mov_b32 v3, 3
    v_readfirstlane_b32 s3, v0
    s_lshr_b32 s3, s3, 6
    s_mul_i32 s32, s2, {S * 4}
    s_mul_i32 s33, s2, {S * 2}
    s_mov_b32 s34, {MAGIC}
    s_mov_b32 s35, {(-EO * 4) & 0xffffffff}
    v_lshlrev_b32 v4, 2, v0
    v_mov_b32 v5, 0
    v_cmp_gt_u32 vcc, 256, v0
    s_mov_b64 exec, vcc
    ds_write_b32 v4, v5
    s_mov_b64 exec, -1
    v_add_u32 v12, 1024, v1
    v_add_u32 v13, {1024 + 65536}, v1
    v_cmp_gt_u32 vcc, {TS // 16 - 9 * 512}, v0
    s_nop 1
    v_cndmask_b32 v14, 2.0, v1, vcc
    s_waitcnt lgkmcnt(0)
    s_barrier""")
stamp()
w(srd(8, 4, T * 4))
w(srd(12, 6, T * 4))
w(srd(16, 28, T * 2))
w(srd(20, 30, NT * TS))
w(f"""    s_add_u32 s30, s30, {OFFS_BASE}
    s_addc_u32 s31, s31, 0""")
w(srd(24, 30, NT * 1024))


def p1_loads(r):
    b = RB + r * 10
    w(f"""    s_add_u32 s36, s32, {r * 8192}
    s_add_u32 s37, s33, {r * 4096}
    buffer_load_dwordx4 v[{b + 4}:{b + 7}], v1, s[12:15], s36 offen{LDF}
    buffer_load_dwordx4 v[{b}:{b + 3}], v1, s[8:11], s36 offen{LDF}
    buffer_load_dwordx2 v[{b + 8}:{b + 9}], v2, s[16:19], s37 offen{LDF}""")


NPART = S // 4 - 6 * 512
PMASK = (1 << NPART) - 1


def wave0_partial(tag, fn):
    w(f"""    s_cmp_lg_u32 s3, 0
    s_cbranch_scc1 {tag}
    s_mov_b32 exec_lo, {PMASK & 0xffffffff}
    s_mov_b32 exec_hi, {PMASK >> 32}""")
    fn()
    w(f"""    s_mov_b64 exec, -1
{tag}:""")


def p1_hist(r):
    b = RB + r * 10
    for i in range(4):
        vin = b + i
        vo = b + 4 + i
        t = TMP + i
        w(f"""    v_mul_hi_u32_u24 v{t}, s34, v{vo}
    v_lshlrev_b32 v{vo}, 2, v{vo}
    v_mad_i32_i24 v{vo}, v{t}, s35, v{vo}
    v_lshl_or_b32 v{vin}, v{vin}, 13, v{vo}
    v_lshlrev_b32 v{vo}, 2, v{t}
    ds_add_rtn_u32 v{KB + r * 4 + i}, v{vo}, v3""")


def p1_base(r):
    b = RB + r * 10
    for i in range(4):
        vo = b + 4 + i
        w(f"    ds_read_b32 v{vo}, v{vo}")


def p1_scatter(r):
    b = RB + r * 10
    for i in range(4):
        vin = b + i
        vo = b + 4 + i
        k = KB + r * 4 + i
        t = TMP + i
        va = b + 8 + i // 2
        wr = "ds_write_b16" if i % 2 == 0 else "ds_write_b16_d16_hi"
        w(f"""    v_add_lshl_u32 v{k}, v{vo}, v{k}, 1
    v_and_b32 v{t}, 2, v{k}
    v_add_u32 v{vo}, v{k}, v{t}
    v_mad_i32_i24 v{k}, v{t}, -2, v{k}
    ds_write_b32 v{vo}, v{vin}
    {wr} v{k}, v{va} offset:4""")


if "notouch" not in sys.argv:
    w(f"""    s_cmp_lg_u32 s3, 7
    s_cbranch_scc1 p1_notouch
    s_and_b32 s41, s41, 0xffff
    s_mov_b32 s42, {E * 8}
    s_mov_b32 s43, 0x00020000
    s_and_b32 s45, s45, 0xffff
    s_mov_b32 s46, {E * 2}
    s_mov_b32 s47, 0x00020000
    v_and_b32 v6, 63, v0
    v_lshlrev_b32 v6, 7, v6
    s_mul_i32 s36, s2, 6272
    s_mul_i32 s37, s2, 1664
    s_mov_b64 exec, {(1 << 49) - 1:#x}
    buffer_load_dword v86, v6, s[40:43], s36 offen
    s_mov_b64 exec, 0x1fff
    buffer_load_dword v87, v6, s[44:47], s37 offen
    s_mov_b64 exec, -1
p1_notouch:""".replace("s_mov_b64 exec, 0x1ffffffffffff", "s_mov_b32 exec_hi, 0x1ffff"))
PR = [3, 1, 2, 2]
for a_ in sys.argv:
    if a_.startswith("pr="):
        PR = [int(x) for x in a_[3:]]
LDF = " nt" if "ldnt" in sys.argv else ""
w(f"""    s_setprio {PR[1]}
    s_cmp_ge_u32 s2, 256
    s_cbranch_scc1 p1_lowprio
    s_setprio {PR[0]}
p1_lowprio:""")
wave0_partial("p1_l3skip", lambda: p1_loads(6))
for r in range(6):
    p1_loads(r)
w(f"    s_setprio {PR[2]}")
stamp()
for r in range(6):
    w(f"    s_waitcnt vmcnt({15 - 3 * r})")
    p1_hist(r)
    if r == 0:
        wave0_partial("p1_h3skip", lambda: p1_hist(6))
w("    s_waitcnt lgkmcnt(0)")
stamp()
w(f"""    s_barrier
    s_cmp_lg_u32 s3, 0
    s_cbranch_scc1 p1_scan_skip
    ds_read_b128 v[4:7], v1
    s_waitcnt lgkmcnt(0)
    v_add_u32 v5, v4, v5
    v_add_u32 v6, v5, v6
    v_add_u32 v7, v6, v7
    v_mov_b32 v8, v7
    s_nop 1
    v_add_u32_dpp v8, v8, v8 row_shr:1 row_mask:0xf bank_mask:0xf bound_ctrl:0
    s_nop 1
    v_add_u32_dpp v8, v8, v8 row_shr:2 row_mask:0xf bank_mask:0xf bound_ctrl:0
    s_nop 1
    v_add_u32_dpp v8, v8, v8 row_shr:4 row_mask:0xf bank_mask:0xf bound_ctrl:0
    s_nop 1
    v_add_u32_dpp v8, v8, v8 row_shr:8 row_mask:0xf bank_mask:0xf bound_ctrl:0
    s_nop 1
    v_add_u32_dpp v8, v8, v8 row_bcast:15 row_mask:0xa bank_mask:0xf
    s_nop 1
    v_add_u32_dpp v8, v8, v8 row_bcast:31 row_mask:0xc bank_mask:0xf
    v_sub_u32 v9, v8, v7
    v_add_u32 v10, v9, v4
    v_add_u32 v11, v9, v5
    v_add_u32 v15, v9, v6
    v_lshl_or_b32 v4, v10, 16, v9
    v_lshl_or_b32 v5, v11, 16, v10
    v_lshl_or_b32 v6, v15, 16, v11
    v_lshl_or_b32 v7, v8, 16, v15
    v_add_u32 v8, 512, v9
    v_add_u32 v9, 512, v10
    v_add_u32 v10, 512, v11
    v_add_u32 v11, 512, v15
    ds_write_b128 v1, v[8:11]
    s_lshl_b32 s36, s2, 10
    s_waitcnt lgkmcnt(0)
    s_barrier
    buffer_store_dwordx4 v[4:7], v1, s[24:27], s36 offen{ST_FL}
    s_nop 1
    s_branch p1_scan_done
p1_scan_skip:
    s_barrier
p1_scan_done:""")
stamp()
wave0_partial("p1_b3skip", lambda: (p1_base(6), w("    s_waitcnt lgkmcnt(0)"), p1_scatter(6)))
p1_base(0)
p1_base(1)
for r in range(6):
    if r + 2 < 6:
        p1_base(r + 2)
    w("    s_waitcnt lgkmcnt(%d)" % (8 if r == 0 else (4 if r + 2 < 6 else 0) + 8))
    p1_scatter(r)
w("    s_waitcnt lgkmcnt(0)")
stamp()
w("    s_barrier")
stamp()
w(f"    s_setprio {PR[3]}")
stg = [16 + 4 * r for r in range(10)]
for r in range(10):
    a, off = (12, r * 8192) if r < 8 else (13, (r - 8) * 8192)
    w(f"    ds_read_b128 v[{stg[r]}:{stg[r] + 3}], v{a} offset:{off}")
w(f"    s_mul_i32 s36, s2, {TS}")
for r in range(10):
    w(f"""    s_waitcnt lgkmcnt({9 - r})
    buffer_store_dwordx4 v[{stg[r]}:{stg[r] + 3}], v{1 if r < 9 else 14}, s[20:23], s36 offen{ST_FL}
    s_add_u32 s36, s36, 8192""")
stamp()
if DIAG:
    w("    s_waitcnt vmcnt(0)")
stamp()
if DIAG:
    w("""    s_cmp_ge_u32 s2, 256
    s_cselect_b32 s38, 8, 0
    s_add_u32 s3, s3, s38""")
stamp_flush(0, 3, 40)
w("""p1_done:
    s_endpgm""")
w(kd("part_kernel", 120 if DIAG else 116, 48))

w(head("acc_kernel"))
S_WAVE = 3
S_MI = 4
S_REC = 8
S_OFFS = 12
S_OUT = 12
S_SKIP = 16
S_IT = 17
S_RA = 18
S_RB = 20
S_REM = 22
S_INC = 23
S_BK4 = 24
S_E0 = 25
S_T0, S_T1 = 26, 27
S_K = 28
S_K2 = 30
S_TODO = 32
S_MYINC = 33
S_768 = 34
S_ROT = 35
S_MASK = 36
BM = [(8, 10), (12, 14), (32, 100)]
SW_SBF = 36
SW_RBF = 84
S_DIST = 60
S_CENT = 64
S_MB = 68

DA = 6
V_REC = [4 * i + 4 for i in range(DA)]
V_E0, V_E1, V_W0, V_W1, V_BASE, V_L12 = [r + 3 for r in V_REC]
V_L6, V_L6P, V_TWO = 1, 2, 3
V_T = 28
V_JUNK = 42
V_S = [44 + 12 * q for q in range(4)]
V_CH = 3
V_PK = [4, 8, 12, 120]
V_G = [28, 92, 106]
V_MR = [42, 124, 126, 42]
V_SI = 1
V_SL = 2
V_TB2 = 4
V_KC = [16, 18]
V_HIM = 19
V_CN = 20
V_L4 = 21
V_BLK = [24, 32, 40]
V_RW = [48 + 2 * j for j in range(NITB)]
V_RA = [102 + j for j in range(NITB - 1)] + [23]
_st.update(n=0, v=43)
t = V_T

w(f"""    s_cmp_ge_u32 s2, 256
    s_cbranch_scc1 p2_done
    s_load_dwordx2 s[{S_MI}:{S_MI + 1}], s[0:1], 0
    v_readfirstlane_b32 s{S_WAVE}, v0
    s_lshr_b32 s{S_WAVE}, s{S_WAVE}, 6
    s_and_b32 s{S_T1}, s2, 7
    s_lshl_b32 s{S_T1}, s{S_T1}, 5
    s_lshr_b32 s{S_T0}, s2, 3
    s_add_u32 s{S_T1}, s{S_T1}, s{S_T0}        ; bucket
    s_mul_i32 s{S_E0}, s{S_T1}, {EO}
    s_lshl_b32 s{S_BK4}, s{S_T1}, 2
    s_and_b32 s{S_ROT}, s{S_T0}, {ROTN - 1}
    s_mul_i32 s{S_ROT}, s{S_ROT}, {416 // ROTN}
    s_lshr_b32 s{S_ROT}, s{S_ROT}, 1
    s_mov_b32 s{S_SKIP}, 0
    s_mov_b64 s[{S_RA}:{S_RA + 1}], -1
    s_mov_b64 s[{S_RB}:{S_RB + 1}], -1
    s_movk_i32 s{S_768}, {BSTR}
    s_cmp_lt_u32 s{S_WAVE}, {NPW}
    s_cbranch_scc1 a_batch""")
for i in range(48):
    w(f"    v_mov_b32 v{V_S[0] + i}, 0")
w(f"""a_batch:
    s_load_dwordx2 s[{S_REC}:{S_REC + 1}], s[0:1], 104
    s_setprio 3
    v_lshlrev_b32 v{t + 2}, 2, v0
    v_mov_b32 v{t + 3}, 0
    v_cmp_gt_u32 vcc, 256, v0
    s_mov_b64 exec, vcc
    ds_write_b32 v{t + 2}, v{t + 3} offset:{A_CNT}
    s_mov_b64 exec, -1
    v_and_b32 v{t + 4}, 31, v0
    v_lshrrev_b32 v{t + 5}, 5, v0
    v_lshl_add_u32 v{t + 5}, v{t + 5}, 4, v{t + 4}      ; tile
    v_lshlrev_b32 v{t}, 10, v{t + 5}
    v_cmp_gt_u32 vcc, 16, v{t + 4}
    v_mul_u32_u24 v{V_L6}, 6, v{t + 4}
    v_add_u32 v{V_L6P}, 3, v{V_L6}
    v_cndmask_b32 v{t}, 2.0, v{t}, vcc
    v_lshlrev_b32 v{V_L12}, 1, v{V_L6}
    v_and_b32 v{V_BASE}, 32, v0
    v_lshlrev_b32 v{V_BASE}, 2, v{V_BASE}
    v_mov_b32 v{V_TWO}, 2
    s_mov_b32 s{S_T0}, {TS}
    v_mul_lo_u32 v{V_E0}, v{t + 5}, s{S_T0}
    s_waitcnt lgkmcnt(0)
    s_add_u32 s{S_OFFS}, s{S_REC}, {OFFS_BASE}
    s_addc_u32 s{S_OFFS + 1}, s{S_REC + 1}, 0
    s_and_b32 s{S_OFFS + 1}, s{S_OFFS + 1}, 0xffff
    s_mov_b32 s{S_OFFS + 2}, {NT * 1024}
    s_mov_b32 s{S_OFFS + 3}, 0x00020000
    buffer_load_dword v{t + 1}, v{t}, s[{S_OFFS}:{S_OFFS + 3}], s{S_BK4} offen
    s_and_b32 s{S_REC + 1}, s{S_REC + 1}, 0xffff
    s_mov_b32 s{S_REC + 2}, {NT * TS}
    s_mov_b32 s{S_REC + 3}, 0x00020000
    s_and_b32 s{S_MI + 1}, s{S_MI + 1}, 0xffff
    s_or_b32 s{S_MI + 1}, s{S_MI + 1}, 0x80000
    s_mov_b32 s{S_MI + 2}, {E}
    s_mov_b32 s{S_MI + 3}, 0x00020000
    s_mov_b32 s{S_IT}, 0
    s_mov_b32 s{S_REM}, -1
    s_mov_b32 s{S_MYINC}, 0""")
stamp()
w(f"""    s_barrier
    s_waitcnt vmcnt(0)
    v_and_b32 v{t + 2}, 0xffff, v{t + 1}               ; s3
    v_lshrrev_b32 v{t + 3}, 16, v{t + 1}               ; e3
    v_and_b32 v{t + 4}, 1, v{t + 1}
    v_mul_u32_u24 v{t + 4}, 3, v{t + 4}                ; relS
    v_sub_u32 v{t + 2}, v{t + 2}, v{t + 4}             ; hb
    v_sub_u32 v{t + 3}, v{t + 3}, v{t + 2}             ; relE
    v_lshl_add_u32 v{V_E0}, v{t + 2}, 1, v{V_E0}
    v_lshl_or_b32 v{V_E1}, v{t + 4}, 16, v{t + 3}
    v_cmp_lt_u32 vcc, v{t + 4}, v{t + 3}
    s_or_b32 s{S_TODO}, vcc_lo, vcc_hi""")
stamp()


def pop(tag, fetch):
    w(f"""    s_cmp_lg_u32 s{S_TODO}, 0
    s_cbranch_scc1 {tag}_have
    s_cmp_lg_u32 s{S_REM}, -1
    s_cbranch_scc1 {tag}_none
    v_and_b32 v{t}, 0xffff, v{V_E1}
    v_subrev_u32 v{t}, 192, v{t}
    v_max_i32 v{V_E1}, 0, v{t}
    v_add_u32 v{V_E0}, 384, v{V_E0}
    v_cmp_lt_u32 vcc, 0, v{V_E1}
    s_or_b32 s{S_TODO}, vcc_lo, vcc_hi
    s_cbranch_scc1 {tag}_have
    s_mov_b32 s{S_REM}, {DA}
    s_branch {tag}_none
{tag}_have:
    s_ff1_i32_b32 s{S_T0}, s{S_TODO}
    s_bitset0_b32 s{S_TODO}, s{S_T0}""")
    if fetch:
        w(f"""    s_lshl_b32 s{S_T0}, s{S_T0}, 2
    v_add_u32 v{t}, s{S_T0}, v{V_BASE}
    ds_bpermute_b32 v{V_W0}, v{t}, v{V_E0}
    ds_bpermute_b32 v{V_W1}, v{t}, v{V_E1}""")
    w(f"{tag}_none:")


def issue_rec(u, tag):
    R = V_REC[u]
    mA = S_MASK + u * 4
    mB = mA + 2
    sd0 = "src0_sel:DWORD src1_sel:WORD_0"
    sd1 = "src0_sel:DWORD src1_sel:WORD_1"
    w(f"""    s_waitcnt lgkmcnt(0)
    v_add_u32 v{t + 1}, v{V_W0}, v{V_L12}
    v_cmp_lt_u32_sdwa vcc, v{V_L6}, v{V_W1} {sd0}
    v_cmp_ge_u32_sdwa s[{mA}:{mA + 1}], v{V_L6}, v{V_W1} {sd1}
    v_cmp_lt_u32_sdwa s[{mB}:{mB + 1}], v{V_L6P}, v{V_W1} {sd0}
    s_or_b64 exec, vcc, 1
    buffer_load_dwordx3 v[{R}:{R + 2}], v{t + 1}, s[{S_REC}:{S_REC + 3}], 0 offen
    s_mov_b64 exec, -1
    s_and_b64 s[{mA}:{mA + 1}], s[{mA}:{mA + 1}], vcc""")
    pop(tag, True)


def place(u):
    if "xnoplace" in sys.argv:
        w(f"    s_add_u32 s{S_IT}, s{S_IT}, 1")
        return
    R = V_REC[u]
    mA = S_MASK + u * 4
    mB = mA + 2
    bA, bB, rA, rB, xA, xB = t + 4, t + 5, t + 6, t + 7, t + 8, t + 9
    sb3 = "dst_sel:DWORD dst_unused:UNUSED_PAD src0_sel:DWORD src1_sel:BYTE_3"
    w(f"""    v_lshlrev_b32_sdwa v{xA}, 2, v{R} {sb3}
    v_lshlrev_b32_sdwa v{xB}, 2, v{R + 2} {sb3}
    s_mov_b64 exec, s[{mA}:{mA + 1}]
    ds_add_rtn_u32 v{rA}, v{xA}, v{V_TWO} offset:{A_CNT}
    s_mov_b64 exec, s[{mB}:{mB + 1}]
    ds_add_rtn_u32 v{rB}, v{xB}, v{V_TWO} offset:{A_CNT}
    s_mov_b64 exec, -1
    v_mul_u32_u24_sdwa v{bA}, s{S_768}, v{R} {sb3}
    v_mul_u32_u24_sdwa v{bB}, s{S_768}, v{R + 2} {sb3}
    s_waitcnt lgkmcnt(0)
    v_cmp_lt_u32 vcc, 0xff, v{rA}
    s_and_b64 s[{S_K}:{S_K + 1}], vcc, s[{mA}:{mA + 1}]
    v_cmp_lt_u32 vcc, 0xff, v{rB}
    s_and_b64 s[{S_K2}:{S_K2 + 1}], vcc, s[{mB}:{mB + 1}]
    s_or_b64 vcc, s[{S_K}:{S_K + 1}], s[{S_K2}:{S_K2 + 1}]
    s_cbranch_scc0 a_noovf{u}
    v_mov_b32 v{xA}, 0
    s_mov_b64 exec, s[{S_K}:{S_K + 1}]
    ds_add_rtn_u32 v{rA}, v{xA}, v{V_TWO} offset:{A_OVF}
    s_mov_b64 exec, s[{S_K2}:{S_K2 + 1}]
    ds_add_rtn_u32 v{rB}, v{xA}, v{V_TWO} offset:{A_OVF}
    s_waitcnt lgkmcnt(0)
    v_lshrrev_b32 v{bB}, 8, v{rB}
    v_cmp_le_u32 vcc, {NOVB}, v{bB}
    v_add_u32 v{bB}, {NBIN}, v{bB}
    v_mul_u32_u24 v{bB}, s{S_768}, v{bB}
    v_and_b32 v{rB}, 0xff, v{rB}
    s_mov_b64 s[{S_K2}:{S_K2 + 1}], vcc
    s_mov_b64 exec, s[{S_K}:{S_K + 1}]
    v_lshrrev_b32 v{bA}, 8, v{rA}
    v_cmp_le_u32 vcc, {NOVB}, v{bA}
    v_add_u32 v{bA}, {NBIN}, v{bA}
    v_mul_u32_u24 v{bA}, s{S_768}, v{bA}
    v_and_b32 v{rA}, 0xff, v{rA}
    s_mov_b64 s[{S_K}:{S_K + 1}], vcc
    s_mov_b64 exec, -1
    s_or_b64 vcc, s[{S_K}:{S_K + 1}], s[{S_K2}:{S_K2 + 1}]
    s_cbranch_scc0 a_noovf{u}
    s_mov_b64 s[{S_RA}:{S_RA + 1}], s[{S_K}:{S_K + 1}]
    s_mov_b64 s[{S_RB}:{S_RB + 1}], s[{S_K2}:{S_K2 + 1}]
    s_andn2_b64 s[{mA}:{mA + 1}], s[{mA}:{mA + 1}], s[{S_K}:{S_K + 1}]
    s_andn2_b64 s[{mB}:{mB + 1}], s[{mB}:{mB + 1}], s[{S_K2}:{S_K2 + 1}]
    s_mov_b32 s{S_MYINC}, 1
a_noovf{u}:
    v_lshl_add_u32 v{xA}, v{rA}, 1, v{bA}
    v_lshl_add_u32 v{xB}, v{rB}, 1, v{bB}
    v_add_u32 v{rA}, v{rA}, v{bA}
    v_add_u32 v{rB}, v{rB}, v{bB}
    s_mov_b64 exec, s[{mA}:{mA + 1}]
    ds_write_b32 v{xA}, v{R} offset:{A_STG}
    ds_write_b16 v{rA}, v{R + 1} offset:{A_STG + 512}
    s_mov_b64 exec, s[{mB}:{mB + 1}]
    ds_write_b32 v{xB}, v{R + 2} offset:{A_STG}
    ds_write_b16_d16_hi v{rB}, v{R + 1} offset:{A_STG + 512}
    s_mov_b64 exec, -1
    s_cmp_lg_u32 s{S_MYINC}, 0
    s_cbranch_scc1 a_stop
    s_add_u32 s{S_IT}, s{S_IT}, 1""")


w(f"""    s_mov_b32 s{S_T1}, s{S_SKIP}
a_replay:
    s_cmp_eq_u32 s{S_T1}, 0
    s_cbranch_scc1 a_replay_done""")
pop("a_rp", False)
w(f"""    s_sub_u32 s{S_T1}, s{S_T1}, 1
    s_branch a_replay
a_replay_done:""")
for i in range(DA * 2):
    w(f"    s_mov_b64 s[{S_MASK + 2 * i}:{S_MASK + 2 * i + 1}], 0")
pop("a_p0", True)
for u in range(DA - 1):
    w(f"""    s_cmp_lg_u32 s{S_REM}, -1
    s_cbranch_scc1 a_pro_done""")
    issue_rec(u, f"a_pi{u}")
    if u == 0:
        w(f"""    s_and_b64 s[{S_MASK}:{S_MASK + 1}], s[{S_MASK}:{S_MASK + 1}], s[{S_RA}:{S_RA + 1}]
    s_and_b64 s[{S_MASK + 2}:{S_MASK + 3}], s[{S_MASK + 2}:{S_MASK + 3}], s[{S_RB}:{S_RB + 1}]
    s_mov_b64 s[{S_RA}:{S_RA + 1}], -1
    s_mov_b64 s[{S_RB}:{S_RB + 1}], -1""")
w("a_pro_done:")
if "pfA" in sys.argv:
    w(f"""    s_lshr_b32 s{S_T0}, s2, 3
    s_mul_i32 s{S_T0}, s{S_T0}, 12500
    v_lshlrev_b32 v{t + 2}, 4, v0
    v_add_u32 v{t + 2}, s{S_T0}, v{t + 2}
    v_cmp_gt_u32 vcc, 783, v0
    s_or_b64 exec, vcc, 1
    buffer_load_dword v{V_JUNK}, v{t + 2}, s[{S_MI}:{S_MI + 3}], 0 idxen
    s_mov_b64 exec, -1""")
w("a_loop:")
for u in range(DA):
    un = (u + DA - 1) % DA
    if u % 3 == 0 and "noprioA" not in sys.argv:
        w(f"""    s_cmp_lt_u32 s{S_IT}, 3
    s_cbranch_scc1 a_pr{u}
    s_setprio 2
    s_cmp_lt_u32 s{S_IT}, 6
    s_cbranch_scc1 a_pr{u}
    s_setprio 1
    s_cmp_lt_u32 s{S_IT}, 9
    s_cbranch_scc1 a_pr{u}
    s_setprio 0
a_pr{u}:""")
    w(f"""    s_cmp_lg_u32 s{S_REM}, -1
    s_cbranch_scc1 a_cd{u}""")
    issue_rec(un, f"a_li{u}")
    w(f"""    s_waitcnt vmcnt({DA - 1})
    s_branch a_go{u}
a_cd{u}:
    s_sub_u32 s{S_REM}, s{S_REM}, 1
    s_cmp_eq_u32 s{S_REM}, 0
    s_cbranch_scc1 a_end
    s_mov_b64 s[{S_MASK + un * 4}:{S_MASK + un * 4 + 1}], 0
    s_mov_b64 s[{S_MASK + un * 4 + 2}:{S_MASK + un * 4 + 3}], 0
    s_waitcnt vmcnt(0)
a_go{u}:""")
    place(u)
w(f"""    s_branch a_loop
a_stop:
    v_mov_b32 v{t}, 0
    v_mov_b32 v{t + 1}, 1
    ds_write_b32 v{t}, v{t + 1} offset:{A_INC}
a_end:
    s_add_u32 s{S_SKIP}, s{S_SKIP}, s{S_IT}
    s_load_dwordx2 s[{S_DIST}:{S_DIST + 1}], s[0:1], 24
    s_load_dwordx2 s[{S_CENT}:{S_CENT + 1}], s[0:1], 40
    s_load_dwordx2 s[{S_MB}:{S_MB + 1}], s[0:1], 0
    s_waitcnt vmcnt(0) lgkmcnt(0)
    s_load_dwordx4 s[{S_CENT}:{S_CENT + 3}], s[{S_CENT}:{S_CENT + 1}], 0
    s_and_b32 s{S_DIST + 1}, s{S_DIST + 1}, 0xffff
    s_mov_b32 s{S_DIST + 2}, {E * 2}
    s_mov_b32 s{S_DIST + 3}, 0x00020000
    s_and_b32 s{S_MB + 1}, s{S_MB + 1}, 0xffff
    s_mov_b32 s{S_MB + 2}, {E * 8}
    s_mov_b32 s{S_MB + 3}, 0x00020000""")
stamp()
w(f"""    s_barrier
    v_mov_b32 v{t}, 0
    ds_read_b64 v[{t + 2}:{t + 3}], v{t} offset:{A_OVF}""")
t2 = V_TB2
if DIAG:
    w("    v_mov_b32 v22, v43")
    _st["v"] = 22
w(f"""    s_cmp_ge_u32 s{S_WAVE}, {NPW}
    s_cbranch_scc1 b_consumer""")
NB2 = NITB * NPW
w(f"""    v_and_b32 v{t2}, 63, v0                       ; lane
    s_add_u32 s{S_T0}, s{S_WAVE}, s{S_ROT}
    v_mul_u32_u24 v{t2 + 1}, {NPW}, v{t2}
    v_add_u32 v{t2 + 1}, s{S_T0}, v{t2 + 1}
    v_subrev_u32 v{t2 + 2}, {NB2}, v{t2 + 1}
    v_min_u32 v{t2 + 1}, v{t2 + 1}, v{t2 + 2}
    v_min_u32 v{t2 + 2}, {NBIN - 1}, v{t2 + 1}
    v_lshlrev_b32 v{t2 + 2}, 2, v{t2 + 2}
    ds_read_b32 v{V_CN}, v{t2 + 2} offset:{A_CNT}
    v_lshlrev_b32 v{t2 + 3}, 3, v{t2}
    v_lshlrev_b32 v{V_L4}, 2, v{t2}
    s_mul_i32 s{S_T0}, s{S_T0}, {BSTR}""")
for j in range(NITB):
    w(f"""    v_add_u32 v{t2 + 6 + 2 * (j % 2)}, s{S_T0}, v{t2 + 3}
    v_add_u32 v{t2 + 7 + 2 * (j % 2)}, s{S_T0}, v{V_L4}
    s_add_u32 s{S_T0}, s{S_T0}, {NPW * BSTR}
    s_sub_u32 s{S_T1}, s{S_T0}, {NB2 * BSTR}
    s_min_u32 s{S_T0}, s{S_T0}, s{S_T1}
    ds_read_b64 v[{V_RW[j]}:{V_RW[j] + 1}], v{t2 + 6 + 2 * (j % 2)} offset:{A_STG}
    ds_read_b32 v{V_RA[j]}, v{t2 + 7 + 2 * (j % 2)} offset:{A_STG + 512}""")
w(f"""    s_waitcnt lgkmcnt(0)
    v_readfirstlane_b32 s{S_INC}, v{t + 3}
    v_min_u32 v{t + 2}, {NOVB * 256}, v{t + 2}
    v_subrev_u32 v{t2 + 5}, {NBIN}, v{t2 + 1}
    v_lshlrev_b32 v{t2 + 5}, 8, v{t2 + 5}
    v_sub_u32 v{t2 + 5}, v{t + 2}, v{t2 + 5}
    v_cmp_gt_u32 vcc, {NBIN}, v{t2 + 1}
    v_max_i32 v{t2 + 5}, 0, v{t2 + 5}
    s_barrier
    v_cndmask_b32 v{V_CN}, v{t2 + 5}, v{V_CN}, vcc
    v_min_u32 v{V_CN}, 0x100, v{V_CN}""")
stamp(3)


def gather(j):
    u = j % 3
    B = V_BLK[u]
    mA, mB = BM[u]
    W = V_RW[j]
    w(f"""    v_readlane_b32 s{S_T0}, v{V_CN}, {j}
    v_lshrrev_b32 v{t2}, 13, v{W}
    v_lshrrev_b32 v{t2 + 1}, 13, v{W + 1}
    s_sub_u32 s{S_T1}, s{S_T0}, 2
    v_cmp_gt_u32 s[{mA}:{mA + 1}], s{S_T0}, v{V_L4}
    v_cmp_gt_i32 s[{mB}:{mB + 1}], s{S_T1}, v{V_L4}
    s_or_b64 exec, s[{mA}:{mA + 1}], 1
    buffer_load_dwordx2 v[{B}:{B + 1}], v{t2}, s[{S_MI}:{S_MI + 3}], 0 idxen
    s_or_b64 exec, s[{mB}:{mB + 1}], 1
    buffer_load_dwordx2 v[{B + 4}:{B + 5}], v{t2 + 1}, s[{S_MI}:{S_MI + 3}], 0 idxen
    s_mov_b64 exec, -1""")


def build(j, vm):
    u = j % 3
    c_, k = JMAP[j]
    p = c_ % 2
    so = (k + 5 * p) * 2048
    B = V_BLK[u]
    mA, mB = BM[u]
    W, A = V_RW[j], V_RA[j]
    t = t2
    idx0 = so // 16
    a2, c1, c2, c3 = t + 2, t + 4, t + 6, t + 8
    K0, K1 = V_KC
    lo = "op_sel:[0,0] op_sel_hi:[1,0]"
    hi = "op_sel:[0,1] op_sel_hi:[1,1]"
    w(f"""    v_and_b32 v{t + 10}, 0x1ffc, v{W}
    v_and_b32 v{t + 11}, 0x1ffc, v{W + 1}
    v_add_u32 v{t}, {idx0}, v{V_SI}
    v_add_u32 v{t + 1}, {idx0 + 64}, v{V_SI}
    s_mov_b64 exec, s[{mA}:{mA + 1}]
    ds_wrxchg_rtn_b32 v{B + 3}, v{t + 10}, v{t} offset:{HEAD[p]}
    s_mov_b64 exec, s[{mB}:{mB + 1}]
    ds_wrxchg_rtn_b32 v{B + 7}, v{t + 11}, v{t + 1} offset:{HEAD[p]}
    s_mov_b64 exec, -1
    v_lshlrev_b32 v{a2}, 16, v{A}
    v_and_b32 v{a2 + 1}, 0xffff0000, v{A}
    v_pk_mul_f32 v[{c3}:{c3 + 1}], v[{a2}:{a2 + 1}], v[{K0}:{K0 + 1}] {hi}
    v_pk_mul_f32 v[{c1}:{c1 + 1}], v[{a2}:{a2 + 1}], v[{K0}:{K0 + 1}] {lo}
    v_cvt_pk_bf16_f32 v{c3 + 1}, v{c3}, v{c3 + 1}
    v_fract_f32 v{c1}, v{c1}
    v_fract_f32 v{c1 + 1}, v{c1 + 1}
    v_lshlrev_b32 v{c3}, 16, v{c3 + 1}
    v_and_b32 v{c3 + 1}, 0xffff0000, v{c3 + 1}
    v_cos_f32 v{c1}, v{c1}
    v_cos_f32 v{c1 + 1}, v{c1 + 1}
    v_pk_mul_f32 v[{c3}:{c3 + 1}], v[{c3}:{c3 + 1}], v[{K0}:{K0 + 1}] {lo}
    v_pk_add_f32 v[{c2}:{c2 + 1}], v[{c1}:{c1 + 1}], v[{c1}:{c1 + 1}]
    v_fract_f32 v{c3}, v{c3}
    v_fract_f32 v{c3 + 1}, v{c3 + 1}
    v_pk_fma_f32 v[{c2}:{c2 + 1}], v[{c2}:{c2 + 1}], v[{c1}:{c1 + 1}], v[{K1}:{K1 + 1}] op_sel:[0,0,0] op_sel_hi:[1,1,0]
    v_cos_f32 v{c3}, v{c3}
    v_cos_f32 v{c3 + 1}, v{c3 + 1}
    v_cvt_pk_bf16_f32 v{B + 2}, v{c1}, v{c2}
    v_cvt_pk_bf16_f32 v{B + 6}, v{c1 + 1}, v{c2 + 1}
    v_cvt_pk_bf16_f32 v{t}, v{c3}, v{c3 + 1}
    s_waitcnt lgkmcnt(0)
    v_lshl_or_b32 v{B + 3}, v{t}, 16, v{B + 3}
    v_and_or_b32 v{B + 7}, v{t}, v{V_HIM}, v{B + 7}
    s_waitcnt vmcnt({vm})
    ds_write_b128 v{V_SL}, v[{B}:{B + 3}] offset:{so}
    ds_write_b128 v{V_SL}, v[{B + 4}:{B + 7}] offset:{so + 1024}""")


w("    s_setprio 3")
gather(0)
gather(1)
w(f"""    v_mov_b32 v{V_KC[0]}, 0.15915494
    v_mov_b32 v{V_KC[0] + 1}, 0x40400000
    v_mov_b32 v{V_KC[1]}, -1.0
    v_mov_b32 v{V_HIM}, 0xffff0000
    s_mul_i32 s{S_T0}, s{S_WAVE}, {WREG}
    s_add_u32 s{S_T0}, s{S_T0}, {BUF0}
    v_lshlrev_b32 v{V_SL}, 2, v{V_L4}
    v_add_u32 v{V_SL}, s{S_T0}, v{V_SL}
    v_lshrrev_b32 v{V_SI}, 4, v{V_SL}
    s_barrier""")
stamp(4)
for j in range(NITB):
    c_, k_ = JMAP[j]
    w(f"    s_setprio {min(2, PAT[c_] - 1 - k_) + (0 if 'prodprio' not in sys.argv else 1)}")
    if j + 2 < NITB:
        gather(j + 2)
        vm = 4
    else:
        vm = 2 * (NITB - 1 - j)
    build(j, vm)
    if k_ == PAT[c_] - 1:
        w("    s_waitcnt lgkmcnt(0)")
        stamp(10 + 2 * c_)
        w("    s_barrier")
        stamp(11 + 2 * c_)
w(f"""    s_cmp_lg_u32 s{S_INC}, 0
    s_cbranch_scc0 b_pdone
    s_barrier
    s_branch a_batch
b_pdone:""")
stamp(7)
stamp_flush(1, S_WAVE, 36)
w("    s_endpgm")

c2 = 4
w(f"""b_consumer:
    s_setprio 3
    v_subrev_u32 v{V_CH}, {NPW * 64}, v0
    v_add_u32 v1, s{S_E0}, v{V_CH}
    v_lshlrev_b32 v{V_CH}, 2, v{V_CH}
    s_waitcnt lgkmcnt(0)
    v_readfirstlane_b32 s{S_INC}, v{t + 3}
    v_lshlrev_b32 v1, 1, v1""")
d0, tmp = 16, 24
for q in range(4):
    w(f"    buffer_load_ushort v{d0 + q}, v1, s[{S_DIST}:{S_DIST + 3}], 0 offen offset:{q * 1024}")
w(f"""    v_mov_b32 v4, {NIL}
    v_mov_b32 v5, {NIL}
    v_mov_b32 v6, {NIL}
    v_mov_b32 v7, {NIL}
    v_mov_b32 v8, 0
    v_mov_b32 v9, 0
    v_mov_b32 v10, 0
    v_mov_b32 v11, {NIL}
    v_lshlrev_b32 v2, 2, v{V_CH}
    v_cmp_gt_u32 vcc, 4608, v2
    s_barrier
    ds_write_b128 v2, v[4:7]
    s_mov_b64 exec, vcc
    ds_write_b128 v2, v[4:7] offset:8192
    s_mov_b64 exec, -1
    ds_write_b128 v8, v[8:11] offset:{B_DUMMY}
    s_waitcnt lgkmcnt(0)
    s_barrier
    s_setprio 0
    s_load_dwordx8 s[8:15], s[0:1], 56
    s_waitcnt vmcnt(0)""")
for i in range(4):
    w(f"    v_lshlrev_b32 v{d0 + i}, 16, v{d0 + i}")
for p in range(4):
    w(f"""    s_lshl_b32 s{S_T0}, s{S_CENT + p}, 16
    s_and_b32 s{S_T1}, s{S_CENT + p}, 0xffff0000""")
    for e in range(4):
        a, b, tt = tmp + 2 * (e % 2), tmp + 1 + 2 * (e % 2), V_PK[e] + p
        d = d0 + e
        w(f"""    v_subrev_f32 v{a}, s{S_T0}, v{d}
    v_subrev_f32 v{b}, s{S_T1}, v{d}
    v_cvt_pk_bf16_f32 v{tt}, v{a}, v{b}
    v_lshlrev_b32 v{a}, 16, v{tt}
    v_and_b32 v{b}, 0xffff0000, v{tt}
    v_mul_f32 v{a}, v{a}, v{a}
    v_mul_f32 v{b}, v{b}, v{b}
    v_cvt_pk_bf16_f32 v{tt}, v{a}, v{b}
    v_lshlrev_b32 v{a}, 16, v{tt}
    v_and_b32 v{b}, 0xffff0000, v{tt}
    v_mul_f32 v{a}, 0xc1200000, v{a}
    v_mul_f32 v{b}, 0xc1200000, v{b}
    v_cvt_pk_bf16_f32 v{tt}, v{a}, v{b}
    v_lshlrev_b32 v{a}, 16, v{tt}
    v_and_b32 v{b}, 0xffff0000, v{tt}
    v_mul_f32 v{a}, 0x3fb8aa3b, v{a}
    v_mul_f32 v{b}, 0x3fb8aa3b, v{b}
    v_exp_f32 v{a}, v{a}
    v_exp_f32 v{b}, v{b}
    s_nop 0
    v_cvt_pk_bf16_f32 v{tt}, v{a}, v{b}""")
w(f"""    s_waitcnt lgkmcnt(0)
    s_load_dwordx16 s[{SW_RBF}:{SW_RBF + 15}], s[8:9], 0
    s_load_dwordx16 s[{SW_SBF}:{SW_SBF + 15}], s[10:11], 0
    s_load_dwordx16 s[{SW_SBF + 16}:{SW_SBF + 31}], s[10:11], 64
    s_load_dwordx16 s[{SW_SBF + 32}:{SW_SBF + 47}], s[10:11], 128
    s_mov_b64 s[100:101], s[14:15]
    s_load_dwordx8 s[8:15], s[12:13], 0
    s_waitcnt lgkmcnt(0)""")


def gr_code(edges, G, Rt):
    for p in range(4):
        for dp in range(2):
            sa, sb = SW_RBF + (2 * p) * 2 + dp, SW_RBF + (2 * p + 1) * 2 + dp
            w(f"""    s_pack_ll_b32_b16 s{S_T0}, s{sa}, s{sb}
    s_pack_hh_b32_b16 s{S_T1}, s{sa}, s{sb}""")
            for i, q in enumerate(edges):
                for h, st_ in ((0, S_T0), (1, S_T1)):
                    g = Rt[i] + dp * 2 + h
                    c = "0" if p == 0 else f"v{g}"
                    w(f"    v_dot2_f32_bf16 v{g}, v{V_PK[q] + p}, s{st_}, {c}")
    for l in range(3):
        for p in range(4):
            r0 = (2 * p) * 3 + l
            r1 = (2 * p + 1) * 3 + l
            for dp in range(2):
                sa, sb = SW_SBF + r0 * 2 + dp, SW_SBF + r1 * 2 + dp
                w(f"""    s_pack_ll_b32_b16 s{S_T0}, s{sa}, s{sb}
    s_pack_hh_b32_b16 s{S_T1}, s{sa}, s{sb}""")
                for i, q in enumerate(edges):
                    for h, st_ in ((0, S_T0), (1, S_T1)):
                        g = G[i] + 4 * l + dp * 2 + h
                        c = "0" if p == 0 else f"v{g}"
                        w(f"    v_dot2_f32_bf16 v{g}, v{V_PK[q] + p}, s{st_}, {c}")
    for i, q in enumerate(edges):
        w(f"""    v_cvt_pk_bf16_f32 v{G[i] + 12}, v{Rt[i]}, v{Rt[i] + 1}
    v_cvt_pk_bf16_f32 v{G[i] + 13}, v{Rt[i] + 2}, v{Rt[i] + 3}""")
    w("    s_nop 2")


gr_code([0, 1, 2], V_G, [16, 24, 124])
w(f"    s_setprio {3 if 'prodprio' not in sys.argv else 0}")


def prefetch(n, tag):
    pass


PFN = 0


def walk(p, n, tag):
    r = [c2 + 4 * i for i in range(4)]
    M0, C1 = 20, 42
    ad, nil = 1, 2
    for i in range(n):
        w(f"    ds_read_b32 v{r[i]}, v{V_CH} offset:{HEAD[p] + i * 2048}")
    w(f"    v_mov_b32 v{nil}, {NIL}")
    for i in range(n):
        w(f"""    s_waitcnt lgkmcnt({n - 1 - i + 2 * i})
    v_lshlrev_b32 v{ad}, 4, v{r[i]}
    ds_write_b32 v{V_CH}, v{nil} offset:{HEAD[p] + i * 2048}
    ds_read_b128 v[{r[i]}:{r[i] + 3}], v{ad}""")
    w(f"""    v_mov_b32 v{nil}, {B_DUMMY}
{tag}:""")
    for i in range(n):
        R, Sx = r[i], V_S[i]
        X = 24
        w(f"""    s_waitcnt lgkmcnt({n - 1})
    v_lshlrev_b32_sdwa v{ad}, 4, v{R + 3} dst_sel:DWORD dst_unused:UNUSED_PAD src0_sel:DWORD src1_sel:WORD_0
    v_lshlrev_b32 v{M0}, 16, v{R}
    v_lshlrev_b32 v{M0 + 1}, 16, v{R + 1}
    v_lshlrev_b32 v{C1}, 16, v{R + 2}
    v_and_b32 v{X}, 0xffff0000, v{R}
    v_and_b32 v{X + 1}, 0xffff0000, v{R + 1}
    v_and_b32 v{X + 2}, 0xffff0000, v{R + 2}
    v_and_b32 v{X + 3}, 0xffff0000, v{R + 3}
    ds_read_b128 v[{R}:{R + 3}], v{ad}""")
        if i == 0:
            w(f"    v_cmp_ne_u32 vcc, v{ad}, v{nil}")
        else:
            w(f"    v_cmp_ne_u32 s[{S_K}:{S_K + 1}], v{ad}, v{nil}")
        for l in range(3):
            cp = C1 if l == 0 else X + 2
            sel = "op_sel:[0,1,0] op_sel_hi:[1,1,1]" if l == 2 else "op_sel:[0,0,0] op_sel_hi:[1,0,1]"
            for h, mm in ((0, M0), (1, X)):
                s_ = Sx + 4 * l + 2 * h
                w(f"    v_pk_fma_f32 v[{s_}:{s_ + 1}], v[{mm}:{mm + 1}], v[{cp}:{cp + 1}], v[{s_}:{s_ + 1}] {sel}")
        if i > 0:
            w(f"    s_or_b64 vcc, vcc, s[{S_K}:{S_K + 1}]")
    w(f"""    s_cbranch_vccnz {tag}
    s_waitcnt lgkmcnt(0)""")


w(f"""    s_mov_b32 s{S_REM}, {NCHK}
b_cloop:""")
for p in range(2):
    w("    s_barrier")
    prefetch(PFN, f"b_pfl{p}")
    w(f"""    s_cmp_eq_u32 s{S_WAVE}, {NPW}
    s_cbranch_scc1 b_w4{p}""")
    walk(p, 3, f"b_wa{p}")
    w(f"""    s_branch b_wdone{p}
b_w4{p}:""")
    walk(p, 4, f"b_wb{p}")
    w(f"b_wdone{p}:")
    stamp(8 + p)
    w(f"""    s_sub_u32 s{S_REM}, s{S_REM}, 1
    s_cmp_eq_u32 s{S_REM}, 0
    s_cbranch_scc1 b_cend""")
w(f"""    s_branch b_cloop
b_cend:
    s_waitcnt vmcnt(0)
    s_cmp_lg_u32 s{S_INC}, 0
    s_cbranch_scc0 b_final
    s_barrier
    s_branch a_batch
b_final:
    s_load_dwordx8 s[16:23], s[100:101], 0            ; w_up
    s_load_dwordx2 s[28:29], s[0:1], 88               ; out
    v_lshrrev_b32 v1, 2, v{V_CH}
    v_add_u32 v1, s{S_E0}, v1
    v_add_u32 v2, 512, v1
    buffer_load_dwordx2 v[{V_MR[0]}:{V_MR[0] + 1}], v1, s[{S_MI}:{S_MI + 3}], 0 idxen
    buffer_load_dwordx2 v[{V_MR[1]}:{V_MR[1] + 1}], v2, s[{S_MI}:{S_MI + 3}], 0 idxen
    v_add_u32 v2, 1024, v1
    s_lshl_b32 s{S_E0}, s{S_E0}, 3
    buffer_load_dwordx2 v[{V_MR[2]}:{V_MR[2] + 1}], v2, s[{S_MI}:{S_MI + 3}], 0 idxen
    v_lshlrev_b32 v{V_CH}, 1, v{V_CH}                 ; c*8""")
stamp(6)
SWD2, SWU2, S_OUT = 8, 16, 28


def fin_group(edges, G, first):
    R = [dict(AG=4 + 8 * i, U=8 + 8 * i) for i in range(len(edges))]
    if DIAG:
        R[-1] = dict(AG=V_S[0], U=24) if len(edges) == 3 else R[-1]
    for l in range(3):
        for k in range(4):
            for dp in range(2):
                sg = SWD2 + k * 2 + dp
                w(f"""    s_lshl_b32 s{S_T0}, s{sg}, 16
    s_and_b32 s{S_T1}, s{sg}, 0xffff0000""")
                for i, q in enumerate(edges):
                    for h, st_ in ((0, S_T0), (1, S_T1)):
                        u_ = R[i]['U'] + dp * 2 + h
                        op = "v_mul_f32" if k == 0 else "v_fmac_f32"
                        w(f"    {op} v{u_}, s{st_}, v{V_S[q] + 4 * l + [0, 2, 1, 3][k]}")
        for i, q in enumerate(edges):
            for j in range(4):
                op = "v_mul_f32" if l == 0 else "v_fmac_f32"
                w(f"    {op} v{R[i]['AG'] + j}, v{G[i] + 4 * l + j}, v{R[i]['U'] + j}")
    if first:
        w(f"""    s_waitcnt lgkmcnt(0)
    s_and_b32 s{S_OUT + 1}, s{S_OUT + 1}, 0xffff
    s_mov_b32 s{S_OUT + 2}, {E * 8}
    s_mov_b32 s{S_OUT + 3}, 0x00020000""")
    for k in range(4):
        for dp in range(2):
            sg = SWU2 + k * 2 + dp
            w(f"""    s_lshl_b32 s{S_T0}, s{sg}, 16
    s_and_b32 s{S_T1}, s{sg}, 0xffff0000""")
            for i, q in enumerate(edges):
                for h, st_ in ((0, S_T0), (1, S_T1)):
                    u_ = R[i]['U'] + dp * 2 + h
                    op = "v_mul_f32" if k == 0 else "v_fmac_f32"
                    w(f"    {op} v{u_}, s{st_}, v{R[i]['AG'] + k}")
    w("    s_waitcnt vmcnt(0)")
    for i, q in enumerate(edges):
        for dp in range(2):
            u0 = R[i]['U'] + 2 * dp
            rp = G[i] + 12 + dp
            mr = V_MR[q] + dp
            a, b = R[i]['AG'], R[i]['AG'] + 1
            w(f"""    v_cvt_pk_bf16_f32 v{u0 + 1}, v{u0}, v{u0 + 1}
    v_lshlrev_b32 v{a}, 16, v{rp}
    v_and_b32 v{b}, 0xffff0000, v{rp}
    v_lshlrev_b32 v{u0}, 16, v{u0 + 1}
    v_and_b32 v{u0 + 1}, 0xffff0000, v{u0 + 1}
    v_mul_f32 v{u0}, v{u0}, v{a}
    v_mul_f32 v{u0 + 1}, v{u0 + 1}, v{b}
    v_cvt_pk_bf16_f32 v{u0 + 1}, v{u0}, v{u0 + 1}
    v_lshlrev_b32 v{a}, 16, v{mr}
    v_and_b32 v{b}, 0xffff0000, v{mr}
    v_lshlrev_b32 v{u0}, 16, v{u0 + 1}
    v_and_b32 v{u0 + 1}, 0xffff0000, v{u0 + 1}
    v_add_f32 v{u0}, v{u0}, v{a}
    v_add_f32 v{u0 + 1}, v{u0 + 1}, v{b}
    v_cvt_pk_bf16_f32 v{rp}, v{u0}, v{u0 + 1}""")
        w(f"""    s_add_u32 s{S_T0}, s{S_E0}, {q * 4096}
    buffer_store_dwordx2 v[{G[i] + 12}:{G[i] + 13}], v{V_CH}, s[{S_OUT}:{S_OUT + 3}], s{S_T0} offen""")


fin_group([0, 1, 2], V_G, True)
w(f"""    s_cmp_lg_u32 s{S_WAVE}, {NPW}
    s_cbranch_scc1 b_fin_done
    v_cmp_gt_u32 vcc, {(EO - 1536) * 8}, v{V_CH}
    v_add_u32 v2, 1536, v1
    buffer_load_dwordx2 v[{V_MR[3]}:{V_MR[3] + 1}], v2, s[{S_MI}:{S_MI + 3}], 0 idxen
    v_cndmask_b32 v{V_CH}, 2.0, v{V_CH}, vcc""")
gr_code([3], [44], [60])
fin_group([3], [44], False)
w("b_fin_done:")
stamp(7)
stamp_flush(1, S_WAVE, 36)
w("""p2_done:
    s_endpgm""")
w(kd("acc_kernel", 128, 102))
print("\n".join(out))
```

```python
import sys
E = 400000
T = 6400000
EO = 1563
MAGIC = -(-(1 << 32) // EO)
S = 12500
NT = 512
TS = 75008
OFFS_BASE = 40 * 1024 * 1024
assert all(((i * MAGIC) >> 32) == i // EO for i in range(0, E, 1))
assert MAGIC < (1 << 24)

HDR = open('standalone__molecular_angular_gemnet__graph.s.ref').read().split('; Override launch')[0]
out = []


def w(s):
    out.append(s)


def kd(name, vgpr, sgpr):
    return f""".section .rodata,"a"
.p2align 6
.amdhsa_kernel {name}
  .amdhsa_next_free_vgpr {vgpr}
  .amdhsa_next_free_sgpr {sgpr}
  .amdhsa_accum_offset {(vgpr + 3) // 4 * 4}
  .amdhsa_group_segment_fixed_size 0
  .amdhsa_kernarg_size 112
  .amdhsa_user_sgpr_count 2
  .amdhsa_user_sgpr_kernarg_segment_ptr 1
  .amdhsa_system_sgpr_workgroup_id_x 1
  .amdhsa_float_denorm_mode_32 3
.end_amdhsa_kernel
.text
"""


def head(name):
    return f""".globl {name}
.p2align 8
.type {name},@function
{name}:"""


def srd(d, b, nbytes):
    return f"""    s_mov_b32 s{d}, s{b}
    s_and_b32 s{d + 1}, s{b + 1}, 0xffff
    s_mov_b32 s{d + 2}, {nbytes}
    s_mov_b32 s{d + 3}, 0x00020000"""


DIAG = "diag" in sys.argv
STAMP_BASE = 200 * 1024 * 1024
_st = {"n": 0, "s": 0}


def stamp(k=None):
    if not DIAG:
        return
    if k is None:
        k = _st["n"]
    _st["n"] = k + 1
    b = _st["s"]
    v = _st["v"]
    w(f"""    s_memrealtime vcc
    s_waitcnt lgkmcnt(0)
    v_writelane_b32 v{v}, vcc_lo, {k}""")


def stamp_flush(kid, swave, b, wgmask=255):
    if not DIAG:
        return
    v = _st['v']
    w(f"""    s_load_dwordx2 s[{b}:{b + 1}], s[0:1], 104
    s_waitcnt lgkmcnt(0)
    s_add_u32 s{b}, s{b}, {STAMP_BASE + kid * 4 * 1024 * 1024}
    s_addc_u32 s{b + 1}, s{b + 1}, 0
    s_and_b32 s{b + 2}, s2, {wgmask}
    s_lshl_b32 s{b + 2}, s{b + 2}, 4
    s_add_u32 s{b + 2}, s{b + 2}, s{swave}
    s_lshl_b32 s{b + 2}, s{b + 2}, 8
    v_and_b32 v1, 63, v0
    v_lshlrev_b32 v1, 2, v1
    v_add_u32 v1, s{b + 2}, v1
    global_store_dword v1, v{v}, s[{b}:{b + 1}]""")
    sys.stderr.write(f"kernel {kid}: {_st['n']} stamps\n")


P1_LDS = 1024 + TS
ROTN = 1
for a_ in sys.argv:
    if a_.startswith('rot='):
        ROTN = int(a_[4:])
NBIN = 196
NBLK = 209
BSTR = 776
NOVB = (NBLK - NBIN) if "smallovf" not in sys.argv else 1
A_CNT = 0
A_OVF = 1008
A_INC = A_OVF + 4
A_STG = 1024
assert A_STG + NBLK * BSTR <= 163840
NPW = 8
KCH = 4
HEAD = [0, 6400]
B_DUMMY = 12800
BUF0 = 13056
WREG = 9 * 2048
assert BUF0 + NPW * WREG <= 163840
PAT = [5, 4, 5, 4, 5, 4]
for a_ in sys.argv:
    if a_.startswith("pat="):
        PAT = [int(x) for x in a_[4:].split(",")]
NIL = B_DUMMY // 16
NITB = -(-NBLK // NPW)
assert sum(PAT) == NITB and all(n <= (5, 4)[c % 2] for c, n in enumerate(PAT))
NCHK = len(PAT)
JMAP = [(c, k) for c, n in enumerate(PAT) for k in range(n)]
ST_FL = " sc1" if "nosc1" not in sys.argv else ""

w(HDR.rstrip("\n"))
w(f"; @launch kernel=part_kernel grid=(512,1,1) block=(512,1,1) lds={P1_LDS}")
w(f"; @launch kernel=acc_kernel grid=(256,1,1) block=(1024,1,1) lds=163840")
w('.amdgcn_target "amdgcn-amd-amdhsa--gfx950"\n.text')

w(head("part_kernel"))
RB = 16
KB = 88
TMP = 4
_st.update(n=0, v=116)
w(f"""    s_cmp_ge_u32 s2, {NT}
    s_cbranch_scc1 p1_done
    s_load_dwordx4 s[4:7], s[0:1], 8
    s_load_dwordx2 s[28:29], s[0:1], 32    ; angle
    s_load_dwordx2 s[30:31], s[0:1], 104   ; ws
    s_load_dwordx2 s[40:41], s[0:1], 0     ; m
    s_load_dwordx2 s[44:45], s[0:1], 24    ; dist
    v_lshlrev_b32 v1, 4, v0
    v_lshlrev_b32 v2, 3, v0
    v_mov_b32 v3, 3
    v_readfirstlane_b32 s3, v0
    s_lshr_b32 s3, s3, 6
    s_mul_i32 s32, s2, {S * 4}
    s_mul_i32 s33, s2, {S * 2}
    s_mov_b32 s34, {MAGIC}
    s_mov_b32 s35, {(-EO * 4) & 0xffffffff}
    v_lshlrev_b32 v4, 2, v0
    v_mov_b32 v5, 0
    v_cmp_gt_u32 vcc, 256, v0
    s_mov_b64 exec, vcc
    ds_write_b32 v4, v5
    s_mov_b64 exec, -1
    v_add_u32 v12, 1024, v1
    v_add_u32 v13, {1024 + 65536}, v1
    v_cmp_gt_u32 vcc, {TS // 16 - 9 * 512}, v0
    s_nop 1
    v_cndmask_b32 v14, 2.0, v1, vcc
    s_waitcnt lgkmcnt(0)
    s_barrier""")
stamp()
WSOFF = 0
for a_ in sys.argv:
    if a_.startswith("wsoff="):
        WSOFF = int(a_[6:]) * 1024 * 1024
if WSOFF:
    w(f"""    s_add_u32 s30, s30, {WSOFF}
    s_addc_u32 s31, s31, 0""")
w(srd(8, 4, T * 4))
w(srd(12, 6, T * 4))
w(srd(16, 28, T * 2))
w(srd(20, 30, NT * TS))
w(f"""    s_add_u32 s30, s30, {OFFS_BASE}
    s_addc_u32 s31, s31, 0""")
w(srd(24, 30, NT * 1024))


def p1_loads(r):
    b = RB + r * 10
    w(f"""    s_add_u32 s36, s32, {r * 8192}
    s_add_u32 s37, s33, {r * 4096}
    buffer_load_dwordx4 v[{b + 4}:{b + 7}], v1, s[12:15], s36 offen{LDF}
    buffer_load_dwordx4 v[{b}:{b + 3}], v1, s[8:11], s36 offen{LDF}
    buffer_load_dwordx2 v[{b + 8}:{b + 9}], v2, s[16:19], s37 offen{LDF}""")


NPART = S // 4 - 6 * 512
PMASK = (1 << NPART) - 1


def wave0_partial(tag, fn):
    w(f"""    s_cmp_lg_u32 s3, 0
    s_cbranch_scc1 {tag}
    s_mov_b32 exec_lo, {PMASK & 0xffffffff}
    s_mov_b32 exec_hi, {PMASK >> 32}""")
    fn()
    w(f"""    s_mov_b64 exec, -1
{tag}:""")


def p1_hist(r):
    b = RB + r * 10
    for i in range(4):
        vin = b + i
        vo = b + 4 + i
        t = TMP + i
        w(f"""    v_mul_hi_u32_u24 v{t}, s34, v{vo}
    v_lshlrev_b32 v{vo}, 2, v{vo}
    v_mad_i32_i24 v{vo}, v{t}, s35, v{vo}
    v_lshl_or_b32 v{vin}, v{vin}, 13, v{vo}
    v_lshlrev_b32 v{vo}, 2, v{t}
    ds_add_rtn_u32 v{KB + r * 4 + i}, v{vo}, v3""")


def p1_base(r):
    b = RB + r * 10
    for i in range(4):
        vo = b + 4 + i
        w(f"    ds_read_b32 v{vo}, v{vo}")


def p1_scatter(r):
    b = RB + r * 10
    for i in range(4):
        vin = b + i
        vo = b + 4 + i
        k = KB + r * 4 + i
        t = TMP + i
        va = b + 8 + i // 2
        wr = "ds_write_b16" if i % 2 == 0 else "ds_write_b16_d16_hi"
        w(f"""    v_add_lshl_u32 v{k}, v{vo}, v{k}, 1
    v_and_b32 v{t}, 2, v{k}
    v_add_u32 v{vo}, v{k}, v{t}
    v_mad_i32_i24 v{k}, v{t}, -2, v{k}
    ds_write_b32 v{vo}, v{vin}
    {wr} v{k}, v{va} offset:4""")


if "notouch" not in sys.argv:
    w(f"""    s_cmp_lg_u32 s3, 7
    s_cbranch_scc1 p1_notouch
    s_and_b32 s41, s41, 0xffff
    s_mov_b32 s42, {E * 8}
    s_mov_b32 s43, 0x00020000
    s_and_b32 s45, s45, 0xffff
    s_mov_b32 s46, {E * 2}
    s_mov_b32 s47, 0x00020000
    v_and_b32 v6, 63, v0
    v_lshlrev_b32 v6, 7, v6
    s_mul_i32 s36, s2, 6272
    s_mul_i32 s37, s2, 1664
    s_mov_b64 exec, {(1 << 49) - 1:#x}
    buffer_load_dword v86, v6, s[40:43], s36 offen
    s_mov_b64 exec, 0x1fff
    buffer_load_dword v87, v6, s[44:47], s37 offen
    s_mov_b64 exec, -1
p1_notouch:""".replace("s_mov_b64 exec, 0x1ffffffffffff", "s_mov_b32 exec_hi, 0x1ffff"))
PR = [3, 1, 2, 2]
for a_ in sys.argv:
    if a_.startswith("pr="):
        PR = [int(x) for x in a_[3:]]
LDF = " nt" if "ldnt" in sys.argv else ""
w(f"""    s_setprio {PR[1]}
    s_cmp_ge_u32 s2, 256
    s_cbranch_scc1 p1_lowprio
    s_setprio {PR[0]}
p1_lowprio:""")
wave0_partial("p1_l3skip", lambda: p1_loads(6))
for r in range(6):
    p1_loads(r)
w(f"    s_setprio {PR[2]}")
stamp()
for r in range(6):
    w(f"    s_waitcnt vmcnt({15 - 3 * r})")
    p1_hist(r)
    if r == 0:
        wave0_partial("p1_h3skip", lambda: p1_hist(6))
w("    s_waitcnt lgkmcnt(0)")
stamp()
w(f"""    s_barrier
    s_cmp_lg_u32 s3, 0
    s_cbranch_scc1 p1_scan_skip
    ds_read_b128 v[4:7], v1
    s_waitcnt lgkmcnt(0)
    v_add_u32 v5, v4, v5
    v_add_u32 v6, v5, v6
    v_add_u32 v7, v6, v7
    v_mov_b32 v8, v7
    s_nop 1
    v_add_u32_dpp v8, v8, v8 row_shr:1 row_mask:0xf bank_mask:0xf bound_ctrl:0
    s_nop 1
    v_add_u32_dpp v8, v8, v8 row_shr:2 row_mask:0xf bank_mask:0xf bound_ctrl:0
    s_nop 1
    v_add_u32_dpp v8, v8, v8 row_shr:4 row_mask:0xf bank_mask:0xf bound_ctrl:0
    s_nop 1
    v_add_u32_dpp v8, v8, v8 row_shr:8 row_mask:0xf bank_mask:0xf bound_ctrl:0
    s_nop 1
    v_add_u32_dpp v8, v8, v8 row_bcast:15 row_mask:0xa bank_mask:0xf
    s_nop 1
    v_add_u32_dpp v8, v8, v8 row_bcast:31 row_mask:0xc bank_mask:0xf
    v_sub_u32 v9, v8, v7
    v_add_u32 v10, v9, v4
    v_add_u32 v11, v9, v5
    v_add_u32 v15, v9, v6
    v_lshl_or_b32 v4, v10, 16, v9
    v_lshl_or_b32 v5, v11, 16, v10
    v_lshl_or_b32 v6, v15, 16, v11
    v_lshl_or_b32 v7, v8, 16, v15
    v_add_u32 v8, 512, v9
    v_add_u32 v9, 512, v10
    v_add_u32 v10, 512, v11
    v_add_u32 v11, 512, v15
    ds_write_b128 v1, v[8:11]
    s_lshl_b32 s36, s2, 10
    s_waitcnt lgkmcnt(0)
    s_barrier
    buffer_store_dwordx4 v[4:7], v1, s[24:27], s36 offen{ST_FL}
    s_nop 1
    s_branch p1_scan_done
p1_scan_skip:
    s_barrier
p1_scan_done:""")
stamp()
wave0_partial("p1_b3skip", lambda: (p1_base(6), w("    s_waitcnt lgkmcnt(0)"), p1_scatter(6)))
p1_base(0)
p1_base(1)
for r in range(6):
    if r + 2 < 6:
        p1_base(r + 2)
    w("    s_waitcnt lgkmcnt(%d)" % (8 if r == 0 else (4 if r + 2 < 6 else 0) + 8))
    p1_scatter(r)
w("    s_waitcnt lgkmcnt(0)")
stamp()
w("    s_barrier")
stamp()
w(f"    s_setprio {PR[3]}")
stg = [16 + 4 * r for r in range(10)]
for r in range(10):
    a, off = (12, r * 8192) if r < 8 else (13, (r - 8) * 8192)
    w(f"    ds_read_b128 v[{stg[r]}:{stg[r] + 3}], v{a} offset:{off}")
w(f"    s_mul_i32 s36, s2, {TS}")
for r in range(10):
    w(f"""    s_waitcnt lgkmcnt({9 - r})
    buffer_store_dwordx4 v[{stg[r]}:{stg[r] + 3}], v{1 if r < 9 else 14}, s[20:23], s36 offen{ST_FL}
    s_add_u32 s36, s36, 8192""")
stamp()
if DIAG:
    w("    s_waitcnt vmcnt(0)")
stamp()
if DIAG:
    w("""    s_cmp_ge_u32 s2, 256
    s_cselect_b32 s38, 8, 0
    s_add_u32 s3, s3, s38""")
stamp_flush(0, 3, 40)
w("""p1_done:
    s_endpgm""")
w(kd("part_kernel", 120 if DIAG else 116, 48))

w(head("acc_kernel"))
S_WAVE = 3
S_MI = 4
S_REC = 8
S_OFFS = 12
S_OUT = 12
S_SKIP = 16
S_IT = 17
S_RA = 18
S_RB = 20
S_REM = 22
S_INC = 23
S_BK4 = 24
S_E0 = 25
S_T0, S_T1 = 26, 27
S_K = 28
S_K2 = 30
S_TODO = 32
S_MYINC = 33
S_768 = 34
S_ROT = 35
S_MASK = 36
BM = [(8, 10), (12, 14), (32, 100)]
SW_SBF = 36
SW_RBF = 84
S_DIST = 60
S_CENT = 64
S_MB = 68

DA = 6
V_REC = [4 * i + 4 for i in range(DA)]
V_E0, V_E1, V_W0, V_W1, V_BASE, V_L12 = [r + 3 for r in V_REC]
V_L6, V_L6P, V_TWO = 1, 2, 3
V_T = 28
V_JUNK = 42
V_S = [44 + 12 * q for q in range(4)]
V_CH = 3
V_PK = [4, 8, 12, 120]
V_G = [28, 92, 106]
V_MR = [42, 124, 126, 42]
V_SI = 1
V_SL = 2
V_TB2 = 4
V_KC = [16, 18]
V_HIM = 19
V_CN = 20
V_L4 = 21
V_BLK = [24, 32, 40]
V_RW = [48 + 2 * j for j in range(NITB)]
V_RA = [102 + j for j in range(NITB - 1)] + [23]
_st.update(n=0, v=43)
t = V_T

w(f"""    s_cmp_ge_u32 s2, 256
    s_cbranch_scc1 p2_done
    s_load_dwordx2 s[{S_MI}:{S_MI + 1}], s[0:1], 0
    v_readfirstlane_b32 s{S_WAVE}, v0
    s_lshr_b32 s{S_WAVE}, s{S_WAVE}, 6
    s_and_b32 s{S_T1}, s2, 7
    s_lshl_b32 s{S_T1}, s{S_T1}, 5
    s_lshr_b32 s{S_T0}, s2, 3
    s_add_u32 s{S_T1}, s{S_T1}, s{S_T0}        ; bucket
    s_mul_i32 s{S_E0}, s{S_T1}, {EO}
    s_lshl_b32 s{S_BK4}, s{S_T1}, 2
    s_and_b32 s{S_ROT}, s{S_T0}, {ROTN - 1}
    s_mul_i32 s{S_ROT}, s{S_ROT}, {416 // ROTN}
    s_lshr_b32 s{S_ROT}, s{S_ROT}, 1
    s_mov_b32 s{S_SKIP}, 0
    s_mov_b64 s[{S_RA}:{S_RA + 1}], -1
    s_mov_b64 s[{S_RB}:{S_RB + 1}], -1
    s_movk_i32 s{S_768}, {BSTR}
    s_cmp_lt_u32 s{S_WAVE}, {NPW}
    s_cbranch_scc1 a_batch""")
for i in range(48):
    w(f"    v_mov_b32 v{V_S[0] + i}, 0")
w(f"""a_batch:
    s_load_dwordx2 s[{S_REC}:{S_REC + 1}], s[0:1], 104
    s_setprio 3
    v_lshlrev_b32 v{t + 2}, 2, v0
    v_mov_b32 v{t + 3}, 0
    v_cmp_gt_u32 vcc, 256, v0
    s_mov_b64 exec, vcc
    ds_write_b32 v{t + 2}, v{t + 3} offset:{A_CNT}
    s_mov_b64 exec, -1
    v_and_b32 v{t + 4}, 31, v0
    v_lshrrev_b32 v{t + 5}, 5, v0
    v_lshl_add_u32 v{t + 5}, v{t + 5}, 4, v{t + 4}      ; tile
    v_lshlrev_b32 v{t}, 10, v{t + 5}
    v_cmp_gt_u32 vcc, 16, v{t + 4}
    v_mul_u32_u24 v{V_L6}, 6, v{t + 4}
    v_add_u32 v{V_L6P}, 3, v{V_L6}
    v_cndmask_b32 v{t}, 2.0, v{t}, vcc
    v_lshlrev_b32 v{V_L12}, 1, v{V_L6}
    v_and_b32 v{V_BASE}, 32, v0
    v_lshlrev_b32 v{V_BASE}, 2, v{V_BASE}
    v_mov_b32 v{V_TWO}, 2
    s_mov_b32 s{S_T0}, {TS}
    v_mul_lo_u32 v{V_E0}, v{t + 5}, s{S_T0}
    s_waitcnt lgkmcnt(0)
    s_add_u32 s{S_REC}, s{S_REC}, {WSOFF}
    s_addc_u32 s{S_REC + 1}, s{S_REC + 1}, 0
    s_add_u32 s{S_OFFS}, s{S_REC}, {OFFS_BASE}
    s_addc_u32 s{S_OFFS + 1}, s{S_REC + 1}, 0
    s_and_b32 s{S_OFFS + 1}, s{S_OFFS + 1}, 0xffff
    s_mov_b32 s{S_OFFS + 2}, {NT * 1024}
    s_mov_b32 s{S_OFFS + 3}, 0x00020000
    buffer_load_dword v{t + 1}, v{t}, s[{S_OFFS}:{S_OFFS + 3}], s{S_BK4} offen
    s_and_b32 s{S_REC + 1}, s{S_REC + 1}, 0xffff
    s_mov_b32 s{S_REC + 2}, {NT * TS}
    s_mov_b32 s{S_REC + 3}, 0x00020000
    s_and_b32 s{S_MI + 1}, s{S_MI + 1}, 0xffff
    s_or_b32 s{S_MI + 1}, s{S_MI + 1}, 0x80000
    s_mov_b32 s{S_MI + 2}, {E}
    s_mov_b32 s{S_MI + 3}, 0x00020000
    s_mov_b32 s{S_IT}, 0
    s_mov_b32 s{S_REM}, -1
    s_mov_b32 s{S_MYINC}, 0""")
stamp()
w(f"""    s_barrier
    s_waitcnt vmcnt(0)
    v_and_b32 v{t + 2}, 0xffff, v{t + 1}               ; s3
    v_lshrrev_b32 v{t + 3}, 16, v{t + 1}               ; e3
    v_and_b32 v{t + 4}, 1, v{t + 1}
    v_mul_u32_u24 v{t + 4}, 3, v{t + 4}                ; relS
    v_sub_u32 v{t + 2}, v{t + 2}, v{t + 4}             ; hb
    v_sub_u32 v{t + 3}, v{t + 3}, v{t + 2}             ; relE
    v_lshl_add_u32 v{V_E0}, v{t + 2}, 1, v{V_E0}
    v_lshl_or_b32 v{V_E1}, v{t + 4}, 16, v{t + 3}
    v_cmp_lt_u32 vcc, v{t + 4}, v{t + 3}
    s_or_b32 s{S_TODO}, vcc_lo, vcc_hi""")
stamp()


def pop(tag, fetch):
    w(f"""    s_cmp_lg_u32 s{S_TODO}, 0
    s_cbranch_scc1 {tag}_have
    s_cmp_lg_u32 s{S_REM}, -1
    s_cbranch_scc1 {tag}_none
    v_and_b32 v{t}, 0xffff, v{V_E1}
    v_subrev_u32 v{t}, 192, v{t}
    v_max_i32 v{V_E1}, 0, v{t}
    v_add_u32 v{V_E0}, 384, v{V_E0}
    v_cmp_lt_u32 vcc, 0, v{V_E1}
    s_or_b32 s{S_TODO}, vcc_lo, vcc_hi
    s_cbranch_scc1 {tag}_have
    s_mov_b32 s{S_REM}, {DA}
    s_branch {tag}_none
{tag}_have:
    s_ff1_i32_b32 s{S_T0}, s{S_TODO}
    s_bitset0_b32 s{S_TODO}, s{S_T0}""")
    if fetch:
        w(f"""    s_lshl_b32 s{S_T0}, s{S_T0}, 2
    v_add_u32 v{t}, s{S_T0}, v{V_BASE}
    ds_bpermute_b32 v{V_W0}, v{t}, v{V_E0}
    ds_bpermute_b32 v{V_W1}, v{t}, v{V_E1}""")
    w(f"{tag}_none:")


def issue_rec(u, tag):
    R = V_REC[u]
    mA = S_MASK + u * 4
    mB = mA + 2
    sd0 = "src0_sel:DWORD src1_sel:WORD_0"
    sd1 = "src0_sel:DWORD src1_sel:WORD_1"
    w(f"""    s_waitcnt lgkmcnt(0)
    v_add_u32 v{t + 1}, v{V_W0}, v{V_L12}
    v_cmp_lt_u32_sdwa vcc, v{V_L6}, v{V_W1} {sd0}
    v_cmp_ge_u32_sdwa s[{mA}:{mA + 1}], v{V_L6}, v{V_W1} {sd1}
    v_cmp_lt_u32_sdwa s[{mB}:{mB + 1}], v{V_L6P}, v{V_W1} {sd0}
    s_or_b64 exec, vcc, 1
    buffer_load_dwordx3 v[{R}:{R + 2}], v{t + 1}, s[{S_REC}:{S_REC + 3}], 0 offen
    s_mov_b64 exec, -1
    s_and_b64 s[{mA}:{mA + 1}], s[{mA}:{mA + 1}], vcc""")
    pop(tag, True)


def place(u):
    if "xnoplace" in sys.argv:
        w(f"    s_add_u32 s{S_IT}, s{S_IT}, 1")
        return
    R = V_REC[u]
    mA = S_MASK + u * 4
    mB = mA + 2
    bA, bB, rA, rB, xA, xB = t + 4, t + 5, t + 6, t + 7, t + 8, t + 9
    sb3 = "dst_sel:DWORD dst_unused:UNUSED_PAD src0_sel:DWORD src1_sel:BYTE_3"
    w(f"""    v_lshlrev_b32_sdwa v{xA}, 2, v{R} {sb3}
    v_lshlrev_b32_sdwa v{xB}, 2, v{R + 2} {sb3}
    s_mov_b64 exec, s[{mA}:{mA + 1}]
    ds_add_rtn_u32 v{rA}, v{xA}, v{V_TWO} offset:{A_CNT}
    s_mov_b64 exec, s[{mB}:{mB + 1}]
    ds_add_rtn_u32 v{rB}, v{xB}, v{V_TWO} offset:{A_CNT}
    s_mov_b64 exec, -1
    v_mul_u32_u24_sdwa v{bA}, s{S_768}, v{R} {sb3}
    v_mul_u32_u24_sdwa v{bB}, s{S_768}, v{R + 2} {sb3}
    s_waitcnt lgkmcnt(0)
    v_cmp_lt_u32 vcc, 0xff, v{rA}
    s_and_b64 s[{S_K}:{S_K + 1}], vcc, s[{mA}:{mA + 1}]
    v_cmp_lt_u32 vcc, 0xff, v{rB}
    s_and_b64 s[{S_K2}:{S_K2 + 1}], vcc, s[{mB}:{mB + 1}]
    s_or_b64 vcc, s[{S_K}:{S_K + 1}], s[{S_K2}:{S_K2 + 1}]
    s_cbranch_scc0 a_noovf{u}
    v_mov_b32 v{xA}, 0
    s_mov_b64 exec, s[{S_K}:{S_K + 1}]
    ds_add_rtn_u32 v{rA}, v{xA}, v{V_TWO} offset:{A_OVF}
    s_mov_b64 exec, s[{S_K2}:{S_K2 + 1}]
    ds_add_rtn_u32 v{rB}, v{xA}, v{V_TWO} offset:{A_OVF}
    s_waitcnt lgkmcnt(0)
    v_lshrrev_b32 v{bB}, 8, v{rB}
    v_cmp_le_u32 vcc, {NOVB}, v{bB}
    v_add_u32 v{bB}, {NBIN}, v{bB}
    v_mul_u32_u24 v{bB}, s{S_768}, v{bB}
    v_and_b32 v{rB}, 0xff, v{rB}
    s_mov_b64 s[{S_K2}:{S_K2 + 1}], vcc
    s_mov_b64 exec, s[{S_K}:{S_K + 1}]
    v_lshrrev_b32 v{bA}, 8, v{rA}
    v_cmp_le_u32 vcc, {NOVB}, v{bA}
    v_add_u32 v{bA}, {NBIN}, v{bA}
    v_mul_u32_u24 v{bA}, s{S_768}, v{bA}
    v_and_b32 v{rA}, 0xff, v{rA}
    s_mov_b64 s[{S_K}:{S_K + 1}], vcc
    s_mov_b64 exec, -1
    s_or_b64 vcc, s[{S_K}:{S_K + 1}], s[{S_K2}:{S_K2 + 1}]
    s_cbranch_scc0 a_noovf{u}
    s_mov_b64 s[{S_RA}:{S_RA + 1}], s[{S_K}:{S_K + 1}]
    s_mov_b64 s[{S_RB}:{S_RB + 1}], s[{S_K2}:{S_K2 + 1}]
    s_andn2_b64 s[{mA}:{mA + 1}], s[{mA}:{mA + 1}], s[{S_K}:{S_K + 1}]
    s_andn2_b64 s[{mB}:{mB + 1}], s[{mB}:{mB + 1}], s[{S_K2}:{S_K2 + 1}]
    s_mov_b32 s{S_MYINC}, 1
a_noovf{u}:
    v_lshl_add_u32 v{xA}, v{rA}, 1, v{bA}
    v_lshl_add_u32 v{xB}, v{rB}, 1, v{bB}
    v_add_u32 v{rA}, v{rA}, v{bA}
    v_add_u32 v{rB}, v{rB}, v{bB}
    s_mov_b64 exec, s[{mA}:{mA + 1}]
    ds_write_b32 v{xA}, v{R} offset:{A_STG}
    ds_write_b16 v{rA}, v{R + 1} offset:{A_STG + 512}
    s_mov_b64 exec, s[{mB}:{mB + 1}]
    ds_write_b32 v{xB}, v{R + 2} offset:{A_STG}
    ds_write_b16_d16_hi v{rB}, v{R + 1} offset:{A_STG + 512}
    s_mov_b64 exec, -1
    s_cmp_lg_u32 s{S_MYINC}, 0
    s_cbranch_scc1 a_stop
    s_add_u32 s{S_IT}, s{S_IT}, 1""")


w(f"""    s_mov_b32 s{S_T1}, s{S_SKIP}
a_replay:
    s_cmp_eq_u32 s{S_T1}, 0
    s_cbranch_scc1 a_replay_done""")
pop("a_rp", False)
w(f"""    s_sub_u32 s{S_T1}, s{S_T1}, 1
    s_branch a_replay
a_replay_done:""")
for i in range(DA * 2):
    w(f"    s_mov_b64 s[{S_MASK + 2 * i}:{S_MASK + 2 * i + 1}], 0")
pop("a_p0", True)
for u in range(DA - 1):
    w(f"""    s_cmp_lg_u32 s{S_REM}, -1
    s_cbranch_scc1 a_pro_done""")
    issue_rec(u, f"a_pi{u}")
    if u == 0:
        w(f"""    s_and_b64 s[{S_MASK}:{S_MASK + 1}], s[{S_MASK}:{S_MASK + 1}], s[{S_RA}:{S_RA + 1}]
    s_and_b64 s[{S_MASK + 2}:{S_MASK + 3}], s[{S_MASK + 2}:{S_MASK + 3}], s[{S_RB}:{S_RB + 1}]
    s_mov_b64 s[{S_RA}:{S_RA + 1}], -1
    s_mov_b64 s[{S_RB}:{S_RB + 1}], -1""")
w("a_pro_done:")
if "pfA" in sys.argv:
    w(f"""    s_lshr_b32 s{S_T0}, s2, 3
    s_mul_i32 s{S_T0}, s{S_T0}, 12500
    v_lshlrev_b32 v{t + 2}, 4, v0
    v_add_u32 v{t + 2}, s{S_T0}, v{t + 2}
    v_cmp_gt_u32 vcc, 783, v0
    s_or_b64 exec, vcc, 1
    buffer_load_dword v{V_JUNK}, v{t + 2}, s[{S_MI}:{S_MI + 3}], 0 idxen
    s_mov_b64 exec, -1""")
w("a_loop:")
for u in range(DA):
    un = (u + DA - 1) % DA
    if u % 3 == 0 and "noprioA" not in sys.argv:
        w(f"""    s_cmp_lt_u32 s{S_IT}, 3
    s_cbranch_scc1 a_pr{u}
    s_setprio 2
    s_cmp_lt_u32 s{S_IT}, 6
    s_cbranch_scc1 a_pr{u}
    s_setprio 1
    s_cmp_lt_u32 s{S_IT}, 9
    s_cbranch_scc1 a_pr{u}
    s_setprio 0
a_pr{u}:""")
    w(f"""    s_cmp_lg_u32 s{S_REM}, -1
    s_cbranch_scc1 a_cd{u}""")
    issue_rec(un, f"a_li{u}")
    w(f"""    s_waitcnt vmcnt({DA - 1})
    s_branch a_go{u}
a_cd{u}:
    s_sub_u32 s{S_REM}, s{S_REM}, 1
    s_cmp_eq_u32 s{S_REM}, 0
    s_cbranch_scc1 a_end
    s_mov_b64 s[{S_MASK + un * 4}:{S_MASK + un * 4 + 1}], 0
    s_mov_b64 s[{S_MASK + un * 4 + 2}:{S_MASK + un * 4 + 3}], 0
    s_waitcnt vmcnt(0)
a_go{u}:""")
    place(u)
w(f"""    s_branch a_loop
a_stop:
    v_mov_b32 v{t}, 0
    v_mov_b32 v{t + 1}, 1
    ds_write_b32 v{t}, v{t + 1} offset:{A_INC}
a_end:
    s_add_u32 s{S_SKIP}, s{S_SKIP}, s{S_IT}
    s_load_dwordx2 s[{S_DIST}:{S_DIST + 1}], s[0:1], 24
    s_load_dwordx2 s[{S_CENT}:{S_CENT + 1}], s[0:1], 40
    s_load_dwordx2 s[{S_MB}:{S_MB + 1}], s[0:1], 0
    s_waitcnt vmcnt(0) lgkmcnt(0)
    s_load_dwordx4 s[{S_CENT}:{S_CENT + 3}], s[{S_CENT}:{S_CENT + 1}], 0
    s_and_b32 s{S_DIST + 1}, s{S_DIST + 1}, 0xffff
    s_mov_b32 s{S_DIST + 2}, {E * 2}
    s_mov_b32 s{S_DIST + 3}, 0x00020000
    s_and_b32 s{S_MB + 1}, s{S_MB + 1}, 0xffff
    s_mov_b32 s{S_MB + 2}, {E * 8}
    s_mov_b32 s{S_MB + 3}, 0x00020000""")
stamp()
w(f"""    s_barrier
    v_mov_b32 v{t}, 0
    ds_read_b64 v[{t + 2}:{t + 3}], v{t} offset:{A_OVF}""")
t2 = V_TB2
if DIAG:
    w("    v_mov_b32 v22, v43")
    _st["v"] = 22
w(f"""    s_cmp_ge_u32 s{S_WAVE}, {NPW}
    s_cbranch_scc1 b_consumer""")
NB2 = NITB * NPW
w(f"""    v_and_b32 v{t2}, 63, v0                       ; lane
    s_add_u32 s{S_T0}, s{S_WAVE}, s{S_ROT}
    v_mul_u32_u24 v{t2 + 1}, {NPW}, v{t2}
    v_add_u32 v{t2 + 1}, s{S_T0}, v{t2 + 1}
    v_subrev_u32 v{t2 + 2}, {NB2}, v{t2 + 1}
    v_min_u32 v{t2 + 1}, v{t2 + 1}, v{t2 + 2}
    v_min_u32 v{t2 + 2}, {NBIN - 1}, v{t2 + 1}
    v_lshlrev_b32 v{t2 + 2}, 2, v{t2 + 2}
    ds_read_b32 v{V_CN}, v{t2 + 2} offset:{A_CNT}
    v_lshlrev_b32 v{t2 + 3}, 3, v{t2}
    v_lshlrev_b32 v{V_L4}, 2, v{t2}
    s_mul_i32 s{S_T0}, s{S_T0}, {BSTR}""")
for j in range(NITB):
    w(f"""    v_add_u32 v{t2 + 6 + 2 * (j % 2)}, s{S_T0}, v{t2 + 3}
    v_add_u32 v{t2 + 7 + 2 * (j % 2)}, s{S_T0}, v{V_L4}
    s_add_u32 s{S_T0}, s{S_T0}, {NPW * BSTR}
    s_sub_u32 s{S_T1}, s{S_T0}, {NB2 * BSTR}
    s_min_u32 s{S_T0}, s{S_T0}, s{S_T1}
    ds_read_b64 v[{V_RW[j]}:{V_RW[j] + 1}], v{t2 + 6 + 2 * (j % 2)} offset:{A_STG}
    ds_read_b32 v{V_RA[j]}, v{t2 + 7 + 2 * (j % 2)} offset:{A_STG + 512}""")
w(f"""    s_waitcnt lgkmcnt(0)
    v_readfirstlane_b32 s{S_INC}, v{t + 3}
    v_min_u32 v{t + 2}, {NOVB * 256}, v{t + 2}
    v_subrev_u32 v{t2 + 5}, {NBIN}, v{t2 + 1}
    v_lshlrev_b32 v{t2 + 5}, 8, v{t2 + 5}
    v_sub_u32 v{t2 + 5}, v{t + 2}, v{t2 + 5}
    v_cmp_gt_u32 vcc, {NBIN}, v{t2 + 1}
    v_max_i32 v{t2 + 5}, 0, v{t2 + 5}
    s_barrier
    v_cndmask_b32 v{V_CN}, v{t2 + 5}, v{V_CN}, vcc
    v_min_u32 v{V_CN}, 0x100, v{V_CN}""")
stamp(3)


def gather(j):
    u = j % 3
    B = V_BLK[u]
    mA, mB = BM[u]
    W = V_RW[j]
    w(f"""    v_readlane_b32 s{S_T0}, v{V_CN}, {j}
    v_lshrrev_b32 v{t2}, 13, v{W}
    v_lshrrev_b32 v{t2 + 1}, 13, v{W + 1}
    s_sub_u32 s{S_T1}, s{S_T0}, 2
    v_cmp_gt_u32 s[{mA}:{mA + 1}], s{S_T0}, v{V_L4}
    v_cmp_gt_i32 s[{mB}:{mB + 1}], s{S_T1}, v{V_L4}
    s_or_b64 exec, s[{mA}:{mA + 1}], 1
    buffer_load_dwordx2 v[{B}:{B + 1}], v{t2}, s[{S_MI}:{S_MI + 3}], 0 idxen
    s_or_b64 exec, s[{mB}:{mB + 1}], 1
    buffer_load_dwordx2 v[{B + 4}:{B + 5}], v{t2 + 1}, s[{S_MI}:{S_MI + 3}], 0 idxen
    s_mov_b64 exec, -1""")


def build(j, vm):
    u = j % 3
    c_, k = JMAP[j]
    p = c_ % 2
    so = (k + 5 * p) * 2048
    B = V_BLK[u]
    mA, mB = BM[u]
    W, A = V_RW[j], V_RA[j]
    t = t2
    idx0 = so // 16
    a2, c1, c2, c3 = t + 2, t + 4, t + 6, t + 8
    K0, K1 = V_KC
    lo = "op_sel:[0,0] op_sel_hi:[1,0]"
    hi = "op_sel:[0,1] op_sel_hi:[1,1]"
    w(f"""    v_and_b32 v{t + 10}, 0x1ffc, v{W}
    v_and_b32 v{t + 11}, 0x1ffc, v{W + 1}
    v_add_u32 v{t}, {idx0}, v{V_SI}
    v_add_u32 v{t + 1}, {idx0 + 64}, v{V_SI}
    s_mov_b64 exec, s[{mA}:{mA + 1}]
    ds_wrxchg_rtn_b32 v{B + 3}, v{t + 10}, v{t} offset:{HEAD[p]}
    s_mov_b64 exec, s[{mB}:{mB + 1}]
    ds_wrxchg_rtn_b32 v{B + 7}, v{t + 11}, v{t + 1} offset:{HEAD[p]}
    s_mov_b64 exec, -1
    v_lshlrev_b32 v{a2}, 16, v{A}
    v_and_b32 v{a2 + 1}, 0xffff0000, v{A}
    v_pk_mul_f32 v[{c3}:{c3 + 1}], v[{a2}:{a2 + 1}], v[{K0}:{K0 + 1}] {hi}
    v_pk_mul_f32 v[{c1}:{c1 + 1}], v[{a2}:{a2 + 1}], v[{K0}:{K0 + 1}] {lo}
    v_cvt_pk_bf16_f32 v{c3 + 1}, v{c3}, v{c3 + 1}
    v_fract_f32 v{c1}, v{c1}
    v_fract_f32 v{c1 + 1}, v{c1 + 1}
    v_lshlrev_b32 v{c3}, 16, v{c3 + 1}
    v_and_b32 v{c3 + 1}, 0xffff0000, v{c3 + 1}
    v_cos_f32 v{c1}, v{c1}
    v_cos_f32 v{c1 + 1}, v{c1 + 1}
    v_pk_mul_f32 v[{c3}:{c3 + 1}], v[{c3}:{c3 + 1}], v[{K0}:{K0 + 1}] {lo}
    v_pk_add_f32 v[{c2}:{c2 + 1}], v[{c1}:{c1 + 1}], v[{c1}:{c1 + 1}]
    v_fract_f32 v{c3}, v{c3}
    v_fract_f32 v{c3 + 1}, v{c3 + 1}
    v_pk_fma_f32 v[{c2}:{c2 + 1}], v[{c2}:{c2 + 1}], v[{c1}:{c1 + 1}], v[{K1}:{K1 + 1}] op_sel:[0,0,0] op_sel_hi:[1,1,0]
    v_cos_f32 v{c3}, v{c3}
    v_cos_f32 v{c3 + 1}, v{c3 + 1}
    v_cvt_pk_bf16_f32 v{B + 2}, v{c1}, v{c2}
    v_cvt_pk_bf16_f32 v{B + 6}, v{c1 + 1}, v{c2 + 1}
    v_cvt_pk_bf16_f32 v{t}, v{c3}, v{c3 + 1}
    s_waitcnt lgkmcnt(0)
    v_lshl_or_b32 v{B + 3}, v{t}, 16, v{B + 3}
    v_and_or_b32 v{B + 7}, v{t}, v{V_HIM}, v{B + 7}
    s_waitcnt vmcnt({vm})
    ds_write_b128 v{V_SL}, v[{B}:{B + 3}] offset:{so}
    ds_write_b128 v{V_SL}, v[{B + 4}:{B + 7}] offset:{so + 1024}""")


w("    s_setprio 3")
gather(0)
gather(1)
w(f"""    v_mov_b32 v{V_KC[0]}, 0.15915494
    v_mov_b32 v{V_KC[0] + 1}, 0x40400000
    v_mov_b32 v{V_KC[1]}, -1.0
    v_mov_b32 v{V_HIM}, 0xffff0000
    s_mul_i32 s{S_T0}, s{S_WAVE}, {WREG}
    s_add_u32 s{S_T0}, s{S_T0}, {BUF0}
    v_lshlrev_b32 v{V_SL}, 2, v{V_L4}
    v_add_u32 v{V_SL}, s{S_T0}, v{V_SL}
    v_lshrrev_b32 v{V_SI}, 4, v{V_SL}
    s_barrier""")
stamp(4)
for j in range(NITB):
    c_, k_ = JMAP[j]
    w(f"    s_setprio {min(2, PAT[c_] - 1 - k_) + (0 if 'prodprio' not in sys.argv else 1)}")
    if j + 2 < NITB:
        gather(j + 2)
        vm = 4
    else:
        vm = 2 * (NITB - 1 - j)
    build(j, vm)
    if k_ == PAT[c_] - 1:
        w("    s_waitcnt lgkmcnt(0)")
        stamp(10 + 2 * c_)
        w("    s_barrier")
        stamp(11 + 2 * c_)
w(f"""    s_cmp_lg_u32 s{S_INC}, 0
    s_cbranch_scc0 b_pdone
    s_barrier
    s_branch a_batch
b_pdone:""")
stamp(7)
stamp_flush(1, S_WAVE, 36)
w("    s_endpgm")

c2 = 4
w(f"""b_consumer:
    s_setprio 3
    v_subrev_u32 v{V_CH}, {NPW * 64}, v0
    v_add_u32 v1, s{S_E0}, v{V_CH}
    v_lshlrev_b32 v{V_CH}, 2, v{V_CH}
    s_waitcnt lgkmcnt(0)
    v_readfirstlane_b32 s{S_INC}, v{t + 3}
    v_lshlrev_b32 v1, 1, v1""")
d0, tmp = 16, 24
for q in range(4):
    w(f"    buffer_load_ushort v{d0 + q}, v1, s[{S_DIST}:{S_DIST + 3}], 0 offen offset:{q * 1024}")
w(f"""    v_mov_b32 v4, {NIL}
    v_mov_b32 v5, {NIL}
    v_mov_b32 v6, {NIL}
    v_mov_b32 v7, {NIL}
    v_mov_b32 v8, 0
    v_mov_b32 v9, 0
    v_mov_b32 v10, 0
    v_mov_b32 v11, {NIL}
    v_lshlrev_b32 v2, 2, v{V_CH}
    v_cmp_gt_u32 vcc, 4608, v2
    s_barrier
    ds_write_b128 v2, v[4:7]
    s_mov_b64 exec, vcc
    ds_write_b128 v2, v[4:7] offset:8192
    s_mov_b64 exec, -1
    ds_write_b128 v8, v[8:11] offset:{B_DUMMY}
    s_waitcnt lgkmcnt(0)
    s_barrier
    s_setprio 0
    s_load_dwordx8 s[8:15], s[0:1], 56
    s_waitcnt vmcnt(0)""")
for i in range(4):
    w(f"    v_lshlrev_b32 v{d0 + i}, 16, v{d0 + i}")
for p in range(4):
    w(f"""    s_lshl_b32 s{S_T0}, s{S_CENT + p}, 16
    s_and_b32 s{S_T1}, s{S_CENT + p}, 0xffff0000""")
    for e in range(4):
        a, b, tt = tmp + 2 * (e % 2), tmp + 1 + 2 * (e % 2), V_PK[e] + p
        d = d0 + e
        w(f"""    v_subrev_f32 v{a}, s{S_T0}, v{d}
    v_subrev_f32 v{b}, s{S_T1}, v{d}
    v_cvt_pk_bf16_f32 v{tt}, v{a}, v{b}
    v_lshlrev_b32 v{a}, 16, v{tt}
    v_and_b32 v{b}, 0xffff0000, v{tt}
    v_mul_f32 v{a}, v{a}, v{a}
    v_mul_f32 v{b}, v{b}, v{b}
    v_cvt_pk_bf16_f32 v{tt}, v{a}, v{b}
    v_lshlrev_b32 v{a}, 16, v{tt}
    v_and_b32 v{b}, 0xffff0000, v{tt}
    v_mul_f32 v{a}, 0xc1200000, v{a}
    v_mul_f32 v{b}, 0xc1200000, v{b}
    v_cvt_pk_bf16_f32 v{tt}, v{a}, v{b}
    v_lshlrev_b32 v{a}, 16, v{tt}
    v_and_b32 v{b}, 0xffff0000, v{tt}
    v_mul_f32 v{a}, 0x3fb8aa3b, v{a}
    v_mul_f32 v{b}, 0x3fb8aa3b, v{b}
    v_exp_f32 v{a}, v{a}
    v_exp_f32 v{b}, v{b}
    s_nop 0
    v_cvt_pk_bf16_f32 v{tt}, v{a}, v{b}""")
w(f"""    s_waitcnt lgkmcnt(0)
    s_load_dwordx16 s[{SW_RBF}:{SW_RBF + 15}], s[8:9], 0
    s_load_dwordx16 s[{SW_SBF}:{SW_SBF + 15}], s[10:11], 0
    s_load_dwordx16 s[{SW_SBF + 16}:{SW_SBF + 31}], s[10:11], 64
    s_load_dwordx16 s[{SW_SBF + 32}:{SW_SBF + 47}], s[10:11], 128
    s_mov_b64 s[100:101], s[14:15]
    s_load_dwordx8 s[8:15], s[12:13], 0
    s_waitcnt lgkmcnt(0)""")


def gr_code(edges, G, Rt):
    for p in range(4):
        for dp in range(2):
            sa, sb = SW_RBF + (2 * p) * 2 + dp, SW_RBF + (2 * p + 1) * 2 + dp
            w(f"""    s_pack_ll_b32_b16 s{S_T0}, s{sa}, s{sb}
    s_pack_hh_b32_b16 s{S_T1}, s{sa}, s{sb}""")
            for i, q in enumerate(edges):
                for h, st_ in ((0, S_T0), (1, S_T1)):
                    g = Rt[i] + dp * 2 + h
                    c = "0" if p == 0 else f"v{g}"
                    w(f"    v_dot2_f32_bf16 v{g}, v{V_PK[q] + p}, s{st_}, {c}")
    for l in range(3):
        for p in range(4):
            r0 = (2 * p) * 3 + l
            r1 = (2 * p + 1) * 3 + l
            for dp in range(2):
                sa, sb = SW_SBF + r0 * 2 + dp, SW_SBF + r1 * 2 + dp
                w(f"""    s_pack_ll_b32_b16 s{S_T0}, s{sa}, s{sb}
    s_pack_hh_b32_b16 s{S_T1}, s{sa}, s{sb}""")
                for i, q in enumerate(edges):
                    for h, st_ in ((0, S_T0), (1, S_T1)):
                        g = G[i] + 4 * l + dp * 2 + h
                        c = "0" if p == 0 else f"v{g}"
                        w(f"    v_dot2_f32_bf16 v{g}, v{V_PK[q] + p}, s{st_}, {c}")
    for i, q in enumerate(edges):
        w(f"""    v_cvt_pk_bf16_f32 v{G[i] + 12}, v{Rt[i]}, v{Rt[i] + 1}
    v_cvt_pk_bf16_f32 v{G[i] + 13}, v{Rt[i] + 2}, v{Rt[i] + 3}""")
    w("    s_nop 2")


gr_code([0, 1, 2], V_G, [16, 24, 124])
w(f"    s_setprio {3 if 'prodprio' not in sys.argv else 0}")


def prefetch(n, tag):
    pass


PFN = 0


def walk(p, n, tag):
    r = [c2 + 4 * i for i in range(4)]
    M0, C1 = 20, 42
    ad, nil = 1, 2
    for i in range(n):
        w(f"    ds_read_b32 v{r[i]}, v{V_CH} offset:{HEAD[p] + i * 2048}")
    w(f"    v_mov_b32 v{nil}, {NIL}")
    for i in range(n):
        w(f"""    s_waitcnt lgkmcnt({n - 1 - i + 2 * i})
    v_lshlrev_b32 v{ad}, 4, v{r[i]}
    ds_write_b32 v{V_CH}, v{nil} offset:{HEAD[p] + i * 2048}
    ds_read_b128 v[{r[i]}:{r[i] + 3}], v{ad}""")
    w(f"""    v_mov_b32 v{nil}, {B_DUMMY}
{tag}:""")
    for i in range(n):
        R, Sx = r[i], V_S[i]
        X = 24
        w(f"""    s_waitcnt lgkmcnt({n - 1})
    v_lshlrev_b32_sdwa v{ad}, 4, v{R + 3} dst_sel:DWORD dst_unused:UNUSED_PAD src0_sel:DWORD src1_sel:WORD_0
    v_lshlrev_b32 v{M0}, 16, v{R}
    v_lshlrev_b32 v{M0 + 1}, 16, v{R + 1}
    v_lshlrev_b32 v{C1}, 16, v{R + 2}
    v_and_b32 v{X}, 0xffff0000, v{R}
    v_and_b32 v{X + 1}, 0xffff0000, v{R + 1}
    v_and_b32 v{X + 2}, 0xffff0000, v{R + 2}
    v_and_b32 v{X + 3}, 0xffff0000, v{R + 3}
    ds_read_b128 v[{R}:{R + 3}], v{ad}""")
        if i == 0:
            w(f"    v_cmp_ne_u32 vcc, v{ad}, v{nil}")
        else:
            w(f"    v_cmp_ne_u32 s[{S_K}:{S_K + 1}], v{ad}, v{nil}")
        for l in range(3):
            cp = C1 if l == 0 else X + 2
            sel = "op_sel:[0,1,0] op_sel_hi:[1,1,1]" if l == 2 else "op_sel:[0,0,0] op_sel_hi:[1,0,1]"
            for h, mm in ((0, M0), (1, X)):
                s_ = Sx + 4 * l + 2 * h
                w(f"    v_pk_fma_f32 v[{s_}:{s_ + 1}], v[{mm}:{mm + 1}], v[{cp}:{cp + 1}], v[{s_}:{s_ + 1}] {sel}")
        if i > 0:
            w(f"    s_or_b64 vcc, vcc, s[{S_K}:{S_K + 1}]")
    w(f"""    s_cbranch_vccnz {tag}
    s_waitcnt lgkmcnt(0)""")


w(f"""    s_mov_b32 s{S_REM}, {NCHK}
b_cloop:""")
for p in range(2):
    w("    s_barrier")
    prefetch(PFN, f"b_pfl{p}")
    w(f"""    s_cmp_eq_u32 s{S_WAVE}, {NPW}
    s_cbranch_scc1 b_w4{p}""")
    walk(p, 3, f"b_wa{p}")
    w(f"""    s_branch b_wdone{p}
b_w4{p}:""")
    walk(p, 4, f"b_wb{p}")
    w(f"b_wdone{p}:")
    stamp(8 + p)
    w(f"""    s_sub_u32 s{S_REM}, s{S_REM}, 1
    s_cmp_eq_u32 s{S_REM}, 0
    s_cbranch_scc1 b_cend""")
w(f"""    s_branch b_cloop
b_cend:
    s_waitcnt vmcnt(0)
    s_cmp_lg_u32 s{S_INC}, 0
    s_cbranch_scc0 b_final
    s_barrier
    s_branch a_batch
b_final:
    s_load_dwordx8 s[16:23], s[100:101], 0            ; w_up
    s_load_dwordx2 s[28:29], s[0:1], 88               ; out
    v_lshrrev_b32 v1, 2, v{V_CH}
    v_add_u32 v1, s{S_E0}, v1
    v_add_u32 v2, 512, v1
    buffer_load_dwordx2 v[{V_MR[0]}:{V_MR[0] + 1}], v1, s[{S_MI}:{S_MI + 3}], 0 idxen
    buffer_load_dwordx2 v[{V_MR[1]}:{V_MR[1] + 1}], v2, s[{S_MI}:{S_MI + 3}], 0 idxen
    v_add_u32 v2, 1024, v1
    s_lshl_b32 s{S_E0}, s{S_E0}, 3
    buffer_load_dwordx2 v[{V_MR[2]}:{V_MR[2] + 1}], v2, s[{S_MI}:{S_MI + 3}], 0 idxen
    v_lshlrev_b32 v{V_CH}, 1, v{V_CH}                 ; c*8""")
stamp(6)
SWD2, SWU2, S_OUT = 8, 16, 28


def fin_group(edges, G, first):
    R = [dict(AG=4 + 8 * i, U=8 + 8 * i) for i in range(len(edges))]
    if DIAG:
        R[-1] = dict(AG=V_S[0], U=24) if len(edges) == 3 else R[-1]
    for l in range(3):
        for k in range(4):
            for dp in range(2):
                sg = SWD2 + k * 2 + dp
                w(f"""    s_lshl_b32 s{S_T0}, s{sg}, 16
    s_and_b32 s{S_T1}, s{sg}, 0xffff0000""")
                for i, q in enumerate(edges):
                    for h, st_ in ((0, S_T0), (1, S_T1)):
                        u_ = R[i]['U'] + dp * 2 + h
                        op = "v_mul_f32" if k == 0 else "v_fmac_f32"
                        w(f"    {op} v{u_}, s{st_}, v{V_S[q] + 4 * l + [0, 2, 1, 3][k]}")
        for i, q in enumerate(edges):
            for j in range(4):
                op = "v_mul_f32" if l == 0 else "v_fmac_f32"
                w(f"    {op} v{R[i]['AG'] + j}, v{G[i] + 4 * l + j}, v{R[i]['U'] + j}")
    if first:
        w(f"""    s_waitcnt lgkmcnt(0)
    s_and_b32 s{S_OUT + 1}, s{S_OUT + 1}, 0xffff
    s_mov_b32 s{S_OUT + 2}, {E * 8}
    s_mov_b32 s{S_OUT + 3}, 0x00020000""")
    for k in range(4):
        for dp in range(2):
            sg = SWU2 + k * 2 + dp
            w(f"""    s_lshl_b32 s{S_T0}, s{sg}, 16
    s_and_b32 s{S_T1}, s{sg}, 0xffff0000""")
            for i, q in enumerate(edges):
                for h, st_ in ((0, S_T0), (1, S_T1)):
                    u_ = R[i]['U'] + dp * 2 + h
                    op = "v_mul_f32" if k == 0 else "v_fmac_f32"
                    w(f"    {op} v{u_}, s{st_}, v{R[i]['AG'] + k}")
    w("    s_waitcnt vmcnt(0)")
    for i, q in enumerate(edges):
        for dp in range(2):
            u0 = R[i]['U'] + 2 * dp
            rp = G[i] + 12 + dp
            mr = V_MR[q] + dp
            a, b = R[i]['AG'], R[i]['AG'] + 1
            w(f"""    v_cvt_pk_bf16_f32 v{u0 + 1}, v{u0}, v{u0 + 1}
    v_lshlrev_b32 v{a}, 16, v{rp}
    v_and_b32 v{b}, 0xffff0000, v{rp}
    v_lshlrev_b32 v{u0}, 16, v{u0 + 1}
    v_and_b32 v{u0 + 1}, 0xffff0000, v{u0 + 1}
    v_mul_f32 v{u0}, v{u0}, v{a}
    v_mul_f32 v{u0 + 1}, v{u0 + 1}, v{b}
    v_cvt_pk_bf16_f32 v{u0 + 1}, v{u0}, v{u0 + 1}
    v_lshlrev_b32 v{a}, 16, v{mr}
    v_and_b32 v{b}, 0xffff0000, v{mr}
    v_lshlrev_b32 v{u0}, 16, v{u0 + 1}
    v_and_b32 v{u0 + 1}, 0xffff0000, v{u0 + 1}
    v_add_f32 v{u0}, v{u0}, v{a}
    v_add_f32 v{u0 + 1}, v{u0 + 1}, v{b}
    v_cvt_pk_bf16_f32 v{rp}, v{u0}, v{u0 + 1}""")
        w(f"""    s_add_u32 s{S_T0}, s{S_E0}, {q * 4096}
    buffer_store_dwordx2 v[{G[i] + 12}:{G[i] + 13}], v{V_CH}, s[{S_OUT}:{S_OUT + 3}], s{S_T0} offen""")


fin_group([0, 1, 2], V_G, True)
w(f"""    s_cmp_lg_u32 s{S_WAVE}, {NPW}
    s_cbranch_scc1 b_fin_done
    v_cmp_gt_u32 vcc, {(EO - 1536) * 8}, v{V_CH}
    v_add_u32 v2, 1536, v1
    buffer_load_dwordx2 v[{V_MR[3]}:{V_MR[3] + 1}], v2, s[{S_MI}:{S_MI + 3}], 0 idxen
    v_cndmask_b32 v{V_CH}, 2.0, v{V_CH}, vcc""")
gr_code([3], [44], [60])
fin_group([3], [44], False)
w("b_fin_done:")
stamp(7)
stamp_flush(1, S_WAVE, 36)
w("""p2_done:
    s_endpgm""")
w(kd("acc_kernel", 128, 102))
print("\n".join(out))
```

```python
import sys
E = 400000
T = 6400000
EO = 1563
MAGIC = -(-(1 << 32) // EO)
S = 12500
NT = 512
TS = 75008
OFFS_BASE = 40 * 1024 * 1024
assert all(((i * MAGIC) >> 32) == i // EO for i in range(0, E, 1))
assert MAGIC < (1 << 24)

HDR = open('standalone__molecular_angular_gemnet__graph.s.ref').read().split('; Override launch')[0]
out = []


def w(s):
    out.append(s)


def kd(name, vgpr, sgpr):
    return f""".section .rodata,"a"
.p2align 6
.amdhsa_kernel {name}
  .amdhsa_next_free_vgpr {vgpr}
  .amdhsa_next_free_sgpr {sgpr}
  .amdhsa_accum_offset {(vgpr + 3) // 4 * 4}
  .amdhsa_group_segment_fixed_size 0
  .amdhsa_kernarg_size 112
  .amdhsa_user_sgpr_count 2
  .amdhsa_user_sgpr_kernarg_segment_ptr 1
  .amdhsa_system_sgpr_workgroup_id_x 1
  .amdhsa_float_denorm_mode_32 3
.end_amdhsa_kernel
.text
"""


def head(name):
    return f""".globl {name}
.p2align 8
.type {name},@function
{name}:"""


def srd(d, b, nbytes):
    return f"""    s_mov_b32 s{d}, s{b}
    s_and_b32 s{d + 1}, s{b + 1}, 0xffff
    s_mov_b32 s{d + 2}, {nbytes}
    s_mov_b32 s{d + 3}, 0x00020000"""


DIAG = "diag" in sys.argv
STAMP_BASE = 200 * 1024 * 1024
_st = {"n": 0, "s": 0}


def stamp(k=None):
    if not DIAG:
        return
    if k is None:
        k = _st["n"]
    _st["n"] = k + 1
    b = _st["s"]
    v = _st["v"]
    w(f"""    s_memrealtime vcc
    s_waitcnt lgkmcnt(0)
    v_writelane_b32 v{v}, vcc_lo, {k}""")


def stamp_flush(kid, swave, b, wgmask=255):
    if not DIAG:
        return
    v = _st['v']
    w(f"""    s_load_dwordx2 s[{b}:{b + 1}], s[0:1], 104
    s_waitcnt lgkmcnt(0)
    s_add_u32 s{b}, s{b}, {STAMP_BASE + kid * 4 * 1024 * 1024}
    s_addc_u32 s{b + 1}, s{b + 1}, 0
    s_and_b32 s{b + 2}, s2, {wgmask}
    s_lshl_b32 s{b + 2}, s{b + 2}, 4
    s_add_u32 s{b + 2}, s{b + 2}, s{swave}
    s_lshl_b32 s{b + 2}, s{b + 2}, 8
    v_and_b32 v1, 63, v0
    v_lshlrev_b32 v1, 2, v1
    v_add_u32 v1, s{b + 2}, v1
    global_store_dword v1, v{v}, s[{b}:{b + 1}]""")
    sys.stderr.write(f"kernel {kid}: {_st['n']} stamps\n")


P1_LDS = 1024 + TS
ROTN = 1
for a_ in sys.argv:
    if a_.startswith('rot='):
        ROTN = int(a_[4:])
NBIN = 196
NBLK = 209
BSTR = 776
NOVB = (NBLK - NBIN) if "smallovf" not in sys.argv else 1
A_CNT = 0
A_OVF = 1008
A_INC = A_OVF + 4
A_STG = 1024
assert A_STG + NBLK * BSTR <= 163840
NPW = 8
KCH = 4
HEAD = [0, 6400]
B_DUMMY = 12800
BUF0 = 13056
WREG = 9 * 2048
assert BUF0 + NPW * WREG <= 163840
PAT = [5, 4, 5, 4, 5, 4]
for a_ in sys.argv:
    if a_.startswith("pat="):
        PAT = [int(x) for x in a_[4:].split(",")]
NIL = B_DUMMY // 16
NITB = -(-NBLK // NPW)
assert sum(PAT) == NITB and all(n <= (5, 4)[c % 2] for c, n in enumerate(PAT))
NCHK = len(PAT)
JMAP = [(c, k) for c, n in enumerate(PAT) for k in range(n)]
ST_FL = " sc1" if "nosc1" not in sys.argv else ""

w(HDR.rstrip("\n"))
w(f"; @launch kernel=part_kernel grid=(512,1,1) block=(512,1,1) lds={P1_LDS}")
w(f"; @launch kernel=acc_kernel grid=(256,1,1) block=(1024,1,1) lds=163840")
w('.amdgcn_target "amdgcn-amd-amdhsa--gfx950"\n.text')

w(head("part_kernel"))
RB = 16
KB = 88
TMP = 4
_st.update(n=0, v=116)
w(f"""    s_cmp_ge_u32 s2, {NT}
    s_cbranch_scc1 p1_done
    s_load_dwordx4 s[4:7], s[0:1], 8
    s_load_dwordx2 s[28:29], s[0:1], 32    ; angle
    s_load_dwordx2 s[30:31], s[0:1], 104   ; ws
    s_load_dwordx2 s[40:41], s[0:1], 0     ; m
    s_load_dwordx2 s[44:45], s[0:1], 24    ; dist
    v_lshlrev_b32 v1, 4, v0
    v_lshlrev_b32 v2, 3, v0
    v_mov_b32 v3, 3
    v_readfirstlane_b32 s3, v0
    s_lshr_b32 s3, s3, 6
    s_mul_i32 s32, s2, {S * 4}
    s_mul_i32 s33, s2, {S * 2}
    s_mov_b32 s34, {MAGIC}
    s_mov_b32 s35, {(-EO * 4) & 0xffffffff}
    v_lshlrev_b32 v4, 2, v0
    v_mov_b32 v5, 0
    v_cmp_gt_u32 vcc, 256, v0
    s_mov_b64 exec, vcc
    ds_write_b32 v4, v5
    s_mov_b64 exec, -1
    v_add_u32 v12, 1024, v1
    v_add_u32 v13, {1024 + 65536}, v1
    v_cmp_gt_u32 vcc, {TS // 16 - 9 * 512}, v0
    s_nop 1
    v_cndmask_b32 v14, 2.0, v1, vcc
    s_waitcnt lgkmcnt(0)
    s_barrier""")
stamp()
WSOFF = 0
for a_ in sys.argv:
    if a_.startswith("wsoff="):
        WSOFF = int(a_[6:]) * 1024 * 1024
if WSOFF:
    w(f"""    s_add_u32 s30, s30, {WSOFF}
    s_addc_u32 s31, s31, 0""")
w(srd(8, 4, T * 4))
w(srd(12, 6, T * 4))
w(srd(16, 28, T * 2))
w(srd(20, 30, NT * TS))
w(f"""    s_add_u32 s30, s30, {OFFS_BASE}
    s_addc_u32 s31, s31, 0""")
w(srd(24, 30, NT * 1024))


def p1_loads(r):
    b = RB + r * 10
    w(f"""    s_add_u32 s36, s32, {r * 8192}
    s_add_u32 s37, s33, {r * 4096}
    buffer_load_dwordx4 v[{b + 4}:{b + 7}], v1, s[12:15], s36 offen{LDF}
    buffer_load_dwordx4 v[{b}:{b + 3}], v1, s[8:11], s36 offen{LDF}
    buffer_load_dwordx2 v[{b + 8}:{b + 9}], v2, s[16:19], s37 offen{LDF}""")


NPART = S // 4 - 6 * 512
PMASK = (1 << NPART) - 1


def wave0_partial(tag, fn):
    w(f"""    s_cmp_lg_u32 s3, 0
    s_cbranch_scc1 {tag}
    s_mov_b32 exec_lo, {PMASK & 0xffffffff}
    s_mov_b32 exec_hi, {PMASK >> 32}""")
    fn()
    w(f"""    s_mov_b64 exec, -1
{tag}:""")


def p1_hist(r):
    b = RB + r * 10
    for i in range(4):
        vin = b + i
        vo = b + 4 + i
        t = TMP + i
        w(f"""    v_mul_hi_u32_u24 v{t}, s34, v{vo}
    v_lshlrev_b32 v{vo}, 2, v{vo}
    v_mad_i32_i24 v{vo}, v{t}, s35, v{vo}
    v_lshl_or_b32 v{vin}, v{vin}, 13, v{vo}
    v_lshlrev_b32 v{vo}, 2, v{t}
    ds_add_rtn_u32 v{KB + r * 4 + i}, v{vo}, v3""")


def p1_base(r):
    b = RB + r * 10
    for i in range(4):
        vo = b + 4 + i
        w(f"    ds_read_b32 v{vo}, v{vo}")


def p1_scatter(r):
    b = RB + r * 10
    for i in range(4):
        vin = b + i
        vo = b + 4 + i
        k = KB + r * 4 + i
        t = TMP + i
        va = b + 8 + i // 2
        wr = "ds_write_b16" if i % 2 == 0 else "ds_write_b16_d16_hi"
        w(f"""    v_add_lshl_u32 v{k}, v{vo}, v{k}, 1
    v_and_b32 v{t}, 2, v{k}
    v_add_u32 v{vo}, v{k}, v{t}
    v_mad_i32_i24 v{k}, v{t}, -2, v{k}
    ds_write_b32 v{vo}, v{vin}
    {wr} v{k}, v{va} offset:4""")


if "notouch" not in sys.argv:
    w(f"""    s_cmp_lg_u32 s3, 7
    s_cbranch_scc1 p1_notouch
    s_and_b32 s41, s41, 0xffff
    s_mov_b32 s42, {E * 8}
    s_mov_b32 s43, 0x00020000
    s_and_b32 s45, s45, 0xffff
    s_mov_b32 s46, {E * 2}
    s_mov_b32 s47, 0x00020000
    v_and_b32 v6, 63, v0
    v_lshlrev_b32 v6, 7, v6
    s_mul_i32 s36, s2, 6272
    s_mul_i32 s37, s2, 1664
    s_mov_b64 exec, {(1 << 49) - 1:#x}
    buffer_load_dword v86, v6, s[40:43], s36 offen
    s_mov_b64 exec, 0x1fff
    buffer_load_dword v87, v6, s[44:47], s37 offen
    s_mov_b64 exec, -1
p1_notouch:""".replace("s_mov_b64 exec, 0x1ffffffffffff", "s_mov_b32 exec_hi, 0x1ffff"))
PR = [3, 1, 2, 2]
for a_ in sys.argv:
    if a_.startswith("pr="):
        PR = [int(x) for x in a_[3:]]
LDF = " nt" if "ldnt" in sys.argv else ""
w(f"""    s_setprio {PR[1]}
    s_cmp_ge_u32 s2, 256
    s_cbranch_scc1 p1_lowprio
    s_setprio {PR[0]}
p1_lowprio:""")
wave0_partial("p1_l3skip", lambda: p1_loads(6))
for r in range(6):
    p1_loads(r)
w(f"    s_setprio {PR[2]}")
stamp()
for r in range(6):
    w(f"    s_waitcnt vmcnt({15 - 3 * r})")
    p1_hist(r)
    if r == 0:
        wave0_partial("p1_h3skip", lambda: p1_hist(6))
w("    s_waitcnt lgkmcnt(0)")
stamp()
w(f"""    s_barrier
    s_cmp_lg_u32 s3, 0
    s_cbranch_scc1 p1_scan_skip
    ds_read_b128 v[4:7], v1
    s_waitcnt lgkmcnt(0)
    v_add_u32 v5, v4, v5
    v_add_u32 v6, v5, v6
    v_add_u32 v7, v6, v7
    v_mov_b32 v8, v7
    s_nop 1
    v_add_u32_dpp v8, v8, v8 row_shr:1 row_mask:0xf bank_mask:0xf bound_ctrl:0
    s_nop 1
    v_add_u32_dpp v8, v8, v8 row_shr:2 row_mask:0xf bank_mask:0xf bound_ctrl:0
    s_nop 1
    v_add_u32_dpp v8, v8, v8 row_shr:4 row_mask:0xf bank_mask:0xf bound_ctrl:0
    s_nop 1
    v_add_u32_dpp v8, v8, v8 row_shr:8 row_mask:0xf bank_mask:0xf bound_ctrl:0
    s_nop 1
    v_add_u32_dpp v8, v8, v8 row_bcast:15 row_mask:0xa bank_mask:0xf
    s_nop 1
    v_add_u32_dpp v8, v8, v8 row_bcast:31 row_mask:0xc bank_mask:0xf
    v_sub_u32 v9, v8, v7
    v_add_u32 v10, v9, v4
    v_add_u32 v11, v9, v5
    v_add_u32 v15, v9, v6
    v_lshl_or_b32 v4, v10, 16, v9
    v_lshl_or_b32 v5, v11, 16, v10
    v_lshl_or_b32 v6, v15, 16, v11
    v_lshl_or_b32 v7, v8, 16, v15
    v_add_u32 v8, 512, v9
    v_add_u32 v9, 512, v10
    v_add_u32 v10, 512, v11
    v_add_u32 v11, 512, v15
    ds_write_b128 v1, v[8:11]
    s_lshl_b32 s36, s2, 10
    s_waitcnt lgkmcnt(0)
    s_barrier
    buffer_store_dwordx4 v[4:7], v1, s[24:27], s36 offen{ST_FL}
    s_nop 1
    s_branch p1_scan_done
p1_scan_skip:
    s_barrier
p1_scan_done:""")
stamp()
wave0_partial("p1_b3skip", lambda: (p1_base(6), w("    s_waitcnt lgkmcnt(0)"), p1_scatter(6)))
p1_base(0)
p1_base(1)
for r in range(6):
    if r + 2 < 6:
        p1_base(r + 2)
    w("    s_waitcnt lgkmcnt(%d)" % (8 if r == 0 else (4 if r + 2 < 6 else 0) + 8))
    p1_scatter(r)
w("    s_waitcnt lgkmcnt(0)")
stamp()
w("    s_barrier")
stamp()
w(f"    s_setprio {PR[3]}")
stg = [16 + 4 * r for r in range(10)]
for r in range(10):
    a, off = (12, r * 8192) if r < 8 else (13, (r - 8) * 8192)
    w(f"    ds_read_b128 v[{stg[r]}:{stg[r] + 3}], v{a} offset:{off}")
w(f"    s_mul_i32 s36, s2, {TS}")
for r in range(10):
    w(f"""    s_waitcnt lgkmcnt({9 - r})
    buffer_store_dwordx4 v[{stg[r]}:{stg[r] + 3}], v{1 if r < 9 else 14}, s[20:23], s36 offen{ST_FL}
    s_add_u32 s36, s36, 8192""")
stamp()
if DIAG:
    w("    s_waitcnt vmcnt(0)")
stamp()
if DIAG:
    w("""    s_cmp_ge_u32 s2, 256
    s_cselect_b32 s38, 8, 0
    s_add_u32 s3, s3, s38""")
stamp_flush(0, 3, 40)
w("""p1_done:
    s_endpgm""")
w(kd("part_kernel", 120 if DIAG else 116, 48))

w(head("acc_kernel"))
S_WAVE = 3
S_MI = 4
S_REC = 8
S_OFFS = 12
S_OUT = 12
S_SKIP = 16
S_IT = 17
S_RA = 18
S_RB = 20
S_REM = 22
S_INC = 23
S_BK4 = 24
S_E0 = 25
S_T0, S_T1 = 26, 27
S_K = 28
S_K2 = 30
S_TODO = 32
S_MYINC = 33
S_768 = 34
S_ROT = 35
S_HM = 34
S_MASK = 36
BM = [(8, 10), (12, 14), (32, 100)]
SW_SBF = 36
SW_RBF = 84
S_DIST = 60
S_CENT = 64
S_MB = 68

DA = 6
V_REC = [4 * i + 4 for i in range(DA)]
V_E0, V_E1, V_W0, V_W1, V_BASE, V_L12 = [r + 3 for r in V_REC]
V_L6, V_L6P, V_TWO = 1, 2, 3
V_T = 28
V_JUNK = 42
V_S = [44 + 12 * q for q in range(4)]
V_CH = 3
V_PK = [4, 8, 12, 120]
V_G = [28, 92, 106]
V_MR = [42, 124, 126, 42]
V_SI = 1
V_SL = 2
V_TB2 = 4
V_KC = [16, 18]
V_HIM = 19
V_CN = 20
V_L4 = 21
V_BLK = [24, 32, 40]
V_RW = [48 + 2 * j for j in range(NITB)]
V_RA = [102 + j for j in range(NITB - 1)] + [23]
_st.update(n=0, v=43)
t = V_T

w(f"""    s_cmp_ge_u32 s2, 256
    s_cbranch_scc1 p2_done
    s_load_dwordx2 s[{S_MI}:{S_MI + 1}], s[0:1], 0
    v_readfirstlane_b32 s{S_WAVE}, v0
    s_lshr_b32 s{S_WAVE}, s{S_WAVE}, 6
    s_and_b32 s{S_T1}, s2, 7
    s_lshl_b32 s{S_T1}, s{S_T1}, 5
    s_lshr_b32 s{S_T0}, s2, 3
    s_add_u32 s{S_T1}, s{S_T1}, s{S_T0}        ; bucket
    s_mul_i32 s{S_E0}, s{S_T1}, {EO}
    s_lshl_b32 s{S_BK4}, s{S_T1}, 2
    s_and_b32 s{S_ROT}, s{S_T0}, {ROTN - 1}
    s_mul_i32 s{S_ROT}, s{S_ROT}, {416 // ROTN}
    s_lshr_b32 s{S_ROT}, s{S_ROT}, 1
    s_mov_b32 s{S_SKIP}, 0
    s_mov_b64 s[{S_RA}:{S_RA + 1}], -1
    s_mov_b64 s[{S_RB}:{S_RB + 1}], -1
    s_movk_i32 s{S_768}, {BSTR}
    s_cmp_lt_u32 s{S_WAVE}, {NPW}
    s_cbranch_scc1 a_batch""")
for i in range(48):
    w(f"    v_mov_b32 v{V_S[0] + i}, 0")
w(f"""a_batch:
    s_load_dwordx2 s[{S_REC}:{S_REC + 1}], s[0:1], 104
    s_movk_i32 s{S_768}, {BSTR}
    s_setprio 3
    v_lshlrev_b32 v{t + 2}, 2, v0
    v_mov_b32 v{t + 3}, 0
    v_cmp_gt_u32 vcc, 256, v0
    s_mov_b64 exec, vcc
    ds_write_b32 v{t + 2}, v{t + 3} offset:{A_CNT}
    s_mov_b64 exec, -1
    v_and_b32 v{t + 4}, 31, v0
    v_lshrrev_b32 v{t + 5}, 5, v0
    v_lshl_add_u32 v{t + 5}, v{t + 5}, 4, v{t + 4}      ; tile
    v_lshlrev_b32 v{t}, 10, v{t + 5}
    v_cmp_gt_u32 vcc, 16, v{t + 4}
    v_mul_u32_u24 v{V_L6}, 6, v{t + 4}
    v_add_u32 v{V_L6P}, 3, v{V_L6}
    v_cndmask_b32 v{t}, 2.0, v{t}, vcc
    v_lshlrev_b32 v{V_L12}, 1, v{V_L6}
    v_and_b32 v{V_BASE}, 32, v0
    v_lshlrev_b32 v{V_BASE}, 2, v{V_BASE}
    v_mov_b32 v{V_TWO}, 2
    s_mov_b32 s{S_T0}, {TS}
    v_mul_lo_u32 v{V_E0}, v{t + 5}, s{S_T0}
    s_waitcnt lgkmcnt(0)
    s_add_u32 s{S_REC}, s{S_REC}, {WSOFF}
    s_addc_u32 s{S_REC + 1}, s{S_REC + 1}, 0
    s_add_u32 s{S_OFFS}, s{S_REC}, {OFFS_BASE}
    s_addc_u32 s{S_OFFS + 1}, s{S_REC + 1}, 0
    s_and_b32 s{S_OFFS + 1}, s{S_OFFS + 1}, 0xffff
    s_mov_b32 s{S_OFFS + 2}, {NT * 1024}
    s_mov_b32 s{S_OFFS + 3}, 0x00020000
    buffer_load_dword v{t + 1}, v{t}, s[{S_OFFS}:{S_OFFS + 3}], s{S_BK4} offen
    s_and_b32 s{S_REC + 1}, s{S_REC + 1}, 0xffff
    s_mov_b32 s{S_REC + 2}, {NT * TS}
    s_mov_b32 s{S_REC + 3}, 0x00020000
    s_and_b32 s{S_MI + 1}, s{S_MI + 1}, 0xffff
    s_or_b32 s{S_MI + 1}, s{S_MI + 1}, 0x80000
    s_mov_b32 s{S_MI + 2}, {E}
    s_mov_b32 s{S_MI + 3}, 0x00020000
    s_mov_b32 s{S_IT}, 0
    s_mov_b32 s{S_REM}, -1
    s_mov_b32 s{S_MYINC}, 0""")
stamp()
w(f"""    s_barrier
    s_waitcnt vmcnt(0)
    v_and_b32 v{t + 2}, 0xffff, v{t + 1}               ; s3
    v_lshrrev_b32 v{t + 3}, 16, v{t + 1}               ; e3
    v_and_b32 v{t + 4}, 1, v{t + 1}
    v_mul_u32_u24 v{t + 4}, 3, v{t + 4}                ; relS
    v_sub_u32 v{t + 2}, v{t + 2}, v{t + 4}             ; hb
    v_sub_u32 v{t + 3}, v{t + 3}, v{t + 2}             ; relE
    v_lshl_add_u32 v{V_E0}, v{t + 2}, 1, v{V_E0}
    v_lshl_or_b32 v{V_E1}, v{t + 4}, 16, v{t + 3}
    v_cmp_lt_u32 vcc, v{t + 4}, v{t + 3}
    s_or_b32 s{S_TODO}, vcc_lo, vcc_hi""")
stamp()


def pop(tag, fetch):
    w(f"""    s_cmp_lg_u32 s{S_TODO}, 0
    s_cbranch_scc1 {tag}_have
    s_cmp_lg_u32 s{S_REM}, -1
    s_cbranch_scc1 {tag}_none
    v_and_b32 v{t}, 0xffff, v{V_E1}
    v_subrev_u32 v{t}, 192, v{t}
    v_max_i32 v{V_E1}, 0, v{t}
    v_add_u32 v{V_E0}, 384, v{V_E0}
    v_cmp_lt_u32 vcc, 0, v{V_E1}
    s_or_b32 s{S_TODO}, vcc_lo, vcc_hi
    s_cbranch_scc1 {tag}_have
    s_mov_b32 s{S_REM}, {DA}
    s_branch {tag}_none
{tag}_have:
    s_ff1_i32_b32 s{S_T0}, s{S_TODO}
    s_bitset0_b32 s{S_TODO}, s{S_T0}""")
    if fetch:
        w(f"""    s_lshl_b32 s{S_T0}, s{S_T0}, 2
    v_add_u32 v{t}, s{S_T0}, v{V_BASE}
    ds_bpermute_b32 v{V_W0}, v{t}, v{V_E0}
    ds_bpermute_b32 v{V_W1}, v{t}, v{V_E1}""")
    w(f"{tag}_none:")


def issue_rec(u, tag):
    R = V_REC[u]
    mA = S_MASK + u * 4
    mB = mA + 2
    sd0 = "src0_sel:DWORD src1_sel:WORD_0"
    sd1 = "src0_sel:DWORD src1_sel:WORD_1"
    w(f"""    s_waitcnt lgkmcnt(0)
    v_add_u32 v{t + 1}, v{V_W0}, v{V_L12}
    v_cmp_lt_u32_sdwa vcc, v{V_L6}, v{V_W1} {sd0}
    v_cmp_ge_u32_sdwa s[{mA}:{mA + 1}], v{V_L6}, v{V_W1} {sd1}
    v_cmp_lt_u32_sdwa s[{mB}:{mB + 1}], v{V_L6P}, v{V_W1} {sd0}
    s_or_b64 exec, vcc, 1
    buffer_load_dwordx3 v[{R}:{R + 2}], v{t + 1}, s[{S_REC}:{S_REC + 3}], 0 offen
    s_mov_b64 exec, -1
    s_and_b64 s[{mA}:{mA + 1}], s[{mA}:{mA + 1}], vcc""")
    pop(tag, True)


def place(u):
    if "xnoplace" in sys.argv:
        w(f"    s_add_u32 s{S_IT}, s{S_IT}, 1")
        return
    R = V_REC[u]
    mA = S_MASK + u * 4
    mB = mA + 2
    bA, bB, rA, rB, xA, xB = t + 4, t + 5, t + 6, t + 7, t + 8, t + 9
    sb3 = "dst_sel:DWORD dst_unused:UNUSED_PAD src0_sel:DWORD src1_sel:BYTE_3"
    w(f"""    v_lshlrev_b32_sdwa v{xA}, 2, v{R} {sb3}
    v_lshlrev_b32_sdwa v{xB}, 2, v{R + 2} {sb3}
    s_mov_b64 exec, s[{mA}:{mA + 1}]
    ds_add_rtn_u32 v{rA}, v{xA}, v{V_TWO} offset:{A_CNT}
    s_mov_b64 exec, s[{mB}:{mB + 1}]
    ds_add_rtn_u32 v{rB}, v{xB}, v{V_TWO} offset:{A_CNT}
    s_mov_b64 exec, -1
    v_mul_u32_u24_sdwa v{bA}, s{S_768}, v{R} {sb3}
    v_mul_u32_u24_sdwa v{bB}, s{S_768}, v{R + 2} {sb3}
    s_waitcnt lgkmcnt(0)
    v_cmp_lt_u32 vcc, 0xff, v{rA}
    s_and_b64 s[{S_K}:{S_K + 1}], vcc, s[{mA}:{mA + 1}]
    v_cmp_lt_u32 vcc, 0xff, v{rB}
    s_and_b64 s[{S_K2}:{S_K2 + 1}], vcc, s[{mB}:{mB + 1}]
    s_or_b64 vcc, s[{S_K}:{S_K + 1}], s[{S_K2}:{S_K2 + 1}]
    s_cbranch_scc0 a_noovf{u}
    v_mov_b32 v{xA}, 0
    s_mov_b64 exec, s[{S_K}:{S_K + 1}]
    ds_add_rtn_u32 v{rA}, v{xA}, v{V_TWO} offset:{A_OVF}
    s_mov_b64 exec, s[{S_K2}:{S_K2 + 1}]
    ds_add_rtn_u32 v{rB}, v{xA}, v{V_TWO} offset:{A_OVF}
    s_waitcnt lgkmcnt(0)
    v_lshrrev_b32 v{bB}, 8, v{rB}
    v_cmp_le_u32 vcc, {NOVB}, v{bB}
    v_add_u32 v{bB}, {NBIN}, v{bB}
    v_mul_u32_u24 v{bB}, s{S_768}, v{bB}
    v_and_b32 v{rB}, 0xff, v{rB}
    s_mov_b64 s[{S_K2}:{S_K2 + 1}], vcc
    s_mov_b64 exec, s[{S_K}:{S_K + 1}]
    v_lshrrev_b32 v{bA}, 8, v{rA}
    v_cmp_le_u32 vcc, {NOVB}, v{bA}
    v_add_u32 v{bA}, {NBIN}, v{bA}
    v_mul_u32_u24 v{bA}, s{S_768}, v{bA}
    v_and_b32 v{rA}, 0xff, v{rA}
    s_mov_b64 s[{S_K}:{S_K + 1}], vcc
    s_mov_b64 exec, -1
    s_or_b64 vcc, s[{S_K}:{S_K + 1}], s[{S_K2}:{S_K2 + 1}]
    s_cbranch_scc0 a_noovf{u}
    s_mov_b64 s[{S_RA}:{S_RA + 1}], s[{S_K}:{S_K + 1}]
    s_mov_b64 s[{S_RB}:{S_RB + 1}], s[{S_K2}:{S_K2 + 1}]
    s_andn2_b64 s[{mA}:{mA + 1}], s[{mA}:{mA + 1}], s[{S_K}:{S_K + 1}]
    s_andn2_b64 s[{mB}:{mB + 1}], s[{mB}:{mB + 1}], s[{S_K2}:{S_K2 + 1}]
    s_mov_b32 s{S_MYINC}, 1
a_noovf{u}:
    v_lshl_add_u32 v{xA}, v{rA}, 1, v{bA}
    v_lshl_add_u32 v{xB}, v{rB}, 1, v{bB}
    v_add_u32 v{rA}, v{rA}, v{bA}
    v_add_u32 v{rB}, v{rB}, v{bB}
    s_mov_b64 exec, s[{mA}:{mA + 1}]
    ds_write_b32 v{xA}, v{R} offset:{A_STG}
    ds_write_b16 v{rA}, v{R + 1} offset:{A_STG + 512}
    s_mov_b64 exec, s[{mB}:{mB + 1}]
    ds_write_b32 v{xB}, v{R + 2} offset:{A_STG}
    ds_write_b16_d16_hi v{rB}, v{R + 1} offset:{A_STG + 512}
    s_mov_b64 exec, -1
    s_cmp_lg_u32 s{S_MYINC}, 0
    s_cbranch_scc1 a_stop
    s_add_u32 s{S_IT}, s{S_IT}, 1""")


w(f"""    s_mov_b32 s{S_T1}, s{S_SKIP}
a_replay:
    s_cmp_eq_u32 s{S_T1}, 0
    s_cbranch_scc1 a_replay_done""")
pop("a_rp", False)
w(f"""    s_sub_u32 s{S_T1}, s{S_T1}, 1
    s_branch a_replay
a_replay_done:""")
for i in range(DA * 2):
    w(f"    s_mov_b64 s[{S_MASK + 2 * i}:{S_MASK + 2 * i + 1}], 0")
pop("a_p0", True)
for u in range(DA - 1):
    w(f"""    s_cmp_lg_u32 s{S_REM}, -1
    s_cbranch_scc1 a_pro_done""")
    issue_rec(u, f"a_pi{u}")
    if u == 0:
        w(f"""    s_and_b64 s[{S_MASK}:{S_MASK + 1}], s[{S_MASK}:{S_MASK + 1}], s[{S_RA}:{S_RA + 1}]
    s_and_b64 s[{S_MASK + 2}:{S_MASK + 3}], s[{S_MASK + 2}:{S_MASK + 3}], s[{S_RB}:{S_RB + 1}]
    s_mov_b64 s[{S_RA}:{S_RA + 1}], -1
    s_mov_b64 s[{S_RB}:{S_RB + 1}], -1""")
w("a_pro_done:")
if "pfA" in sys.argv:
    w(f"""    s_lshr_b32 s{S_T0}, s2, 3
    s_mul_i32 s{S_T0}, s{S_T0}, 12500
    v_lshlrev_b32 v{t + 2}, 4, v0
    v_add_u32 v{t + 2}, s{S_T0}, v{t + 2}
    v_cmp_gt_u32 vcc, 783, v0
    s_or_b64 exec, vcc, 1
    buffer_load_dword v{V_JUNK}, v{t + 2}, s[{S_MI}:{S_MI + 3}], 0 idxen
    s_mov_b64 exec, -1""")
w("a_loop:")
for u in range(DA):
    un = (u + DA - 1) % DA
    if u % 3 == 0 and "noprioA" not in sys.argv:
        w(f"""    s_cmp_lt_u32 s{S_IT}, 3
    s_cbranch_scc1 a_pr{u}
    s_setprio 2
    s_cmp_lt_u32 s{S_IT}, 6
    s_cbranch_scc1 a_pr{u}
    s_setprio 1
    s_cmp_lt_u32 s{S_IT}, 9
    s_cbranch_scc1 a_pr{u}
    s_setprio 0
a_pr{u}:""")
    w(f"""    s_cmp_lg_u32 s{S_REM}, -1
    s_cbranch_scc1 a_cd{u}""")
    issue_rec(un, f"a_li{u}")
    w(f"""    s_waitcnt vmcnt({DA - 1})
    s_branch a_go{u}
a_cd{u}:
    s_sub_u32 s{S_REM}, s{S_REM}, 1
    s_cmp_eq_u32 s{S_REM}, 0
    s_cbranch_scc1 a_end
    s_mov_b64 s[{S_MASK + un * 4}:{S_MASK + un * 4 + 1}], 0
    s_mov_b64 s[{S_MASK + un * 4 + 2}:{S_MASK + un * 4 + 3}], 0
    s_waitcnt vmcnt(0)
a_go{u}:""")
    place(u)
w(f"""    s_branch a_loop
a_stop:
    v_mov_b32 v{t}, 0
    v_mov_b32 v{t + 1}, 1
    ds_write_b32 v{t}, v{t + 1} offset:{A_INC}
a_end:
    s_add_u32 s{S_SKIP}, s{S_SKIP}, s{S_IT}
    s_load_dwordx2 s[{S_DIST}:{S_DIST + 1}], s[0:1], 24
    s_load_dwordx2 s[{S_CENT}:{S_CENT + 1}], s[0:1], 40
    s_load_dwordx2 s[{S_MB}:{S_MB + 1}], s[0:1], 0
    s_waitcnt vmcnt(0) lgkmcnt(0)
    s_load_dwordx4 s[{S_CENT}:{S_CENT + 3}], s[{S_CENT}:{S_CENT + 1}], 0
    s_and_b32 s{S_DIST + 1}, s{S_DIST + 1}, 0xffff
    s_mov_b32 s{S_DIST + 2}, {E * 2}
    s_mov_b32 s{S_DIST + 3}, 0x00020000
    s_and_b32 s{S_MB + 1}, s{S_MB + 1}, 0xffff
    s_mov_b32 s{S_MB + 2}, {E * 8}
    s_mov_b32 s{S_MB + 3}, 0x00020000""")
stamp()
w(f"""    s_barrier
    v_mov_b32 v{t}, 0
    ds_read_b64 v[{t + 2}:{t + 3}], v{t} offset:{A_OVF}""")
t2 = V_TB2
if DIAG:
    w("    v_mov_b32 v22, v43")
    _st["v"] = 22
w(f"""    s_mov_b32 s{S_HM}, 0xffff0000
    s_cmp_ge_u32 s{S_WAVE}, {NPW}
    s_cbranch_scc1 b_consumer""")
NB2 = NITB * NPW
w(f"""    v_and_b32 v{t2}, 63, v0                       ; lane
    s_add_u32 s{S_T0}, s{S_WAVE}, s{S_ROT}
    v_mul_u32_u24 v{t2 + 1}, {NPW}, v{t2}
    v_add_u32 v{t2 + 1}, s{S_T0}, v{t2 + 1}
    v_subrev_u32 v{t2 + 2}, {NB2}, v{t2 + 1}
    v_min_u32 v{t2 + 1}, v{t2 + 1}, v{t2 + 2}
    v_min_u32 v{t2 + 2}, {NBIN - 1}, v{t2 + 1}
    v_lshlrev_b32 v{t2 + 2}, 2, v{t2 + 2}
    ds_read_b32 v{V_CN}, v{t2 + 2} offset:{A_CNT}
    v_lshlrev_b32 v{t2 + 3}, 3, v{t2}
    v_lshlrev_b32 v{V_L4}, 2, v{t2}
    s_mul_i32 s{S_T0}, s{S_T0}, {BSTR}""")
def readback(j):
    w(f"""    v_add_u32 v{t2 + 6 + 2 * (j % 2)}, s{S_RB0}, v{t2 + 3}
    v_add_u32 v{t2 + 7 + 2 * (j % 2)}, s{S_RB0}, v{V_L4}
    s_add_u32 s{S_RB0}, s{S_RB0}, {NPW * BSTR}
    s_sub_u32 s{S_RB0 + 1}, s{S_RB0}, {NB2 * BSTR}
    s_min_u32 s{S_RB0}, s{S_RB0}, s{S_RB0 + 1}
    ds_read_b64 v[{V_RW[j]}:{V_RW[j] + 1}], v{t2 + 6 + 2 * (j % 2)} offset:{A_STG}
    ds_read_b32 v{V_RA[j]}, v{t2 + 7 + 2 * (j % 2)} offset:{A_STG + 512}""")


S_RB0 = S_K
w(f"    s_mov_b32 s{S_RB0}, s{S_T0}")
readback(0)
readback(1)
w(f"""    v_subrev_u32 v{t2 + 5}, {NBIN}, v{t2 + 1}
    v_lshlrev_b32 v{t2 + 5}, 8, v{t2 + 5}
    v_cmp_gt_u32 vcc, {NBIN}, v{t2 + 1}
    s_waitcnt lgkmcnt(0)
    v_readfirstlane_b32 s{S_INC}, v{t + 3}
    v_min_u32 v{t + 2}, {NOVB * 256}, v{t + 2}
    v_sub_u32 v{t2 + 5}, v{t + 2}, v{t2 + 5}
    v_max_i32 v{t2 + 5}, 0, v{t2 + 5}
    v_cndmask_b32 v{V_CN}, v{t2 + 5}, v{V_CN}, vcc
    v_min_u32 v{V_CN}, 0x100, v{V_CN}""")


BLKOF = {}
MSKOF = {}
free_blk = list(V_BLK)
free_msk = [(36 + 4 * i, 38 + 4 * i) for i in range(12)]
LOOK = 2
for a_ in sys.argv:
    if a_.startswith("look="):
        LOOK = int(a_[5:])


def gather(j):
    BLKOF[j] = B = free_blk.pop(0)
    MSKOF[j] = (mA, mB) = free_msk.pop(0)
    W = V_RW[j]
    w(f"""    v_readlane_b32 s{S_T0}, v{V_CN}, {j}
    v_lshrrev_b32 v{t2}, 13, v{W}
    v_lshrrev_b32 v{t2 + 1}, 13, v{W + 1}
    s_sub_u32 s{S_T1}, s{S_T0}, 2
    v_cmp_gt_u32 s[{mA}:{mA + 1}], s{S_T0}, v{V_L4}
    v_cmp_gt_i32 s[{mB}:{mB + 1}], s{S_T1}, v{V_L4}
    s_or_b64 exec, s[{mA}:{mA + 1}], 1
    buffer_load_dwordx2 v[{B}:{B + 1}], v{t2}, s[{S_MI}:{S_MI + 3}], 0 idxen
    s_or_b64 exec, s[{mB}:{mB + 1}], 1
    buffer_load_dwordx2 v[{B + 4}:{B + 5}], v{t2 + 1}, s[{S_MI}:{S_MI + 3}], 0 idxen
    s_mov_b64 exec, -1""")


def build(j, vm):
    u = j % 3
    c_, k = JMAP[j]
    p = c_ % 2
    so = (k + 5 * p) * 2048
    B = BLKOF[j]
    mA, mB = MSKOF[j]
    W, A = V_RW[j], V_RA[j]
    t = t2
    idx0 = so // 16
    a2, c1, c2, c3 = t + 2, t + 4, t + 6, t + 8
    K0, K1 = V_KC
    lo = "op_sel:[0,0] op_sel_hi:[1,0]"
    hi = "op_sel:[0,1] op_sel_hi:[1,1]"
    w(f"""    v_and_b32 v{t + 10}, 0x1ffc, v{W}
    v_and_b32 v{t + 11}, 0x1ffc, v{W + 1}
    v_add_u32 v{t}, {idx0}, v{V_SI}
    v_add_u32 v{t + 1}, {idx0 + 64}, v{V_SI}
    s_mov_b64 exec, s[{mA}:{mA + 1}]
    ds_wrxchg_rtn_b32 v{B + 3}, v{t + 10}, v{t} offset:{HEAD[p]}
    s_mov_b64 exec, s[{mB}:{mB + 1}]
    ds_wrxchg_rtn_b32 v{B + 7}, v{t + 11}, v{t + 1} offset:{HEAD[p]}
    s_mov_b64 exec, -1
    v_lshlrev_b32 v{a2}, 16, v{A}
    v_and_b32 v{a2 + 1}, s{S_HM}, v{A}
    v_pk_mul_f32 v[{c3}:{c3 + 1}], v[{a2}:{a2 + 1}], v[{K0}:{K0 + 1}] {hi}
    v_pk_mul_f32 v[{c1}:{c1 + 1}], v[{a2}:{a2 + 1}], v[{K0}:{K0 + 1}] {lo}
    v_cvt_pk_bf16_f32 v{c3 + 1}, v{c3}, v{c3 + 1}
    v_fract_f32 v{c1}, v{c1}
    v_fract_f32 v{c1 + 1}, v{c1 + 1}
    v_lshlrev_b32 v{c3}, 16, v{c3 + 1}
    v_and_b32 v{c3 + 1}, s{S_HM}, v{c3 + 1}
    v_cos_f32 v{c1}, v{c1}
    v_cos_f32 v{c1 + 1}, v{c1 + 1}
    v_pk_mul_f32 v[{c3}:{c3 + 1}], v[{c3}:{c3 + 1}], v[{K0}:{K0 + 1}] {lo}
    v_pk_add_f32 v[{c2}:{c2 + 1}], v[{c1}:{c1 + 1}], v[{c1}:{c1 + 1}]
    v_fract_f32 v{c3}, v{c3}
    v_fract_f32 v{c3 + 1}, v{c3 + 1}
    v_pk_fma_f32 v[{c2}:{c2 + 1}], v[{c2}:{c2 + 1}], v[{c1}:{c1 + 1}], v[{K1}:{K1 + 1}] op_sel:[0,0,0] op_sel_hi:[1,1,0]
    v_cos_f32 v{c3}, v{c3}
    v_cos_f32 v{c3 + 1}, v{c3 + 1}
    v_cvt_pk_bf16_f32 v{B + 2}, v{c1}, v{c2}
    v_cvt_pk_bf16_f32 v{B + 6}, v{c1 + 1}, v{c2 + 1}
    v_cvt_pk_bf16_f32 v{t}, v{c3}, v{c3 + 1}
    s_waitcnt lgkmcnt(0)
    v_lshl_or_b32 v{B + 3}, v{t}, 16, v{B + 3}
    v_and_or_b32 v{B + 7}, v{t}, v{V_HIM}, v{B + 7}
    s_waitcnt vmcnt({vm})
    ds_write_b128 v{V_SL}, v[{B}:{B + 3}] offset:{so}
    ds_write_b128 v{V_SL}, v[{B + 4}:{B + 7}] offset:{so + 1024}""")


w("    s_setprio 3")
gather(0)
gather(1)
for j in range(2, NITB):
    readback(j)
w("""    s_waitcnt lgkmcnt(0)
    s_barrier""")
stamp(3)
w(f"""    v_mov_b32 v{V_KC[0]}, 0.15915494
    v_mov_b32 v{V_KC[0] + 1}, 0x40400000
    v_mov_b32 v{V_KC[1]}, -1.0
    v_mov_b32 v{V_HIM}, 0xffff0000
    s_mul_i32 s{S_T0}, s{S_WAVE}, {WREG}
    s_add_u32 s{S_T0}, s{S_T0}, {BUF0}
    v_lshlrev_b32 v{V_SL}, 2, v{V_L4}
    v_add_u32 v{V_SL}, s{S_T0}, v{V_SL}
    v_lshrrev_b32 v{V_SI}, 4, v{V_SL}
    s_barrier""")
stamp(4)
nxt = 2
for j in range(NITB):
    c_, k_ = JMAP[j]
    w(f"    s_setprio {min(2, PAT[c_] - 1 - k_) + (0 if 'prodprio' not in sys.argv else 1)}")
    while nxt < NITB and nxt <= j + LOOK and free_blk:
        gather(nxt)
        nxt += 1
    build(j, 2 * (nxt - 1 - j))
    free_blk.append(BLKOF[j])
    free_msk.append(MSKOF[j])
    if j % 4 == 3 and j < 16:
        free_blk.append(V_RW[j - 3])
    if k_ == PAT[c_] - 1:
        w("    s_waitcnt lgkmcnt(0)")
        stamp(10 + 2 * c_)
        w("    s_barrier")
        stamp(11 + 2 * c_)
w(f"""    s_cmp_lg_u32 s{S_INC}, 0
    s_cbranch_scc0 b_pdone
    s_barrier
    s_branch a_batch
b_pdone:""")
stamp(7)
stamp_flush(1, S_WAVE, 36)
w("    s_endpgm")

c2 = 4
w(f"""b_consumer:
    s_setprio 3
    v_subrev_u32 v{V_CH}, {NPW * 64}, v0
    v_add_u32 v1, s{S_E0}, v{V_CH}
    v_lshlrev_b32 v{V_CH}, 2, v{V_CH}
    s_waitcnt lgkmcnt(0)
    v_readfirstlane_b32 s{S_INC}, v{t + 3}
    v_lshlrev_b32 v1, 1, v1""")
d0, tmp = 16, 24
for q in range(4):
    w(f"    buffer_load_ushort v{d0 + q}, v1, s[{S_DIST}:{S_DIST + 3}], 0 offen offset:{q * 1024}")
w(f"""    v_mov_b32 v4, {NIL}
    v_mov_b32 v5, {NIL}
    v_mov_b32 v6, {NIL}
    v_mov_b32 v7, {NIL}
    v_mov_b32 v8, 0
    v_mov_b32 v9, 0
    v_mov_b32 v10, 0
    v_mov_b32 v11, {NIL}
    v_lshlrev_b32 v2, 2, v{V_CH}
    v_cmp_gt_u32 vcc, 4608, v2
    s_barrier
    ds_write_b128 v2, v[4:7]
    s_mov_b64 exec, vcc
    ds_write_b128 v2, v[4:7] offset:8192
    s_mov_b64 exec, -1
    ds_write_b128 v8, v[8:11] offset:{B_DUMMY}
    s_waitcnt lgkmcnt(0)
    s_barrier
    s_setprio 0
    s_load_dwordx8 s[8:15], s[0:1], 56
    s_waitcnt vmcnt(0)""")
for i in range(4):
    w(f"    v_lshlrev_b32 v{d0 + i}, 16, v{d0 + i}")
for p in range(4):
    w(f"""    s_lshl_b32 s{S_T0}, s{S_CENT + p}, 16
    s_and_b32 s{S_T1}, s{S_CENT + p}, 0xffff0000""")
    for e in range(4):
        a, b, tt = tmp + 2 * (e % 2), tmp + 1 + 2 * (e % 2), V_PK[e] + p
        d = d0 + e
        w(f"""    v_subrev_f32 v{a}, s{S_T0}, v{d}
    v_subrev_f32 v{b}, s{S_T1}, v{d}
    v_cvt_pk_bf16_f32 v{tt}, v{a}, v{b}
    v_lshlrev_b32 v{a}, 16, v{tt}
    v_and_b32 v{b}, 0xffff0000, v{tt}
    v_mul_f32 v{a}, v{a}, v{a}
    v_mul_f32 v{b}, v{b}, v{b}
    v_cvt_pk_bf16_f32 v{tt}, v{a}, v{b}
    v_lshlrev_b32 v{a}, 16, v{tt}
    v_and_b32 v{b}, 0xffff0000, v{tt}
    v_mul_f32 v{a}, 0xc1200000, v{a}
    v_mul_f32 v{b}, 0xc1200000, v{b}
    v_cvt_pk_bf16_f32 v{tt}, v{a}, v{b}
    v_lshlrev_b32 v{a}, 16, v{tt}
    v_and_b32 v{b}, 0xffff0000, v{tt}
    v_mul_f32 v{a}, 0x3fb8aa3b, v{a}
    v_mul_f32 v{b}, 0x3fb8aa3b, v{b}
    v_exp_f32 v{a}, v{a}
    v_exp_f32 v{b}, v{b}
    s_nop 0
    v_cvt_pk_bf16_f32 v{tt}, v{a}, v{b}""")
w(f"""    s_waitcnt lgkmcnt(0)
    s_load_dwordx16 s[{SW_RBF}:{SW_RBF + 15}], s[8:9], 0
    s_load_dwordx16 s[{SW_SBF}:{SW_SBF + 15}], s[10:11], 0
    s_load_dwordx16 s[{SW_SBF + 16}:{SW_SBF + 31}], s[10:11], 64
    s_load_dwordx16 s[{SW_SBF + 32}:{SW_SBF + 47}], s[10:11], 128
    s_mov_b64 s[100:101], s[14:15]
    s_load_dwordx8 s[8:15], s[12:13], 0
    s_waitcnt lgkmcnt(0)""")


def gr_code(edges, G, Rt):
    for p in range(4):
        for dp in range(2):
            sa, sb = SW_RBF + (2 * p) * 2 + dp, SW_RBF + (2 * p + 1) * 2 + dp
            w(f"""    s_pack_ll_b32_b16 s{S_T0}, s{sa}, s{sb}
    s_pack_hh_b32_b16 s{S_T1}, s{sa}, s{sb}""")
            for i, q in enumerate(edges):
                for h, st_ in ((0, S_T0), (1, S_T1)):
                    g = Rt[i] + dp * 2 + h
                    c = "0" if p == 0 else f"v{g}"
                    w(f"    v_dot2_f32_bf16 v{g}, v{V_PK[q] + p}, s{st_}, {c}")
    for l in range(3):
        for p in range(4):
            r0 = (2 * p) * 3 + l
            r1 = (2 * p + 1) * 3 + l
            for dp in range(2):
                sa, sb = SW_SBF + r0 * 2 + dp, SW_SBF + r1 * 2 + dp
                w(f"""    s_pack_ll_b32_b16 s{S_T0}, s{sa}, s{sb}
    s_pack_hh_b32_b16 s{S_T1}, s{sa}, s{sb}""")
                for i, q in enumerate(edges):
                    for h, st_ in ((0, S_T0), (1, S_T1)):
                        g = G[i] + 4 * l + dp * 2 + h
                        c = "0" if p == 0 else f"v{g}"
                        w(f"    v_dot2_f32_bf16 v{g}, v{V_PK[q] + p}, s{st_}, {c}")
    for i, q in enumerate(edges):
        w(f"""    v_cvt_pk_bf16_f32 v{G[i] + 12}, v{Rt[i]}, v{Rt[i] + 1}
    v_cvt_pk_bf16_f32 v{G[i] + 13}, v{Rt[i] + 2}, v{Rt[i] + 3}""")
    w("    s_nop 2")


gr_code([0, 1, 2], V_G, [16, 24, 124])
w(f"    s_setprio {3 if 'prodprio' not in sys.argv else 0}")


def prefetch(n, tag):
    pass


PFN = 0


def walk(p, n, tag):
    r = [c2 + 4 * i for i in range(4)]
    M0, C1 = 20, 42
    ad, nil = 1, 2
    for i in range(n):
        w(f"    ds_read_b32 v{r[i]}, v{V_CH} offset:{HEAD[p] + i * 2048}")
    w(f"    v_mov_b32 v{nil}, {NIL}")
    for i in range(n):
        w(f"""    s_waitcnt lgkmcnt({n - 1 - i + 2 * i})
    v_lshlrev_b32 v{ad}, 4, v{r[i]}
    ds_write_b32 v{V_CH}, v{nil} offset:{HEAD[p] + i * 2048}
    ds_read_b128 v[{r[i]}:{r[i] + 3}], v{ad}""")
    w(f"""    v_mov_b32 v{nil}, {B_DUMMY}
{tag}:""")
    for i in range(n):
        R, Sx = r[i], V_S[i]
        X = 24
        w(f"""    s_waitcnt lgkmcnt({n - 1})
    v_lshlrev_b32_sdwa v{ad}, 4, v{R + 3} dst_sel:DWORD dst_unused:UNUSED_PAD src0_sel:DWORD src1_sel:WORD_0
    v_lshlrev_b32 v{M0}, 16, v{R}
    v_lshlrev_b32 v{M0 + 1}, 16, v{R + 1}
    v_lshlrev_b32 v{C1}, 16, v{R + 2}
    v_and_b32 v{X}, s{S_HM}, v{R}
    v_and_b32 v{X + 1}, s{S_HM}, v{R + 1}
    v_and_b32 v{X + 2}, s{S_HM}, v{R + 2}
    v_and_b32 v{X + 3}, s{S_HM}, v{R + 3}
    ds_read_b128 v[{R}:{R + 3}], v{ad}""")
        if i == 0:
            w(f"    v_cmp_ne_u32 vcc, v{ad}, v{nil}")
        else:
            w(f"    v_cmp_ne_u32 s[{S_K}:{S_K + 1}], v{ad}, v{nil}")
        for l in range(3):
            cp = C1 if l == 0 else X + 2
            sel = "op_sel:[0,1,0] op_sel_hi:[1,1,1]" if l == 2 else "op_sel:[0,0,0] op_sel_hi:[1,0,1]"
            for h, mm in ((0, M0), (1, X)):
                s_ = Sx + 4 * l + 2 * h
                w(f"    v_pk_fma_f32 v[{s_}:{s_ + 1}], v[{mm}:{mm + 1}], v[{cp}:{cp + 1}], v[{s_}:{s_ + 1}] {sel}")
        if i > 0:
            w(f"    s_or_b64 vcc, vcc, s[{S_K}:{S_K + 1}]")
    w(f"""    s_cbranch_vccnz {tag}
    s_waitcnt lgkmcnt(0)""")


w(f"""    s_mov_b32 s{S_REM}, {NCHK}
b_cloop:""")
for p in range(2):
    w("    s_barrier")
    prefetch(PFN, f"b_pfl{p}")
    w(f"""    s_cmp_eq_u32 s{S_WAVE}, {NPW}
    s_cbranch_scc1 b_w4{p}""")
    walk(p, 3, f"b_wa{p}")
    w(f"""    s_branch b_wdone{p}
b_w4{p}:""")
    walk(p, 4, f"b_wb{p}")
    w(f"b_wdone{p}:")
    stamp(8 + p)
    w(f"""    s_sub_u32 s{S_REM}, s{S_REM}, 1
    s_cmp_eq_u32 s{S_REM}, 0
    s_cbranch_scc1 b_cend""")
w(f"""    s_branch b_cloop
b_cend:
    s_waitcnt vmcnt(0)
    s_cmp_lg_u32 s{S_INC}, 0
    s_cbranch_scc0 b_final
    s_barrier
    s_branch a_batch
b_final:
    s_load_dwordx8 s[16:23], s[100:101], 0            ; w_up
    s_load_dwordx2 s[28:29], s[0:1], 88               ; out
    v_lshrrev_b32 v1, 2, v{V_CH}
    v_add_u32 v1, s{S_E0}, v1
    v_add_u32 v2, 512, v1
    buffer_load_dwordx2 v[{V_MR[0]}:{V_MR[0] + 1}], v1, s[{S_MI}:{S_MI + 3}], 0 idxen
    buffer_load_dwordx2 v[{V_MR[1]}:{V_MR[1] + 1}], v2, s[{S_MI}:{S_MI + 3}], 0 idxen
    v_add_u32 v2, 1024, v1
    s_lshl_b32 s{S_E0}, s{S_E0}, 3
    buffer_load_dwordx2 v[{V_MR[2]}:{V_MR[2] + 1}], v2, s[{S_MI}:{S_MI + 3}], 0 idxen
    v_lshlrev_b32 v{V_CH}, 1, v{V_CH}                 ; c*8""")
stamp(6)
SWD2, SWU2, S_OUT = 8, 16, 28


def fin_group(edges, G, first):
    R = [dict(AG=4 + 8 * i, U=8 + 8 * i) for i in range(len(edges))]
    if DIAG:
        R[-1] = dict(AG=V_S[0], U=24) if len(edges) == 3 else R[-1]
    for l in range(3):
        for k in range(4):
            for dp in range(2):
                sg = SWD2 + k * 2 + dp
                w(f"""    s_lshl_b32 s{S_T0}, s{sg}, 16
    s_and_b32 s{S_T1}, s{sg}, 0xffff0000""")
                for i, q in enumerate(edges):
                    for h, st_ in ((0, S_T0), (1, S_T1)):
                        u_ = R[i]['U'] + dp * 2 + h
                        op = "v_mul_f32" if k == 0 else "v_fmac_f32"
                        w(f"    {op} v{u_}, s{st_}, v{V_S[q] + 4 * l + [0, 2, 1, 3][k]}")
        for i, q in enumerate(edges):
            for j in range(4):
                op = "v_mul_f32" if l == 0 else "v_fmac_f32"
                w(f"    {op} v{R[i]['AG'] + j}, v{G[i] + 4 * l + j}, v{R[i]['U'] + j}")
    if first:
        w(f"""    s_waitcnt lgkmcnt(0)
    s_and_b32 s{S_OUT + 1}, s{S_OUT + 1}, 0xffff
    s_mov_b32 s{S_OUT + 2}, {E * 8}
    s_mov_b32 s{S_OUT + 3}, 0x00020000""")
    for k in range(4):
        for dp in range(2):
            sg = SWU2 + k * 2 + dp
            w(f"""    s_lshl_b32 s{S_T0}, s{sg}, 16
    s_and_b32 s{S_T1}, s{sg}, 0xffff0000""")
            for i, q in enumerate(edges):
                for h, st_ in ((0, S_T0), (1, S_T1)):
                    u_ = R[i]['U'] + dp * 2 + h
                    op = "v_mul_f32" if k == 0 else "v_fmac_f32"
                    w(f"    {op} v{u_}, s{st_}, v{R[i]['AG'] + k}")
    w("    s_waitcnt vmcnt(0)")
    for i, q in enumerate(edges):
        for dp in range(2):
            u0 = R[i]['U'] + 2 * dp
            rp = G[i] + 12 + dp
            mr = V_MR[q] + dp
            a, b = R[i]['AG'], R[i]['AG'] + 1
            w(f"""    v_cvt_pk_bf16_f32 v{u0 + 1}, v{u0}, v{u0 + 1}
    v_lshlrev_b32 v{a}, 16, v{rp}
    v_and_b32 v{b}, 0xffff0000, v{rp}
    v_lshlrev_b32 v{u0}, 16, v{u0 + 1}
    v_and_b32 v{u0 + 1}, 0xffff0000, v{u0 + 1}
    v_mul_f32 v{u0}, v{u0}, v{a}
    v_mul_f32 v{u0 + 1}, v{u0 + 1}, v{b}
    v_cvt_pk_bf16_f32 v{u0 + 1}, v{u0}, v{u0 + 1}
    v_lshlrev_b32 v{a}, 16, v{mr}
    v_and_b32 v{b}, 0xffff0000, v{mr}
    v_lshlrev_b32 v{u0}, 16, v{u0 + 1}
    v_and_b32 v{u0 + 1}, 0xffff0000, v{u0 + 1}
    v_add_f32 v{u0}, v{u0}, v{a}
    v_add_f32 v{u0 + 1}, v{u0 + 1}, v{b}
    v_cvt_pk_bf16_f32 v{rp}, v{u0}, v{u0 + 1}""")
        w(f"""    s_add_u32 s{S_T0}, s{S_E0}, {q * 4096}
    buffer_store_dwordx2 v[{G[i] + 12}:{G[i] + 13}], v{V_CH}, s[{S_OUT}:{S_OUT + 3}], s{S_T0} offen""")


fin_group([0, 1, 2], V_G, True)
w(f"""    s_cmp_lg_u32 s{S_WAVE}, {NPW}
    s_cbranch_scc1 b_fin_done
    v_cmp_gt_u32 vcc, {(EO - 1536) * 8}, v{V_CH}
    v_add_u32 v2, 1536, v1
    buffer_load_dwordx2 v[{V_MR[3]}:{V_MR[3] + 1}], v2, s[{S_MI}:{S_MI + 3}], 0 idxen
    v_cndmask_b32 v{V_CH}, 2.0, v{V_CH}, vcc""")
gr_code([3], [44], [60])
fin_group([3], [44], False)
w("b_fin_done:")
stamp(7)
stamp_flush(1, S_WAVE, 36)
w("""p2_done:
    s_endpgm""")
w(kd("acc_kernel", 128, 102))
print("\n".join(out))
```

```python
import sys
E = 400000
T = 6400000
EO = 1563
MAGIC = -(-(1 << 32) // EO)
S = 12500
NT = 512
TS = 75008
OFFS_BASE = 40 * 1024 * 1024
assert all(((i * MAGIC) >> 32) == i // EO for i in range(0, E, 1))
assert MAGIC < (1 << 24)

HDR = open('standalone__molecular_angular_gemnet__graph.s.ref').read().split('; Override launch')[0]
out = []


def w(s):
    out.append(s)


def kd(name, vgpr, sgpr):
    return f""".section .rodata,"a"
.p2align 6
.amdhsa_kernel {name}
  .amdhsa_next_free_vgpr {vgpr}
  .amdhsa_next_free_sgpr {sgpr}
  .amdhsa_accum_offset {(vgpr + 3) // 4 * 4}
  .amdhsa_group_segment_fixed_size 0
  .amdhsa_kernarg_size 112
  .amdhsa_user_sgpr_count 2
  .amdhsa_user_sgpr_kernarg_segment_ptr 1
  .amdhsa_system_sgpr_workgroup_id_x 1
  .amdhsa_float_denorm_mode_32 3
.end_amdhsa_kernel
.text
"""


def head(name):
    return f""".globl {name}
.p2align 8
.type {name},@function
{name}:"""


def srd(d, b, nbytes):
    return f"""    s_mov_b32 s{d}, s{b}
    s_and_b32 s{d + 1}, s{b + 1}, 0xffff
    s_mov_b32 s{d + 2}, {nbytes}
    s_mov_b32 s{d + 3}, 0x00020000"""


DIAG = "diag" in sys.argv
STAMP_BASE = 200 * 1024 * 1024
_st = {"n": 0, "s": 0}


def stamp(k=None):
    if not DIAG:
        return
    if k is None:
        k = _st["n"]
    _st["n"] = k + 1
    b = _st["s"]
    v = _st["v"]
    w(f"""    s_memrealtime vcc
    s_waitcnt lgkmcnt(0)
    v_writelane_b32 v{v}, vcc_lo, {k}""")


def stamp_flush(kid, swave, b, wgmask=255):
    if not DIAG:
        return
    v = _st['v']
    w(f"""    s_load_dwordx2 s[{b}:{b + 1}], s[0:1], 104
    s_waitcnt lgkmcnt(0)
    s_add_u32 s{b}, s{b}, {STAMP_BASE + kid * 4 * 1024 * 1024}
    s_addc_u32 s{b + 1}, s{b + 1}, 0
    s_and_b32 s{b + 2}, s2, {wgmask}
    s_lshl_b32 s{b + 2}, s{b + 2}, 4
    s_add_u32 s{b + 2}, s{b + 2}, s{swave}
    s_lshl_b32 s{b + 2}, s{b + 2}, 8
    v_and_b32 v1, 63, v0
    v_lshlrev_b32 v1, 2, v1
    v_add_u32 v1, s{b + 2}, v1
    global_store_dword v1, v{v}, s[{b}:{b + 1}]""")
    sys.stderr.write(f"kernel {kid}: {_st['n']} stamps\n")


P1_LDS = 1024 + TS
ROTN = 1
for a_ in sys.argv:
    if a_.startswith('rot='):
        ROTN = int(a_[4:])
NBIN = 196
NBLK = 209
BSTR = 776
NOVB = (NBLK - NBIN) if "smallovf" not in sys.argv else 1
A_CNT = 0
A_OVF = 1008
A_INC = A_OVF + 4
A_STG = 1024
assert A_STG + NBLK * BSTR <= 163840
NPW = 8
KCH = 4
HEAD = [0, 6400]
B_DUMMY = 12800
BUF0 = 13056
WREG = 9 * 2048
assert BUF0 + NPW * WREG <= 163840
PAT = [5, 4, 5, 4, 5, 4]
for a_ in sys.argv:
    if a_.startswith("pat="):
        PAT = [int(x) for x in a_[4:].split(",")]
NIL = B_DUMMY // 16
NITB = -(-NBLK // NPW)
assert sum(PAT) == NITB and all(n <= (5, 4)[c % 2] for c, n in enumerate(PAT))
NCHK = len(PAT)
JMAP = [(c, k) for c, n in enumerate(PAT) for k in range(n)]
ST_FL = " sc1" if "nosc1" not in sys.argv else ""

w(HDR.rstrip("\n"))
w(f"; @launch kernel=part_kernel grid=(512,1,1) block=(512,1,1) lds={P1_LDS}")
w(f"; @launch kernel=acc_kernel grid=(256,1,1) block=(1024,1,1) lds=163840")
w('.amdgcn_target "amdgcn-amd-amdhsa--gfx950"\n.text')

w(head("part_kernel"))
RB = 16
KB = 88
TMP = 4
_st.update(n=0, v=116)
w(f"""    s_cmp_ge_u32 s2, {NT}
    s_cbranch_scc1 p1_done
    s_load_dwordx4 s[4:7], s[0:1], 8
    s_load_dwordx2 s[28:29], s[0:1], 32    ; angle
    s_load_dwordx2 s[30:31], s[0:1], 104   ; ws
    s_load_dwordx2 s[40:41], s[0:1], 0     ; m
    s_load_dwordx2 s[44:45], s[0:1], 24    ; dist
    v_lshlrev_b32 v1, 4, v0
    v_lshlrev_b32 v2, 3, v0
    v_mov_b32 v3, 3
    v_readfirstlane_b32 s3, v0
    s_lshr_b32 s3, s3, 6
    s_mul_i32 s32, s2, {S * 4}
    s_mul_i32 s33, s2, {S * 2}
    s_mov_b32 s34, {MAGIC}
    s_mov_b32 s35, {(-EO * 4) & 0xffffffff}
    v_lshlrev_b32 v4, 2, v0
    v_mov_b32 v5, 0
    v_cmp_gt_u32 vcc, 256, v0
    s_mov_b64 exec, vcc
    ds_write_b32 v4, v5
    s_mov_b64 exec, -1
    v_add_u32 v12, 1024, v1
    v_add_u32 v13, {1024 + 65536}, v1
    v_cmp_gt_u32 vcc, {TS // 16 - 9 * 512}, v0
    s_nop 1
    v_cndmask_b32 v14, 2.0, v1, vcc
    s_waitcnt lgkmcnt(0)
    s_barrier""")
stamp()
WSOFF = 0
for a_ in sys.argv:
    if a_.startswith("wsoff="):
        WSOFF = int(a_[6:]) * 1024 * 1024
if WSOFF:
    w(f"""    s_add_u32 s30, s30, {WSOFF}
    s_addc_u32 s31, s31, 0""")
w(srd(8, 4, T * 4))
w(srd(12, 6, T * 4))
w(srd(16, 28, T * 2))
w(srd(20, 30, NT * TS))
w(f"""    s_add_u32 s30, s30, {OFFS_BASE}
    s_addc_u32 s31, s31, 0""")
w(srd(24, 30, NT * 1024))


def p1_loads(r):
    b = RB + r * 10
    w(f"""    s_add_u32 s36, s32, {r * 8192}
    s_add_u32 s37, s33, {r * 4096}
    buffer_load_dwordx4 v[{b + 4}:{b + 7}], v1, s[12:15], s36 offen{LDF}
    buffer_load_dwordx4 v[{b}:{b + 3}], v1, s[8:11], s36 offen{LDF}
    buffer_load_dwordx2 v[{b + 8}:{b + 9}], v2, s[16:19], s37 offen{LDF}""")


NPART = S // 4 - 6 * 512
PMASK = (1 << NPART) - 1


def wave0_partial(tag, fn):
    w(f"""    s_cmp_lg_u32 s3, 0
    s_cbranch_scc1 {tag}
    s_mov_b32 exec_lo, {PMASK & 0xffffffff}
    s_mov_b32 exec_hi, {PMASK >> 32}""")
    fn()
    w(f"""    s_mov_b64 exec, -1
{tag}:""")


def p1_hist(r):
    b = RB + r * 10
    for i in range(4):
        vin = b + i
        vo = b + 4 + i
        t = TMP + i
        w(f"""    v_mul_hi_u32_u24 v{t}, s34, v{vo}
    v_lshlrev_b32 v{vo}, 2, v{vo}
    v_mad_i32_i24 v{vo}, v{t}, s35, v{vo}
    v_lshl_or_b32 v{vin}, v{vin}, 13, v{vo}
    v_lshlrev_b32 v{vo}, 2, v{t}
    ds_add_rtn_u32 v{KB + r * 4 + i}, v{vo}, v3""")


def p1_base(r):
    b = RB + r * 10
    for i in range(4):
        vo = b + 4 + i
        w(f"    ds_read_b32 v{vo}, v{vo}")


def p1_scatter(r):
    b = RB + r * 10
    for i in range(4):
        vin = b + i
        vo = b + 4 + i
        k = KB + r * 4 + i
        t = TMP + i
        va = b + 8 + i // 2
        wr = "ds_write_b16" if i % 2 == 0 else "ds_write_b16_d16_hi"
        w(f"""    v_add_lshl_u32 v{k}, v{vo}, v{k}, 1
    v_and_b32 v{t}, 2, v{k}
    v_add_u32 v{vo}, v{k}, v{t}
    v_mad_i32_i24 v{k}, v{t}, -2, v{k}
    ds_write_b32 v{vo}, v{vin}
    {wr} v{k}, v{va} offset:4""")


PR = [3, 1, 2, 2]
for a_ in sys.argv:
    if a_.startswith("pr="):
        PR = [int(x) for x in a_[3:]]
LDF = " nt" if "ldnt" in sys.argv else ""
w(f"""    s_setprio {PR[1]}
    s_cmp_ge_u32 s2, 256
    s_cbranch_scc1 p1_lowprio
    s_setprio {PR[0]}
p1_lowprio:""")
wave0_partial("p1_l3skip", lambda: p1_loads(6))
for r in range(6):
    p1_loads(r)
w(f"    s_setprio {PR[2]}")
stamp()
for r in range(6):
    w(f"    s_waitcnt vmcnt({15 - 3 * r})")
    p1_hist(r)
    if r == 0:
        wave0_partial("p1_h3skip", lambda: p1_hist(6))
w("    s_waitcnt lgkmcnt(0)")
stamp()
w(f"""    s_barrier
    s_cmp_lg_u32 s3, 0
    s_cbranch_scc1 p1_scan_skip
    ds_read_b128 v[4:7], v1
    s_waitcnt lgkmcnt(0)
    v_add_u32 v5, v4, v5
    v_add_u32 v6, v5, v6
    v_add_u32 v7, v6, v7
    v_mov_b32 v8, v7
    s_nop 1
    v_add_u32_dpp v8, v8, v8 row_shr:1 row_mask:0xf bank_mask:0xf bound_ctrl:0
    s_nop 1
    v_add_u32_dpp v8, v8, v8 row_shr:2 row_mask:0xf bank_mask:0xf bound_ctrl:0
    s_nop 1
    v_add_u32_dpp v8, v8, v8 row_shr:4 row_mask:0xf bank_mask:0xf bound_ctrl:0
    s_nop 1
    v_add_u32_dpp v8, v8, v8 row_shr:8 row_mask:0xf bank_mask:0xf bound_ctrl:0
    s_nop 1
    v_add_u32_dpp v8, v8, v8 row_bcast:15 row_mask:0xa bank_mask:0xf
    s_nop 1
    v_add_u32_dpp v8, v8, v8 row_bcast:31 row_mask:0xc bank_mask:0xf
    v_sub_u32 v9, v8, v7
    v_add_u32 v10, v9, v4
    v_add_u32 v11, v9, v5
    v_add_u32 v15, v9, v6
    v_lshl_or_b32 v4, v10, 16, v9
    v_lshl_or_b32 v5, v11, 16, v10
    v_lshl_or_b32 v6, v15, 16, v11
    v_lshl_or_b32 v7, v8, 16, v15
    v_add_u32 v8, 512, v9
    v_add_u32 v9, 512, v10
    v_add_u32 v10, 512, v11
    v_add_u32 v11, 512, v15
    ds_write_b128 v1, v[8:11]
    s_lshl_b32 s36, s2, 10
    s_waitcnt lgkmcnt(0)
    s_barrier
    buffer_store_dwordx4 v[4:7], v1, s[24:27], s36 offen{ST_FL}
    s_nop 1
    s_branch p1_scan_done
p1_scan_skip:
    s_barrier
p1_scan_done:""")
stamp()
if "notouch" not in sys.argv:
    w(f"""    s_cmp_lg_u32 s3, 7
    s_cbranch_scc1 p1_notouch
    s_and_b32 s41, s41, 0xffff
    s_mov_b32 s42, {E * 8}
    s_mov_b32 s43, 0x00020000
    s_and_b32 s45, s45, 0xffff
    s_mov_b32 s46, {E * 2}
    s_mov_b32 s47, 0x00020000
    v_and_b32 v86, 63, v0
    v_lshlrev_b32 v86, 7, v86
    s_mul_i32 s36, s2, 6272
    s_mul_i32 s37, s2, 1664
    s_mov_b64 exec, {(1 << 49) - 1:#x}
    buffer_load_dword v87, v86, s[40:43], s36 offen
    s_mov_b64 exec, 0x1fff
    buffer_load_dword v87, v86, s[44:47], s37 offen
    s_mov_b64 exec, -1
p1_notouch:""".replace("s_mov_b64 exec, 0x1ffffffffffff", "s_mov_b32 exec_hi, 0x1ffff"))
wave0_partial("p1_b3skip", lambda: (p1_base(6), w("    s_waitcnt lgkmcnt(0)"), p1_scatter(6)))
p1_base(0)
p1_base(1)
for r in range(6):
    if r + 2 < 6:
        p1_base(r + 2)
    w("    s_waitcnt lgkmcnt(%d)" % (8 if r == 0 else (4 if r + 2 < 6 else 0) + 8))
    p1_scatter(r)
w("    s_waitcnt lgkmcnt(0)")
stamp()
w("    s_barrier")
stamp()
w(f"    s_setprio {PR[3]}")
stg = [16 + 4 * r for r in range(10)]
for r in range(10):
    a, off = (12, r * 8192) if r < 8 else (13, (r - 8) * 8192)
    w(f"    ds_read_b128 v[{stg[r]}:{stg[r] + 3}], v{a} offset:{off}")
w(f"    s_mul_i32 s36, s2, {TS}")
for r in range(10):
    w(f"""    s_waitcnt lgkmcnt({9 - r})
    buffer_store_dwordx4 v[{stg[r]}:{stg[r] + 3}], v{1 if r < 9 else 14}, s[20:23], s36 offen{ST_FL}
    s_add_u32 s36, s36, 8192""")
if "l2pf" in sys.argv:
    w(f"""    s_cmp_ge_u32 s2, 256
    s_cbranch_scc1 p1_nol2
    s_and_b32 s41, s41, 0xffff
    s_mov_b32 s42, {E * 8}
    s_mov_b32 s43, 0x00020000
    s_lshr_b32 s38, s2, 3
    s_mul_i32 s38, s38, 100096
    v_lshlrev_b32 v60, 7, v0
    v_cmp_gt_u32 vcc, 270, v0
    buffer_load_dword v61, v60, s[40:43], s38 offen
    s_add_u32 s38, s38, 65536
    v_cndmask_b32 v62, 2.0, v60, vcc
    buffer_load_dword v63, v62, s[40:43], s38 offen
p1_nol2:""")
stamp()
if DIAG:
    w("    s_waitcnt vmcnt(0)")
stamp()
if DIAG:
    w("""    s_cmp_ge_u32 s2, 256
    s_cselect_b32 s38, 8, 0
    s_add_u32 s3, s3, s38""")
stamp_flush(0, 3, 40)
w("""p1_done:
    s_endpgm""")
w(kd("part_kernel", 120 if DIAG else 116, 48))

w(head("acc_kernel"))
S_WAVE = 3
S_MI = 4
S_REC = 8
S_OFFS = 12
S_OUT = 12
S_SKIP = 16
S_IT = 17
S_RA = 18
S_RB = 20
S_REM = 22
S_INC = 23
S_BK4 = 24
S_E0 = 25
S_T0, S_T1 = 26, 27
S_K = 28
S_K2 = 30
S_TODO = 32
S_MYINC = 33
S_768 = 34
S_ROT = 35
S_HM = 34
S_MASK = 36
BM = [(8, 10), (12, 14), (32, 100)]
SW_SBF = 36
SW_RBF = 84
S_DIST = 60
S_CENT = 64
S_MB = 68

DA = 6
V_REC = [4 * i + 4 for i in range(DA)]
V_E0, V_E1, V_W0, V_W1, V_BASE, V_L12 = [r + 3 for r in V_REC]
V_L6, V_L6P, V_TWO = 1, 2, 3
V_T = 28
V_JUNK = 42
V_S = [44 + 12 * q for q in range(4)]
V_CH = 3
V_PK = [4, 8, 12, 120]
V_G = [28, 92, 106]
V_MR = [42, 124, 126, 42]
V_SI = 1
V_SL = 2
V_TB2 = 4
V_KC = [16, 18]
V_HIM = 19
V_CN = 20
V_L4 = 21
V_BLK = [24, 32, 40]
V_RW = [48 + 2 * j for j in range(NITB)]
V_RA = [102 + j for j in range(NITB - 1)] + [23]
_st.update(n=0, v=43)
t = V_T

w(f"""    s_cmp_ge_u32 s2, 256
    s_cbranch_scc1 p2_done
    s_load_dwordx2 s[{S_MI}:{S_MI + 1}], s[0:1], 0
    v_readfirstlane_b32 s{S_WAVE}, v0
    s_lshr_b32 s{S_WAVE}, s{S_WAVE}, 6
    s_and_b32 s{S_T1}, s2, 7
    s_lshl_b32 s{S_T1}, s{S_T1}, 5
    s_lshr_b32 s{S_T0}, s2, 3
    s_add_u32 s{S_T1}, s{S_T1}, s{S_T0}        ; bucket
    s_mul_i32 s{S_E0}, s{S_T1}, {EO}
    s_lshl_b32 s{S_BK4}, s{S_T1}, 2
    s_and_b32 s{S_ROT}, s{S_T0}, {ROTN - 1}
    s_mul_i32 s{S_ROT}, s{S_ROT}, {416 // ROTN}
    s_lshr_b32 s{S_ROT}, s{S_ROT}, 1
    s_mov_b32 s{S_SKIP}, 0
    s_mov_b64 s[{S_RA}:{S_RA + 1}], -1
    s_mov_b64 s[{S_RB}:{S_RB + 1}], -1
    s_movk_i32 s{S_768}, {BSTR}
    s_cmp_lt_u32 s{S_WAVE}, {NPW}
    s_cbranch_scc1 a_batch""")
for i in range(48):
    w(f"    v_mov_b32 v{V_S[0] + i}, 0")
w(f"""a_batch:
    s_load_dwordx2 s[{S_REC}:{S_REC + 1}], s[0:1], 104
    s_movk_i32 s{S_768}, {BSTR}
    s_setprio 3
    v_lshlrev_b32 v{t + 2}, 2, v0
    v_mov_b32 v{t + 3}, 0
    v_cmp_gt_u32 vcc, 256, v0
    s_mov_b64 exec, vcc
    ds_write_b32 v{t + 2}, v{t + 3} offset:{A_CNT}
    s_mov_b64 exec, -1
    v_and_b32 v{t + 4}, 31, v0
    v_lshrrev_b32 v{t + 5}, 5, v0
    v_lshl_add_u32 v{t + 5}, v{t + 5}, 4, v{t + 4}      ; tile
    v_lshlrev_b32 v{t}, 10, v{t + 5}
    v_cmp_gt_u32 vcc, 16, v{t + 4}
    v_mul_u32_u24 v{V_L6}, 6, v{t + 4}
    v_add_u32 v{V_L6P}, 3, v{V_L6}
    v_cndmask_b32 v{t}, 2.0, v{t}, vcc
    v_lshlrev_b32 v{V_L12}, 1, v{V_L6}
    v_and_b32 v{V_BASE}, 32, v0
    v_lshlrev_b32 v{V_BASE}, 2, v{V_BASE}
    v_mov_b32 v{V_TWO}, 2
    s_mov_b32 s{S_T0}, {TS}
    v_mul_lo_u32 v{V_E0}, v{t + 5}, s{S_T0}
    s_waitcnt lgkmcnt(0)
    s_add_u32 s{S_REC}, s{S_REC}, {WSOFF}
    s_addc_u32 s{S_REC + 1}, s{S_REC + 1}, 0
    s_add_u32 s{S_OFFS}, s{S_REC}, {OFFS_BASE}
    s_addc_u32 s{S_OFFS + 1}, s{S_REC + 1}, 0
    s_and_b32 s{S_OFFS + 1}, s{S_OFFS + 1}, 0xffff
    s_mov_b32 s{S_OFFS + 2}, {NT * 1024}
    s_mov_b32 s{S_OFFS + 3}, 0x00020000
    buffer_load_dword v{t + 1}, v{t}, s[{S_OFFS}:{S_OFFS + 3}], s{S_BK4} offen
    s_and_b32 s{S_REC + 1}, s{S_REC + 1}, 0xffff
    s_mov_b32 s{S_REC + 2}, {NT * TS}
    s_mov_b32 s{S_REC + 3}, 0x00020000
    s_and_b32 s{S_MI + 1}, s{S_MI + 1}, 0xffff
    s_or_b32 s{S_MI + 1}, s{S_MI + 1}, 0x80000
    s_mov_b32 s{S_MI + 2}, {E}
    s_mov_b32 s{S_MI + 3}, 0x00020000
    s_mov_b32 s{S_IT}, 0
    s_mov_b32 s{S_REM}, -1
    s_mov_b32 s{S_MYINC}, 0""")
stamp()
w(f"""    s_barrier
    s_waitcnt vmcnt(0)
    v_and_b32 v{t + 2}, 0xffff, v{t + 1}               ; s3
    v_lshrrev_b32 v{t + 3}, 16, v{t + 1}               ; e3
    v_and_b32 v{t + 4}, 1, v{t + 1}
    v_mul_u32_u24 v{t + 4}, 3, v{t + 4}                ; relS
    v_sub_u32 v{t + 2}, v{t + 2}, v{t + 4}             ; hb
    v_sub_u32 v{t + 3}, v{t + 3}, v{t + 2}             ; relE
    v_lshl_add_u32 v{V_E0}, v{t + 2}, 1, v{V_E0}
    v_lshl_or_b32 v{V_E1}, v{t + 4}, 16, v{t + 3}
    v_cmp_lt_u32 vcc, v{t + 4}, v{t + 3}
    s_or_b32 s{S_TODO}, vcc_lo, vcc_hi""")
stamp()


def pop(tag, fetch):
    w(f"""    s_cmp_lg_u32 s{S_TODO}, 0
    s_cbranch_scc1 {tag}_have
    s_cmp_lg_u32 s{S_REM}, -1
    s_cbranch_scc1 {tag}_none
    v_and_b32 v{t}, 0xffff, v{V_E1}
    v_subrev_u32 v{t}, 192, v{t}
    v_max_i32 v{V_E1}, 0, v{t}
    v_add_u32 v{V_E0}, 384, v{V_E0}
    v_cmp_lt_u32 vcc, 0, v{V_E1}
    s_or_b32 s{S_TODO}, vcc_lo, vcc_hi
    s_cbranch_scc1 {tag}_have
    s_mov_b32 s{S_REM}, {DA}
    s_branch {tag}_none
{tag}_have:
    s_ff1_i32_b32 s{S_T0}, s{S_TODO}
    s_bitset0_b32 s{S_TODO}, s{S_T0}""")
    if fetch:
        w(f"""    s_lshl_b32 s{S_T0}, s{S_T0}, 2
    v_add_u32 v{t}, s{S_T0}, v{V_BASE}
    ds_bpermute_b32 v{V_W0}, v{t}, v{V_E0}
    ds_bpermute_b32 v{V_W1}, v{t}, v{V_E1}""")
    w(f"{tag}_none:")


def issue_rec(u, tag):
    R = V_REC[u]
    mA = S_MASK + u * 4
    mB = mA + 2
    sd0 = "src0_sel:DWORD src1_sel:WORD_0"
    sd1 = "src0_sel:DWORD src1_sel:WORD_1"
    w(f"""    s_waitcnt lgkmcnt(0)
    v_add_u32 v{t + 1}, v{V_W0}, v{V_L12}
    v_cmp_lt_u32_sdwa vcc, v{V_L6}, v{V_W1} {sd0}
    v_cmp_ge_u32_sdwa s[{mA}:{mA + 1}], v{V_L6}, v{V_W1} {sd1}
    v_cmp_lt_u32_sdwa s[{mB}:{mB + 1}], v{V_L6P}, v{V_W1} {sd0}
    s_or_b64 exec, vcc, 1
    buffer_load_dwordx3 v[{R}:{R + 2}], v{t + 1}, s[{S_REC}:{S_REC + 3}], 0 offen
    s_mov_b64 exec, -1
    s_and_b64 s[{mA}:{mA + 1}], s[{mA}:{mA + 1}], vcc""")
    pop(tag, True)


def place(u):
    if "xnoplace" in sys.argv:
        w(f"    s_add_u32 s{S_IT}, s{S_IT}, 1")
        return
    R = V_REC[u]
    mA = S_MASK + u * 4
    mB = mA + 2
    bA, bB, rA, rB, xA, xB = t + 4, t + 5, t + 6, t + 7, t + 8, t + 9
    sb3 = "dst_sel:DWORD dst_unused:UNUSED_PAD src0_sel:DWORD src1_sel:BYTE_3"
    w(f"""    v_lshlrev_b32_sdwa v{xA}, 2, v{R} {sb3}
    v_lshlrev_b32_sdwa v{xB}, 2, v{R + 2} {sb3}
    s_mov_b64 exec, s[{mA}:{mA + 1}]
    ds_add_rtn_u32 v{rA}, v{xA}, v{V_TWO} offset:{A_CNT}
    s_mov_b64 exec, s[{mB}:{mB + 1}]
    ds_add_rtn_u32 v{rB}, v{xB}, v{V_TWO} offset:{A_CNT}
    s_mov_b64 exec, -1
    v_mul_u32_u24_sdwa v{bA}, s{S_768}, v{R} {sb3}
    v_mul_u32_u24_sdwa v{bB}, s{S_768}, v{R + 2} {sb3}
    s_waitcnt lgkmcnt(0)
    v_cmp_lt_u32 vcc, 0xff, v{rA}
    s_and_b64 s[{S_K}:{S_K + 1}], vcc, s[{mA}:{mA + 1}]
    v_cmp_lt_u32 vcc, 0xff, v{rB}
    s_and_b64 s[{S_K2}:{S_K2 + 1}], vcc, s[{mB}:{mB + 1}]
    s_or_b64 vcc, s[{S_K}:{S_K + 1}], s[{S_K2}:{S_K2 + 1}]
    {"s_branch" if "xnoovf" in sys.argv else "s_cbranch_scc0"} a_noovf{u}
    v_mov_b32 v{xA}, 0
    s_mov_b64 exec, s[{S_K}:{S_K + 1}]
    ds_add_rtn_u32 v{rA}, v{xA}, v{V_TWO} offset:{A_OVF}
    s_mov_b64 exec, s[{S_K2}:{S_K2 + 1}]
    ds_add_rtn_u32 v{rB}, v{xA}, v{V_TWO} offset:{A_OVF}
    s_waitcnt lgkmcnt(0)
    v_lshrrev_b32 v{bB}, 8, v{rB}
    v_cmp_le_u32 vcc, {NOVB}, v{bB}
    v_add_u32 v{bB}, {NBIN}, v{bB}
    v_mul_u32_u24 v{bB}, s{S_768}, v{bB}
    v_and_b32 v{rB}, 0xff, v{rB}
    s_mov_b64 s[{S_K2}:{S_K2 + 1}], vcc
    s_mov_b64 exec, s[{S_K}:{S_K + 1}]
    v_lshrrev_b32 v{bA}, 8, v{rA}
    v_cmp_le_u32 vcc, {NOVB}, v{bA}
    v_add_u32 v{bA}, {NBIN}, v{bA}
    v_mul_u32_u24 v{bA}, s{S_768}, v{bA}
    v_and_b32 v{rA}, 0xff, v{rA}
    s_mov_b64 s[{S_K}:{S_K + 1}], vcc
    s_mov_b64 exec, -1
    s_or_b64 vcc, s[{S_K}:{S_K + 1}], s[{S_K2}:{S_K2 + 1}]
    s_cbranch_scc0 a_noovf{u}
    s_mov_b64 s[{S_RA}:{S_RA + 1}], s[{S_K}:{S_K + 1}]
    s_mov_b64 s[{S_RB}:{S_RB + 1}], s[{S_K2}:{S_K2 + 1}]
    s_andn2_b64 s[{mA}:{mA + 1}], s[{mA}:{mA + 1}], s[{S_K}:{S_K + 1}]
    s_andn2_b64 s[{mB}:{mB + 1}], s[{mB}:{mB + 1}], s[{S_K2}:{S_K2 + 1}]
    s_mov_b32 s{S_MYINC}, 1
a_noovf{u}:
    v_lshl_add_u32 v{xA}, v{rA}, 1, v{bA}
    v_lshl_add_u32 v{xB}, v{rB}, 1, v{bB}
    v_add_u32 v{rA}, v{rA}, v{bA}
    v_add_u32 v{rB}, v{rB}, v{bB}
    s_mov_b64 exec, s[{mA}:{mA + 1}]
    ds_write_b32 v{xA}, v{R} offset:{A_STG}
    {";" if "xnoang" in sys.argv else ""}ds_write_b16 v{rA}, v{R + 1} offset:{A_STG + 512}
    s_mov_b64 exec, s[{mB}:{mB + 1}]
    ds_write_b32 v{xB}, v{R + 2} offset:{A_STG}
    {";" if "xnoang" in sys.argv else ""}ds_write_b16_d16_hi v{rB}, v{R + 1} offset:{A_STG + 512}
    s_mov_b64 exec, -1
    s_cmp_lg_u32 s{S_MYINC}, 0
    s_cbranch_scc1 a_stop
    s_add_u32 s{S_IT}, s{S_IT}, 1""")


w(f"""    s_mov_b32 s{S_T1}, s{S_SKIP}
a_replay:
    s_cmp_eq_u32 s{S_T1}, 0
    s_cbranch_scc1 a_replay_done""")
pop("a_rp", False)
w(f"""    s_sub_u32 s{S_T1}, s{S_T1}, 1
    s_branch a_replay
a_replay_done:""")
for i in range(DA * 2):
    w(f"    s_mov_b64 s[{S_MASK + 2 * i}:{S_MASK + 2 * i + 1}], 0")
pop("a_p0", True)
for u in range(DA - 1):
    w(f"""    s_cmp_lg_u32 s{S_REM}, -1
    s_cbranch_scc1 a_pro_done""")
    issue_rec(u, f"a_pi{u}")
    if u == 0:
        w(f"""    s_and_b64 s[{S_MASK}:{S_MASK + 1}], s[{S_MASK}:{S_MASK + 1}], s[{S_RA}:{S_RA + 1}]
    s_and_b64 s[{S_MASK + 2}:{S_MASK + 3}], s[{S_MASK + 2}:{S_MASK + 3}], s[{S_RB}:{S_RB + 1}]
    s_mov_b64 s[{S_RA}:{S_RA + 1}], -1
    s_mov_b64 s[{S_RB}:{S_RB + 1}], -1""")
w("a_pro_done:")
if "pfA" in sys.argv:
    w(f"""    s_lshr_b32 s{S_T0}, s2, 3
    s_mul_i32 s{S_T0}, s{S_T0}, 12500
    v_lshlrev_b32 v{t + 2}, 4, v0
    v_add_u32 v{t + 2}, s{S_T0}, v{t + 2}
    v_cmp_gt_u32 vcc, 783, v0
    s_or_b64 exec, vcc, 1
    buffer_load_dword v{V_JUNK}, v{t + 2}, s[{S_MI}:{S_MI + 3}], 0 idxen
    s_mov_b64 exec, -1""")
PTH = [3, 6, 9]
for a_ in sys.argv:
    if a_.startswith("pth="):
        PTH = [int(x) for x in a_[4:].split(",")]
w("a_loop:")
for u in range(DA):
    un = (u + DA - 1) % DA
    if "noprioA" not in sys.argv:
        w(f"""    s_cmp_lt_u32 s{S_IT}, {PTH[0]}
    s_cbranch_scc1 a_pr{u}
    s_setprio 2
    s_cmp_lt_u32 s{S_IT}, {PTH[1]}
    s_cbranch_scc1 a_pr{u}
    s_setprio 1
    s_cmp_lt_u32 s{S_IT}, {PTH[2]}
    s_cbranch_scc1 a_pr{u}
    s_setprio 0
a_pr{u}:""")
    w(f"""    s_cmp_lg_u32 s{S_REM}, -1
    s_cbranch_scc1 a_cd{u}""")
    issue_rec(un, f"a_li{u}")
    w(f"""    s_waitcnt vmcnt({DA - 1})
    s_branch a_go{u}
a_cd{u}:
    s_sub_u32 s{S_REM}, s{S_REM}, 1
    s_cmp_eq_u32 s{S_REM}, 0
    s_cbranch_scc1 a_end
    s_mov_b64 s[{S_MASK + un * 4}:{S_MASK + un * 4 + 1}], 0
    s_mov_b64 s[{S_MASK + un * 4 + 2}:{S_MASK + un * 4 + 3}], 0
    s_waitcnt vmcnt(0)
a_go{u}:""")
    place(u)
w(f"""    s_branch a_loop
a_stop:
    v_mov_b32 v{t}, 0
    v_mov_b32 v{t + 1}, 1
    ds_write_b32 v{t}, v{t + 1} offset:{A_INC}
a_end:
    s_add_u32 s{S_SKIP}, s{S_SKIP}, s{S_IT}
    s_load_dwordx2 s[{S_DIST}:{S_DIST + 1}], s[0:1], 24
    s_load_dwordx2 s[{S_CENT}:{S_CENT + 1}], s[0:1], 40
    s_load_dwordx2 s[{S_MB}:{S_MB + 1}], s[0:1], 0
    s_waitcnt vmcnt(0) lgkmcnt(0)
    s_load_dwordx4 s[{S_CENT}:{S_CENT + 3}], s[{S_CENT}:{S_CENT + 1}], 0
    s_and_b32 s{S_DIST + 1}, s{S_DIST + 1}, 0xffff
    s_mov_b32 s{S_DIST + 2}, {E * 2}
    s_mov_b32 s{S_DIST + 3}, 0x00020000
    s_and_b32 s{S_MB + 1}, s{S_MB + 1}, 0xffff
    s_mov_b32 s{S_MB + 2}, {E * 8}
    s_mov_b32 s{S_MB + 3}, 0x00020000""")
stamp()
w(f"""    s_barrier
    v_mov_b32 v{t}, 0
    ds_read_b64 v[{t + 2}:{t + 3}], v{t} offset:{A_OVF}""")
t2 = V_TB2
if DIAG:
    w("    v_mov_b32 v22, v43")
    _st["v"] = 22
w(f"""    s_mov_b32 s{S_HM}, 0xffff0000
    s_cmp_ge_u32 s{S_WAVE}, {NPW}
    s_cbranch_scc1 b_consumer""")
NB2 = NITB * NPW
w(f"""    v_and_b32 v{t2}, 63, v0                       ; lane
    s_add_u32 s{S_T0}, s{S_WAVE}, s{S_ROT}
    v_mul_u32_u24 v{t2 + 1}, {NPW}, v{t2}
    v_add_u32 v{t2 + 1}, s{S_T0}, v{t2 + 1}
    v_subrev_u32 v{t2 + 2}, {NB2}, v{t2 + 1}
    v_min_u32 v{t2 + 1}, v{t2 + 1}, v{t2 + 2}
    v_min_u32 v{t2 + 2}, {NBIN - 1}, v{t2 + 1}
    v_lshlrev_b32 v{t2 + 2}, 2, v{t2 + 2}
    ds_read_b32 v{V_CN}, v{t2 + 2} offset:{A_CNT}
    v_lshlrev_b32 v{t2 + 3}, 3, v{t2}
    v_lshlrev_b32 v{V_L4}, 2, v{t2}
    s_mul_i32 s{S_T0}, s{S_T0}, {BSTR}""")
def readback(j):
    w(f"""    v_add_u32 v{t2 + 6 + 2 * (j % 2)}, s{S_RB0}, v{t2 + 3}
    v_add_u32 v{t2 + 7 + 2 * (j % 2)}, s{S_RB0}, v{V_L4}
    s_add_u32 s{S_RB0}, s{S_RB0}, {NPW * BSTR}
    s_sub_u32 s{S_RB0 + 1}, s{S_RB0}, {NB2 * BSTR}
    s_min_u32 s{S_RB0}, s{S_RB0}, s{S_RB0 + 1}
    ds_read_b64 v[{V_RW[j]}:{V_RW[j] + 1}], v{t2 + 6 + 2 * (j % 2)} offset:{A_STG}
    ds_read_b32 v{V_RA[j]}, v{t2 + 7 + 2 * (j % 2)} offset:{A_STG + 512}""")


S_RB0 = S_K
w(f"    s_mov_b32 s{S_RB0}, s{S_T0}")
readback(0)
readback(1)
w(f"""    v_subrev_u32 v{t2 + 5}, {NBIN}, v{t2 + 1}
    v_lshlrev_b32 v{t2 + 5}, 8, v{t2 + 5}
    v_cmp_gt_u32 vcc, {NBIN}, v{t2 + 1}
    s_waitcnt lgkmcnt(0)
    v_readfirstlane_b32 s{S_INC}, v{t + 3}
    v_min_u32 v{t + 2}, {NOVB * 256}, v{t + 2}
    v_sub_u32 v{t2 + 5}, v{t + 2}, v{t2 + 5}
    v_max_i32 v{t2 + 5}, 0, v{t2 + 5}
    v_cndmask_b32 v{V_CN}, v{t2 + 5}, v{V_CN}, vcc
    v_min_u32 v{V_CN}, 0x100, v{V_CN}""")


BLKOF = {}
MSKOF = {}
free_blk = list(V_BLK)
free_msk = [(36 + 4 * i, 38 + 4 * i) for i in range(12)]
LOOK = 2
for a_ in sys.argv:
    if a_.startswith("look="):
        LOOK = int(a_[5:])


def gather(j):
    BLKOF[j] = B = free_blk.pop(0)
    MSKOF[j] = (mA, mB) = free_msk.pop(0)
    W = V_RW[j]
    w(f"""    v_readlane_b32 s{S_T0}, v{V_CN}, {j}
    v_lshrrev_b32 v{t2}, 13, v{W}
    v_lshrrev_b32 v{t2 + 1}, 13, v{W + 1}
    s_sub_u32 s{S_T1}, s{S_T0}, 2
    v_cmp_gt_u32 s[{mA}:{mA + 1}], s{S_T0}, v{V_L4}
    v_cmp_gt_i32 s[{mB}:{mB + 1}], s{S_T1}, v{V_L4}
    s_or_b64 exec, s[{mA}:{mA + 1}], 1
    buffer_load_dwordx2 v[{B}:{B + 1}], v{t2}, s[{S_MI}:{S_MI + 3}], 0 idxen
    s_or_b64 exec, s[{mB}:{mB + 1}], 1
    buffer_load_dwordx2 v[{B + 4}:{B + 5}], v{t2 + 1}, s[{S_MI}:{S_MI + 3}], 0 idxen
    s_mov_b64 exec, -1""")


def build(j, vm):
    u = j % 3
    c_, k = JMAP[j]
    p = c_ % 2
    so = (k + 5 * p) * 2048
    B = BLKOF[j]
    mA, mB = MSKOF[j]
    W, A = V_RW[j], V_RA[j]
    t = t2
    idx0 = so // 16
    a2, c1, c2, c3 = t + 2, t + 4, t + 6, t + 8
    K0, K1 = V_KC
    lo = "op_sel:[0,0] op_sel_hi:[1,0]"
    hi = "op_sel:[0,1] op_sel_hi:[1,1]"
    w(f"""    v_and_b32 v{t + 10}, 0x1ffc, v{W}
    v_and_b32 v{t + 11}, 0x1ffc, v{W + 1}
    v_add_u32 v{t}, {idx0}, v{V_SI}
    v_add_u32 v{t + 1}, {idx0 + 64}, v{V_SI}
    s_mov_b64 exec, s[{mA}:{mA + 1}]
    ds_wrxchg_rtn_b32 v{B + 3}, v{t + 10}, v{t} offset:{HEAD[p]}
    s_mov_b64 exec, s[{mB}:{mB + 1}]
    ds_wrxchg_rtn_b32 v{B + 7}, v{t + 11}, v{t + 1} offset:{HEAD[p]}
    s_mov_b64 exec, -1
    v_lshlrev_b32 v{a2}, 16, v{A}
    v_and_b32 v{a2 + 1}, s{S_HM}, v{A}
    v_pk_mul_f32 v[{c3}:{c3 + 1}], v[{a2}:{a2 + 1}], v[{K0}:{K0 + 1}] {hi}
    v_pk_mul_f32 v[{c1}:{c1 + 1}], v[{a2}:{a2 + 1}], v[{K0}:{K0 + 1}] {lo}
    v_cvt_pk_bf16_f32 v{c3 + 1}, v{c3}, v{c3 + 1}
    v_fract_f32 v{c1}, v{c1}
    v_fract_f32 v{c1 + 1}, v{c1 + 1}
    v_lshlrev_b32 v{c3}, 16, v{c3 + 1}
    v_and_b32 v{c3 + 1}, s{S_HM}, v{c3 + 1}
    v_cos_f32 v{c1}, v{c1}
    v_cos_f32 v{c1 + 1}, v{c1 + 1}
    v_pk_mul_f32 v[{c3}:{c3 + 1}], v[{c3}:{c3 + 1}], v[{K0}:{K0 + 1}] {lo}
    v_pk_add_f32 v[{c2}:{c2 + 1}], v[{c1}:{c1 + 1}], v[{c1}:{c1 + 1}]
    v_fract_f32 v{c3}, v{c3}
    v_fract_f32 v{c3 + 1}, v{c3 + 1}
    v_pk_fma_f32 v[{c2}:{c2 + 1}], v[{c2}:{c2 + 1}], v[{c1}:{c1 + 1}], v[{K1}:{K1 + 1}] op_sel:[0,0,0] op_sel_hi:[1,1,0]
    v_cos_f32 v{c3}, v{c3}
    v_cos_f32 v{c3 + 1}, v{c3 + 1}
    v_cvt_pk_bf16_f32 v{B + 2}, v{c1}, v{c2}
    v_cvt_pk_bf16_f32 v{B + 6}, v{c1 + 1}, v{c2 + 1}
    v_cvt_pk_bf16_f32 v{t}, v{c3}, v{c3 + 1}
    s_waitcnt lgkmcnt(0)
    v_lshl_or_b32 v{B + 3}, v{t}, 16, v{B + 3}
    v_and_or_b32 v{B + 7}, v{t}, v{V_HIM}, v{B + 7}
    s_waitcnt vmcnt({vm})
    ds_write_b128 v{V_SL}, v[{B}:{B + 3}] offset:{so}
    ds_write_b128 v{V_SL}, v[{B + 4}:{B + 7}] offset:{so + 1024}""")


w("    s_setprio 3")
gather(0)
gather(1)
for j in range(2, NITB):
    readback(j)
w("""    s_waitcnt lgkmcnt(0)
    s_barrier""")
stamp(3)
w(f"""    v_mov_b32 v{V_KC[0]}, 0.15915494
    v_mov_b32 v{V_KC[0] + 1}, 0x40400000
    v_mov_b32 v{V_KC[1]}, -1.0
    v_mov_b32 v{V_HIM}, 0xffff0000
    s_mul_i32 s{S_T0}, s{S_WAVE}, {WREG}
    s_add_u32 s{S_T0}, s{S_T0}, {BUF0}
    v_lshlrev_b32 v{V_SL}, 2, v{V_L4}
    v_add_u32 v{V_SL}, s{S_T0}, v{V_SL}
    v_lshrrev_b32 v{V_SI}, 4, v{V_SL}
    s_barrier""")
stamp(4)
nxt = 2
for j in range(NITB):
    c_, k_ = JMAP[j]
    w(f"    s_setprio {min(2, PAT[c_] - 1 - k_) + (0 if 'prodprio' not in sys.argv else 1)}")
    while nxt < NITB and nxt <= j + LOOK and free_blk:
        gather(nxt)
        nxt += 1
    build(j, 2 * (nxt - 1 - j))
    free_blk.append(BLKOF[j])
    free_msk.append(MSKOF[j])
    if j % 4 == 3 and j < 16:
        free_blk.append(V_RW[j - 3])
    if k_ == PAT[c_] - 1:
        w("    s_waitcnt lgkmcnt(0)")
        stamp(10 + 2 * c_)
        w("    s_barrier")
        stamp(11 + 2 * c_)
w(f"""    s_cmp_lg_u32 s{S_INC}, 0
    s_cbranch_scc0 b_pdone
    s_barrier
    s_branch a_batch
b_pdone:""")
stamp(7)
stamp_flush(1, S_WAVE, 36)
w("    s_endpgm")

c2 = 4
w(f"""b_consumer:
    s_setprio 3
    v_subrev_u32 v{V_CH}, {NPW * 64}, v0
    v_add_u32 v1, s{S_E0}, v{V_CH}
    v_lshlrev_b32 v{V_CH}, 2, v{V_CH}
    s_waitcnt lgkmcnt(0)
    v_readfirstlane_b32 s{S_INC}, v{t + 3}
    v_lshlrev_b32 v1, 1, v1""")
d0, tmp = 16, 24
for q in range(4):
    w(f"    buffer_load_ushort v{d0 + q}, v1, s[{S_DIST}:{S_DIST + 3}], 0 offen offset:{q * 1024}")
w(f"""    v_mov_b32 v4, {NIL}
    v_mov_b32 v5, {NIL}
    v_mov_b32 v6, {NIL}
    v_mov_b32 v7, {NIL}
    v_mov_b32 v8, 0
    v_mov_b32 v9, 0
    v_mov_b32 v10, 0
    v_mov_b32 v11, {NIL}
    v_lshlrev_b32 v2, 2, v{V_CH}
    v_cmp_gt_u32 vcc, 4608, v2
    s_barrier
    ds_write_b128 v2, v[4:7]
    s_mov_b64 exec, vcc
    ds_write_b128 v2, v[4:7] offset:8192
    s_mov_b64 exec, -1
    ds_write_b128 v8, v[8:11] offset:{B_DUMMY}
    s_waitcnt lgkmcnt(0)
    s_barrier
    s_setprio 0
    s_load_dwordx8 s[8:15], s[0:1], 56
    s_waitcnt vmcnt(0)""")
for i in range(4):
    w(f"    v_lshlrev_b32 v{d0 + i}, 16, v{d0 + i}")
for p in range(4):
    w(f"""    s_lshl_b32 s{S_T0}, s{S_CENT + p}, 16
    s_and_b32 s{S_T1}, s{S_CENT + p}, 0xffff0000""")
    for e in range(4):
        a, b, tt = tmp + 2 * (e % 2), tmp + 1 + 2 * (e % 2), V_PK[e] + p
        d = d0 + e
        w(f"""    v_subrev_f32 v{a}, s{S_T0}, v{d}
    v_subrev_f32 v{b}, s{S_T1}, v{d}
    v_cvt_pk_bf16_f32 v{tt}, v{a}, v{b}
    v_lshlrev_b32 v{a}, 16, v{tt}
    v_and_b32 v{b}, 0xffff0000, v{tt}
    v_mul_f32 v{a}, v{a}, v{a}
    v_mul_f32 v{b}, v{b}, v{b}
    v_cvt_pk_bf16_f32 v{tt}, v{a}, v{b}
    v_lshlrev_b32 v{a}, 16, v{tt}
    v_and_b32 v{b}, 0xffff0000, v{tt}
    v_mul_f32 v{a}, 0xc1200000, v{a}
    v_mul_f32 v{b}, 0xc1200000, v{b}
    v_cvt_pk_bf16_f32 v{tt}, v{a}, v{b}
    v_lshlrev_b32 v{a}, 16, v{tt}
    v_and_b32 v{b}, 0xffff0000, v{tt}
    v_mul_f32 v{a}, 0x3fb8aa3b, v{a}
    v_mul_f32 v{b}, 0x3fb8aa3b, v{b}
    v_exp_f32 v{a}, v{a}
    v_exp_f32 v{b}, v{b}
    s_nop 0
    v_cvt_pk_bf16_f32 v{tt}, v{a}, v{b}""")
w(f"""    s_waitcnt lgkmcnt(0)
    s_load_dwordx16 s[{SW_RBF}:{SW_RBF + 15}], s[8:9], 0
    s_load_dwordx16 s[{SW_SBF}:{SW_SBF + 15}], s[10:11], 0
    s_load_dwordx16 s[{SW_SBF + 16}:{SW_SBF + 31}], s[10:11], 64
    s_load_dwordx16 s[{SW_SBF + 32}:{SW_SBF + 47}], s[10:11], 128
    s_mov_b64 s[100:101], s[14:15]
    s_load_dwordx8 s[8:15], s[12:13], 0
    s_waitcnt lgkmcnt(0)""")


def gr_code(edges, G, Rt):
    for p in range(4):
        for dp in range(2):
            sa, sb = SW_RBF + (2 * p) * 2 + dp, SW_RBF + (2 * p + 1) * 2 + dp
            w(f"""    s_pack_ll_b32_b16 s{S_T0}, s{sa}, s{sb}
    s_pack_hh_b32_b16 s{S_T1}, s{sa}, s{sb}""")
            for i, q in enumerate(edges):
                for h, st_ in ((0, S_T0), (1, S_T1)):
                    g = Rt[i] + dp * 2 + h
                    c = "0" if p == 0 else f"v{g}"
                    w(f"    v_dot2_f32_bf16 v{g}, v{V_PK[q] + p}, s{st_}, {c}")
    for l in range(3):
        for p in range(4):
            r0 = (2 * p) * 3 + l
            r1 = (2 * p + 1) * 3 + l
            for dp in range(2):
                sa, sb = SW_SBF + r0 * 2 + dp, SW_SBF + r1 * 2 + dp
                w(f"""    s_pack_ll_b32_b16 s{S_T0}, s{sa}, s{sb}
    s_pack_hh_b32_b16 s{S_T1}, s{sa}, s{sb}""")
                for i, q in enumerate(edges):
                    for h, st_ in ((0, S_T0), (1, S_T1)):
                        g = G[i] + 4 * l + dp * 2 + h
                        c = "0" if p == 0 else f"v{g}"
                        w(f"    v_dot2_f32_bf16 v{g}, v{V_PK[q] + p}, s{st_}, {c}")
    for i, q in enumerate(edges):
        w(f"""    v_cvt_pk_bf16_f32 v{G[i] + 12}, v{Rt[i]}, v{Rt[i] + 1}
    v_cvt_pk_bf16_f32 v{G[i] + 13}, v{Rt[i] + 2}, v{Rt[i] + 3}""")
    w("    s_nop 2")


gr_code([0, 1, 2], V_G, [16, 24, 124])
w(f"    s_setprio {3 if 'prodprio' not in sys.argv else 0}")


def prefetch(n, tag):
    pass


PFN = 0


def walk(p, n, tag):
    r = [c2 + 4 * i for i in range(4)]
    M0, C1 = 20, 42
    ad, nil = 1, 2
    for i in range(n):
        w(f"    ds_read_b32 v{r[i]}, v{V_CH} offset:{HEAD[p] + i * 2048}")
    w(f"    v_mov_b32 v{nil}, {NIL}")
    for i in range(n):
        w(f"""    s_waitcnt lgkmcnt({n - 1 - i + 2 * i})
    v_lshlrev_b32 v{ad}, 4, v{r[i]}
    ds_write_b32 v{V_CH}, v{nil} offset:{HEAD[p] + i * 2048}
    ds_read_b128 v[{r[i]}:{r[i] + 3}], v{ad}""")
    w(f"""    v_mov_b32 v{nil}, {B_DUMMY}
{tag}:""")
    for i in range(n):
        R, Sx = r[i], V_S[i]
        X = 24
        w(f"""    s_waitcnt lgkmcnt({n - 1})
    v_lshlrev_b32_sdwa v{ad}, 4, v{R + 3} dst_sel:DWORD dst_unused:UNUSED_PAD src0_sel:DWORD src1_sel:WORD_0
    v_lshlrev_b32 v{M0}, 16, v{R}
    v_lshlrev_b32 v{M0 + 1}, 16, v{R + 1}
    v_lshlrev_b32 v{C1}, 16, v{R + 2}
    v_and_b32 v{X}, s{S_HM}, v{R}
    v_and_b32 v{X + 1}, s{S_HM}, v{R + 1}
    v_and_b32 v{X + 2}, s{S_HM}, v{R + 2}
    v_and_b32 v{X + 3}, s{S_HM}, v{R + 3}
    ds_read_b128 v[{R}:{R + 3}], v{ad}""")
        if i == 0:
            w(f"    v_cmp_ne_u32 vcc, v{ad}, v{nil}")
        else:
            w(f"    v_cmp_ne_u32 s[{S_K}:{S_K + 1}], v{ad}, v{nil}")
        for l in range(3):
            cp = C1 if l == 0 else X + 2
            sel = "op_sel:[0,1,0] op_sel_hi:[1,1,1]" if l == 2 else "op_sel:[0,0,0] op_sel_hi:[1,0,1]"
            for h, mm in ((0, M0), (1, X)):
                s_ = Sx + 4 * l + 2 * h
                w(f"    v_pk_fma_f32 v[{s_}:{s_ + 1}], v[{mm}:{mm + 1}], v[{cp}:{cp + 1}], v[{s_}:{s_ + 1}] {sel}")
        if i > 0:
            w(f"    s_or_b64 vcc, vcc, s[{S_K}:{S_K + 1}]")
    w(f"""    s_cbranch_vccnz {tag}
    s_waitcnt lgkmcnt(0)""")


w(f"""    s_mov_b32 s{S_REM}, {NCHK}
b_cloop:""")
for p in range(2):
    w("    s_barrier")
    prefetch(PFN, f"b_pfl{p}")
    w(f"""    s_cmp_eq_u32 s{S_WAVE}, {NPW}
    s_cbranch_scc1 b_w4{p}""")
    walk(p, 3, f"b_wa{p}")
    w(f"""    s_branch b_wdone{p}
b_w4{p}:""")
    walk(p, 4, f"b_wb{p}")
    w(f"b_wdone{p}:")
    stamp(8 + p)
    w(f"""    s_sub_u32 s{S_REM}, s{S_REM}, 1
    s_cmp_eq_u32 s{S_REM}, 0
    s_cbranch_scc1 b_cend""")
w(f"""    s_branch b_cloop
b_cend:
    s_waitcnt vmcnt(0)
    s_cmp_lg_u32 s{S_INC}, 0
    s_cbranch_scc0 b_final
    s_barrier
    s_branch a_batch
b_final:
    s_load_dwordx8 s[16:23], s[100:101], 0            ; w_up
    s_load_dwordx2 s[28:29], s[0:1], 88               ; out
    v_lshrrev_b32 v1, 2, v{V_CH}
    v_add_u32 v1, s{S_E0}, v1
    v_add_u32 v2, 512, v1
    buffer_load_dwordx2 v[{V_MR[0]}:{V_MR[0] + 1}], v1, s[{S_MI}:{S_MI + 3}], 0 idxen
    buffer_load_dwordx2 v[{V_MR[1]}:{V_MR[1] + 1}], v2, s[{S_MI}:{S_MI + 3}], 0 idxen
    v_add_u32 v2, 1024, v1
    s_lshl_b32 s{S_E0}, s{S_E0}, 3
    buffer_load_dwordx2 v[{V_MR[2]}:{V_MR[2] + 1}], v2, s[{S_MI}:{S_MI + 3}], 0 idxen
    v_lshlrev_b32 v{V_CH}, 1, v{V_CH}                 ; c*8""")
stamp(6)
SWD2, SWU2, S_OUT = 8, 16, 28


def fin_group(edges, G, first):
    R = [dict(AG=4 + 8 * i, U=8 + 8 * i) for i in range(len(edges))]
    if DIAG:
        R[-1] = dict(AG=V_S[0], U=24) if len(edges) == 3 else R[-1]
    for l in range(3):
        for k in range(4):
            for dp in range(2):
                sg = SWD2 + k * 2 + dp
                w(f"""    s_lshl_b32 s{S_T0}, s{sg}, 16
    s_and_b32 s{S_T1}, s{sg}, 0xffff0000""")
                for i, q in enumerate(edges):
                    for h, st_ in ((0, S_T0), (1, S_T1)):
                        u_ = R[i]['U'] + dp * 2 + h
                        op = "v_mul_f32" if k == 0 else "v_fmac_f32"
                        w(f"    {op} v{u_}, s{st_}, v{V_S[q] + 4 * l + [0, 2, 1, 3][k]}")
        for i, q in enumerate(edges):
            for j in range(4):
                op = "v_mul_f32" if l == 0 else "v_fmac_f32"
                w(f"    {op} v{R[i]['AG'] + j}, v{G[i] + 4 * l + j}, v{R[i]['U'] + j}")
    if first:
        w(f"""    s_waitcnt lgkmcnt(0)
    s_and_b32 s{S_OUT + 1}, s{S_OUT + 1}, 0xffff
    s_mov_b32 s{S_OUT + 2}, {E * 8}
    s_mov_b32 s{S_OUT + 3}, 0x00020000""")
    for k in range(4):
        for dp in range(2):
            sg = SWU2 + k * 2 + dp
            w(f"""    s_lshl_b32 s{S_T0}, s{sg}, 16
    s_and_b32 s{S_T1}, s{sg}, 0xffff0000""")
            for i, q in enumerate(edges):
                for h, st_ in ((0, S_T0), (1, S_T1)):
                    u_ = R[i]['U'] + dp * 2 + h
                    op = "v_mul_f32" if k == 0 else "v_fmac_f32"
                    w(f"    {op} v{u_}, s{st_}, v{R[i]['AG'] + k}")
    w("    s_waitcnt vmcnt(0)")
    for i, q in enumerate(edges):
        for dp in range(2):
            u0 = R[i]['U'] + 2 * dp
            rp = G[i] + 12 + dp
            mr = V_MR[q] + dp
            a, b = R[i]['AG'], R[i]['AG'] + 1
            w(f"""    v_cvt_pk_bf16_f32 v{u0 + 1}, v{u0}, v{u0 + 1}
    v_lshlrev_b32 v{a}, 16, v{rp}
    v_and_b32 v{b}, 0xffff0000, v{rp}
    v_lshlrev_b32 v{u0}, 16, v{u0 + 1}
    v_and_b32 v{u0 + 1}, 0xffff0000, v{u0 + 1}
    v_mul_f32 v{u0}, v{u0}, v{a}
    v_mul_f32 v{u0 + 1}, v{u0 + 1}, v{b}
    v_cvt_pk_bf16_f32 v{u0 + 1}, v{u0}, v{u0 + 1}
    v_lshlrev_b32 v{a}, 16, v{mr}
    v_and_b32 v{b}, 0xffff0000, v{mr}
    v_lshlrev_b32 v{u0}, 16, v{u0 + 1}
    v_and_b32 v{u0 + 1}, 0xffff0000, v{u0 + 1}
    v_add_f32 v{u0}, v{u0}, v{a}
    v_add_f32 v{u0 + 1}, v{u0 + 1}, v{b}
    v_cvt_pk_bf16_f32 v{rp}, v{u0}, v{u0 + 1}""")
        w(f"""    s_add_u32 s{S_T0}, s{S_E0}, {q * 4096}
    buffer_store_dwordx2 v[{G[i] + 12}:{G[i] + 13}], v{V_CH}, s[{S_OUT}:{S_OUT + 3}], s{S_T0} offen""")


fin_group([0, 1, 2], V_G, True)
w(f"""    s_cmp_lg_u32 s{S_WAVE}, {NPW}
    s_cbranch_scc1 b_fin_done
    v_cmp_gt_u32 vcc, {(EO - 1536) * 8}, v{V_CH}
    v_add_u32 v2, 1536, v1
    buffer_load_dwordx2 v[{V_MR[3]}:{V_MR[3] + 1}], v2, s[{S_MI}:{S_MI + 3}], 0 idxen
    v_cndmask_b32 v{V_CH}, 2.0, v{V_CH}, vcc""")
gr_code([3], [44], [60])
fin_group([3], [44], False)
w("b_fin_done:")
stamp(7)
stamp_flush(1, S_WAVE, 36)
w("""p2_done:
    s_endpgm""")
w(kd("acc_kernel", 128, 102))
print("\n".join(out))
```

```python
import sys
E = 400000
T = 6400000
EO = 1563
MAGIC = -(-(1 << 32) // EO)
S = 12500
NT = 512
TS = 75008
OFFS_BASE = 40 * 1024 * 1024
assert all(((i * MAGIC) >> 32) == i // EO for i in range(0, E, 1))
assert MAGIC < (1 << 24)

HDR = open('standalone__molecular_angular_gemnet__graph.s.ref').read().split('; Override launch')[0]
out = []


def w(s):
    out.append(s)


def kd(name, vgpr, sgpr):
    return f""".section .rodata,"a"
.p2align 6
.amdhsa_kernel {name}
  .amdhsa_next_free_vgpr {vgpr}
  .amdhsa_next_free_sgpr {sgpr}
  .amdhsa_accum_offset {(vgpr + 3) // 4 * 4}
  .amdhsa_group_segment_fixed_size 0
  .amdhsa_kernarg_size 112
  .amdhsa_user_sgpr_count 2
  .amdhsa_user_sgpr_kernarg_segment_ptr 1
  .amdhsa_system_sgpr_workgroup_id_x 1
  .amdhsa_float_denorm_mode_32 3
.end_amdhsa_kernel
.text
"""


def head(name):
    return f""".globl {name}
.p2align 8
.type {name},@function
{name}:"""


def srd(d, b, nbytes):
    return f"""    s_mov_b32 s{d}, s{b}
    s_and_b32 s{d + 1}, s{b + 1}, 0xffff
    s_mov_b32 s{d + 2}, {nbytes}
    s_mov_b32 s{d + 3}, 0x00020000"""


DIAG = "diag" in sys.argv
STAMP_BASE = 200 * 1024 * 1024
_st = {"n": 0, "s": 0}


def stamp(k=None):
    if not DIAG:
        return
    if k is None:
        k = _st["n"]
    _st["n"] = k + 1
    b = _st["s"]
    v = _st["v"]
    w(f"""    s_memrealtime vcc
    s_waitcnt lgkmcnt(0)
    v_writelane_b32 v{v}, vcc_lo, {k}""")


def stamp_flush(kid, swave, b, wgmask=255):
    if not DIAG:
        return
    v = _st['v']
    w(f"""    s_load_dwordx2 s[{b}:{b + 1}], s[0:1], 104
    s_waitcnt lgkmcnt(0)
    s_add_u32 s{b}, s{b}, {STAMP_BASE + kid * 4 * 1024 * 1024}
    s_addc_u32 s{b + 1}, s{b + 1}, 0
    s_and_b32 s{b + 2}, s2, {wgmask}
    s_lshl_b32 s{b + 2}, s{b + 2}, 4
    s_add_u32 s{b + 2}, s{b + 2}, s{swave}
    s_lshl_b32 s{b + 2}, s{b + 2}, 8
    v_and_b32 v1, 63, v0
    v_lshlrev_b32 v1, 2, v1
    v_add_u32 v1, s{b + 2}, v1
    global_store_dword v1, v{v}, s[{b}:{b + 1}]""")
    sys.stderr.write(f"kernel {kid}: {_st['n']} stamps\n")


P1_LDS = 1024 + TS
ROTN = 1
ROTC = 0
for a_ in sys.argv:
    if a_.startswith('rotc='):
        ROTC = int(a_[5:])
for a_ in sys.argv:
    if a_.startswith('rot='):
        ROTN = int(a_[4:])
NBIN = 196
NBLK = 209
BSTR = 776
NOVB = (NBLK - NBIN) if "smallovf" not in sys.argv else 1
A_CNT = 0
A_OVF = 1008
A_INC = A_OVF + 4
A_STG = 1024
assert A_STG + NBLK * BSTR <= 163840
NPW = 8
KCH = 4
HEAD = [0, 6400]
B_DUMMY = 12800
BUF0 = 13056
WREG = 9 * 2048
assert BUF0 + NPW * WREG <= 163840
PAT = [5, 4, 5, 4, 5, 4]
for a_ in sys.argv:
    if a_.startswith("pat="):
        PAT = [int(x) for x in a_[4:].split(",")]
NIL = B_DUMMY // 16
NITB = -(-NBLK // NPW)
assert sum(PAT) == NITB and all(n <= (5, 4)[c % 2] for c, n in enumerate(PAT))
NCHK = len(PAT)
JMAP = [(c, k) for c, n in enumerate(PAT) for k in range(n)]
ST_FL = " sc1" if "nosc1" not in sys.argv else ""

w(HDR.rstrip("\n"))
w(f"; @launch kernel=part_kernel grid=(512,1,1) block=(512,1,1) lds={P1_LDS}")
w(f"; @launch kernel=acc_kernel grid=(256,1,1) block=(1024,1,1) lds=163840")
w('.amdgcn_target "amdgcn-amd-amdhsa--gfx950"\n.text')

w(head("part_kernel"))
RB = 16
KB = 88
TMP = 4
_st.update(n=0, v=116)
w(f"""    s_cmp_ge_u32 s2, {NT}
    s_cbranch_scc1 p1_done
    s_load_dwordx4 s[4:7], s[0:1], 8
    s_load_dwordx2 s[28:29], s[0:1], 32    ; angle
    s_load_dwordx2 s[30:31], s[0:1], 104   ; ws
    s_load_dwordx2 s[40:41], s[0:1], 0     ; m
    s_load_dwordx2 s[44:45], s[0:1], 24    ; dist
    v_lshlrev_b32 v1, 4, v0
    v_lshlrev_b32 v2, 3, v0
    v_mov_b32 v3, 3
    v_readfirstlane_b32 s3, v0
    s_lshr_b32 s3, s3, 6
    s_mul_i32 s32, s2, {S * 4}
    s_mul_i32 s33, s2, {S * 2}
    s_mov_b32 s34, {MAGIC}
    s_mov_b32 s35, {(-EO * 4) & 0xffffffff}
    v_lshlrev_b32 v4, 2, v0
    v_mov_b32 v5, 0
    v_cmp_gt_u32 vcc, 256, v0
    s_mov_b64 exec, vcc
    ds_write_b32 v4, v5
    s_mov_b64 exec, -1
    v_add_u32 v12, 1024, v1
    v_add_u32 v13, {1024 + 65536}, v1
    v_cmp_gt_u32 vcc, {TS // 16 - 9 * 512}, v0
    s_nop 1
    v_cndmask_b32 v14, 2.0, v1, vcc
    s_waitcnt lgkmcnt(0)
    s_barrier""")
stamp()
WSOFF = 0
for a_ in sys.argv:
    if a_.startswith("wsoff="):
        WSOFF = int(a_[6:]) * 1024 * 1024
if WSOFF:
    w(f"""    s_add_u32 s30, s30, {WSOFF}
    s_addc_u32 s31, s31, 0""")
w(srd(8, 4, T * 4))
w(srd(12, 6, T * 4))
w(srd(16, 28, T * 2))
w(srd(20, 30, NT * TS))
w(f"""    s_add_u32 s30, s30, {OFFS_BASE}
    s_addc_u32 s31, s31, 0""")
w(srd(24, 30, NT * 1024))


def p1_loads(r):
    b = RB + r * 10
    w(f"""    s_add_u32 s36, s32, {r * 8192}
    s_add_u32 s37, s33, {r * 4096}
    buffer_load_dwordx4 v[{b + 4}:{b + 7}], v1, s[12:15], s36 offen{LDF}
    buffer_load_dwordx4 v[{b}:{b + 3}], v1, s[8:11], s36 offen{LDF}
    buffer_load_dwordx2 v[{b + 8}:{b + 9}], v2, s[16:19], s37 offen{LDF}""")


NPART = S // 4 - 6 * 512
PMASK = (1 << NPART) - 1


def wave0_partial(tag, fn):
    w(f"""    s_cmp_lg_u32 s3, 0
    s_cbranch_scc1 {tag}
    s_mov_b32 exec_lo, {PMASK & 0xffffffff}
    s_mov_b32 exec_hi, {PMASK >> 32}""")
    fn()
    w(f"""    s_mov_b64 exec, -1
{tag}:""")


def p1_hist(r):
    b = RB + r * 10
    for i in range(4):
        vin = b + i
        vo = b + 4 + i
        t = TMP + i
        w(f"""    v_mul_hi_u32_u24 v{t}, s34, v{vo}
    v_lshlrev_b32 v{vo}, 2, v{vo}
    v_mad_i32_i24 v{vo}, v{t}, s35, v{vo}
    v_lshl_or_b32 v{vin}, v{vin}, 13, v{vo}
    v_lshlrev_b32 v{vo}, 2, v{t}
    ds_add_rtn_u32 v{KB + r * 4 + i}, v{vo}, v3""")


def p1_base(r):
    b = RB + r * 10
    for i in range(4):
        vo = b + 4 + i
        w(f"    ds_read_b32 v{vo}, v{vo}")


def p1_scatter(r):
    b = RB + r * 10
    for i in range(4):
        vin = b + i
        vo = b + 4 + i
        k = KB + r * 4 + i
        t = TMP + i
        va = b + 8 + i // 2
        wr = "ds_write_b16" if i % 2 == 0 else "ds_write_b16_d16_hi"
        w(f"""    v_add_lshl_u32 v{k}, v{vo}, v{k}, 1
    v_and_b32 v{t}, 2, v{k}
    v_add_u32 v{vo}, v{k}, v{t}
    v_mad_i32_i24 v{k}, v{t}, -2, v{k}
    ds_write_b32 v{vo}, v{vin}
    {wr} v{k}, v{va} offset:4""")


PR = [3, 1, 2, 2]
for a_ in sys.argv:
    if a_.startswith("pr="):
        PR = [int(x) for x in a_[3:]]
LDF = " nt" if "ldnt" in sys.argv else ""
w(f"""    s_setprio {PR[1]}
    s_cmp_ge_u32 s2, 256
    s_cbranch_scc1 p1_lowprio
    s_setprio {PR[0]}
p1_lowprio:""")
wave0_partial("p1_l3skip", lambda: p1_loads(6))
for r in range(6):
    p1_loads(r)
w(f"    s_setprio {PR[2]}")
stamp()
for r in range(6):
    w(f"    s_waitcnt vmcnt({15 - 3 * r})")
    p1_hist(r)
    if r == 0:
        wave0_partial("p1_h3skip", lambda: p1_hist(6))
w("    s_waitcnt lgkmcnt(0)")
stamp()
w(f"""    s_barrier
    s_cmp_lg_u32 s3, 0
    s_cbranch_scc1 p1_scan_skip
    ds_read_b128 v[4:7], v1
    s_waitcnt lgkmcnt(0)
    v_add_u32 v5, v4, v5
    v_add_u32 v6, v5, v6
    v_add_u32 v7, v6, v7
    v_mov_b32 v8, v7
    s_nop 1
    v_add_u32_dpp v8, v8, v8 row_shr:1 row_mask:0xf bank_mask:0xf bound_ctrl:0
    s_nop 1
    v_add_u32_dpp v8, v8, v8 row_shr:2 row_mask:0xf bank_mask:0xf bound_ctrl:0
    s_nop 1
    v_add_u32_dpp v8, v8, v8 row_shr:4 row_mask:0xf bank_mask:0xf bound_ctrl:0
    s_nop 1
    v_add_u32_dpp v8, v8, v8 row_shr:8 row_mask:0xf bank_mask:0xf bound_ctrl:0
    s_nop 1
    v_add_u32_dpp v8, v8, v8 row_bcast:15 row_mask:0xa bank_mask:0xf
    s_nop 1
    v_add_u32_dpp v8, v8, v8 row_bcast:31 row_mask:0xc bank_mask:0xf
    v_sub_u32 v9, v8, v7
    v_add_u32 v10, v9, v4
    v_add_u32 v11, v9, v5
    v_add_u32 v15, v9, v6
    v_lshl_or_b32 v4, v10, 16, v9
    v_lshl_or_b32 v5, v11, 16, v10
    v_lshl_or_b32 v6, v15, 16, v11
    v_lshl_or_b32 v7, v8, 16, v15
    v_add_u32 v8, 512, v9
    v_add_u32 v9, 512, v10
    v_add_u32 v10, 512, v11
    v_add_u32 v11, 512, v15
    ds_write_b128 v1, v[8:11]
    s_lshl_b32 s36, s2, 10
    s_waitcnt lgkmcnt(0)
    s_barrier
    buffer_store_dwordx4 v[4:7], v1, s[24:27], s36 offen{ST_FL}
    s_nop 1
    s_branch p1_scan_done
p1_scan_skip:
    s_barrier
p1_scan_done:""")
stamp()
if "notouch" not in sys.argv:
    w(f"""    s_cmp_lg_u32 s3, 7
    s_cbranch_scc1 p1_notouch
    s_and_b32 s41, s41, 0xffff
    s_mov_b32 s42, {E * 8}
    s_mov_b32 s43, 0x00020000
    s_and_b32 s45, s45, 0xffff
    s_mov_b32 s46, {E * 2}
    s_mov_b32 s47, 0x00020000
    v_and_b32 v86, 63, v0
    v_lshlrev_b32 v86, 7, v86
    s_mul_i32 s36, s2, 6272
    s_mul_i32 s37, s2, 1664
    s_mov_b64 exec, {(1 << 49) - 1:#x}
    buffer_load_dword v87, v86, s[40:43], s36 offen
    s_mov_b64 exec, 0x1fff
    buffer_load_dword v87, v86, s[44:47], s37 offen
    s_mov_b64 exec, -1
p1_notouch:""".replace("s_mov_b64 exec, 0x1ffffffffffff", "s_mov_b32 exec_hi, 0x1ffff"))
wave0_partial("p1_b3skip", lambda: (p1_base(6), w("    s_waitcnt lgkmcnt(0)"), p1_scatter(6)))
p1_base(0)
p1_base(1)
for r in range(6):
    if r + 2 < 6:
        p1_base(r + 2)
    w("    s_waitcnt lgkmcnt(%d)" % (8 if r == 0 else (4 if r + 2 < 6 else 0) + 8))
    p1_scatter(r)
w("    s_waitcnt lgkmcnt(0)")
stamp()
w("    s_barrier")
stamp()
w(f"    s_setprio {PR[3]}")
stg = [16 + 4 * r for r in range(10)]
for r in range(10):
    a, off = (12, r * 8192) if r < 8 else (13, (r - 8) * 8192)
    w(f"    ds_read_b128 v[{stg[r]}:{stg[r] + 3}], v{a} offset:{off}")
w(f"    s_mul_i32 s36, s2, {TS}")
for r in range(10):
    w(f"""    s_waitcnt lgkmcnt({9 - r})
    buffer_store_dwordx4 v[{stg[r]}:{stg[r] + 3}], v{1 if r < 9 else 14}, s[20:23], s36 offen{ST_FL}
    s_add_u32 s36, s36, 8192""")
if "l2pf" in sys.argv:
    w(f"""    s_cmp_ge_u32 s2, 256
    s_cbranch_scc1 p1_nol2
    s_and_b32 s41, s41, 0xffff
    s_mov_b32 s42, {E * 8}
    s_mov_b32 s43, 0x00020000
    s_lshr_b32 s38, s2, 3
    s_mul_i32 s38, s38, 100096
    v_lshlrev_b32 v60, 7, v0
    v_cmp_gt_u32 vcc, 270, v0
    buffer_load_dword v61, v60, s[40:43], s38 offen
    s_add_u32 s38, s38, 65536
    v_cndmask_b32 v62, 2.0, v60, vcc
    buffer_load_dword v63, v62, s[40:43], s38 offen
p1_nol2:""")
stamp()
if DIAG:
    w("    s_waitcnt vmcnt(0)")
stamp()
if DIAG:
    w("""    s_cmp_ge_u32 s2, 256
    s_cselect_b32 s38, 8, 0
    s_add_u32 s3, s3, s38""")
stamp_flush(0, 3, 40)
w("""p1_done:
    s_endpgm""")
w(kd("part_kernel", 120 if DIAG else 116, 48))

w(head("acc_kernel"))
S_WAVE = 3
S_MI = 4
S_REC = 8
S_OFFS = 12
S_OUT = 12
S_SKIP = 16
S_IT = 17
S_RA = 18
S_RB = 20
S_REM = 22
S_INC = 23
S_BK4 = 24
S_E0 = 25
S_T0, S_T1 = 26, 27
S_K = 28
S_K2 = 30
S_TODO = 32
S_MYINC = 33
S_768 = 34
S_ROT = 35
S_HM = 34
S_MASK = 36
BM = [(8, 10), (12, 14), (32, 100)]
SW_SBF = 36
SW_RBF = 84
S_DIST = 60
S_CENT = 64
S_MB = 68

DA = 6
V_REC = [4 * i + 4 for i in range(DA)]
V_E0, V_E1, V_W0, V_W1, V_BASE, V_L12 = [r + 3 for r in V_REC]
V_L6, V_L6P, V_TWO = 1, 2, 3
V_T = 28
V_JUNK = 42
V_S = [44 + 12 * q for q in range(4)]
V_CH = 3
V_PK = [4, 8, 12, 120]
V_G = [28, 92, 106]
V_MR = [42, 124, 126, 42]
V_SI = 1
V_SL = 2
V_TB2 = 4
V_KC = [16, 18]
V_HIM = 19
V_CN = 20
V_L4 = 21
V_BLK = [24, 32, 40]
V_RW = [48 + 2 * j for j in range(NITB)]
V_RA = [102 + j for j in range(NITB - 1)] + [23]
_st.update(n=0, v=43)
t = V_T

w(f"""    s_cmp_ge_u32 s2, 256
    s_cbranch_scc1 p2_done
    s_load_dwordx2 s[{S_MI}:{S_MI + 1}], s[0:1], 0
    v_readfirstlane_b32 s{S_WAVE}, v0
    s_lshr_b32 s{S_WAVE}, s{S_WAVE}, 6
    s_and_b32 s{S_T1}, s2, 7
    s_lshl_b32 s{S_T1}, s{S_T1}, 5
    s_lshr_b32 s{S_T0}, s2, 3
    s_add_u32 s{S_T1}, s{S_T1}, s{S_T0}        ; bucket
    s_mul_i32 s{S_E0}, s{S_T1}, {EO}
    s_lshl_b32 s{S_BK4}, s{S_T1}, 2
    s_and_b32 s{S_ROT}, {"s2" if "xrot" in sys.argv else f"s{S_T0}"}, {ROTN - 1}
    s_mul_i32 s{S_ROT}, s{S_ROT}, {416 // ROTN}
    s_lshr_b32 s{S_ROT}, s{S_ROT}, 1
    s_add_u32 s{S_ROT}, s{S_ROT}, {ROTC}
    s_mov_b32 s{S_SKIP}, 0
    s_mov_b64 s[{S_RA}:{S_RA + 1}], -1
    s_mov_b64 s[{S_RB}:{S_RB + 1}], -1
    s_movk_i32 s{S_768}, {BSTR}
    s_cmp_lt_u32 s{S_WAVE}, {NPW}
    s_cbranch_scc1 a_batch""")
for i in range(48):
    w(f"    v_mov_b32 v{V_S[0] + i}, 0")
w(f"""a_batch:
    s_load_dwordx2 s[{S_REC}:{S_REC + 1}], s[0:1], 104
    s_movk_i32 s{S_768}, {BSTR}
    s_setprio 3
    v_lshlrev_b32 v{t + 2}, 2, v0
    v_mov_b32 v{t + 3}, 0
    v_cmp_gt_u32 vcc, 256, v0
    s_mov_b64 exec, vcc
    ds_write_b32 v{t + 2}, v{t + 3} offset:{A_CNT}
    s_mov_b64 exec, -1
    v_and_b32 v{t + 4}, 31, v0
    v_lshrrev_b32 v{t + 5}, 5, v0
    v_lshl_add_u32 v{t + 5}, v{t + 5}, 4, v{t + 4}      ; tile
    v_lshlrev_b32 v{t}, 10, v{t + 5}
    v_cmp_gt_u32 vcc, 16, v{t + 4}
    v_mul_u32_u24 v{V_L6}, 6, v{t + 4}
    v_add_u32 v{V_L6P}, 3, v{V_L6}
    v_cndmask_b32 v{t}, 2.0, v{t}, vcc
    v_lshlrev_b32 v{V_L12}, 1, v{V_L6}
    v_and_b32 v{V_BASE}, 32, v0
    v_lshlrev_b32 v{V_BASE}, 2, v{V_BASE}
    v_mov_b32 v{V_TWO}, 2
    s_mov_b32 s{S_T0}, {TS}
    v_mul_lo_u32 v{V_E0}, v{t + 5}, s{S_T0}
    s_waitcnt lgkmcnt(0)
    s_add_u32 s{S_REC}, s{S_REC}, {WSOFF}
    s_addc_u32 s{S_REC + 1}, s{S_REC + 1}, 0
    s_add_u32 s{S_OFFS}, s{S_REC}, {OFFS_BASE}
    s_addc_u32 s{S_OFFS + 1}, s{S_REC + 1}, 0
    s_and_b32 s{S_OFFS + 1}, s{S_OFFS + 1}, 0xffff
    s_mov_b32 s{S_OFFS + 2}, {NT * 1024}
    s_mov_b32 s{S_OFFS + 3}, 0x00020000
    buffer_load_dword v{t + 1}, v{t}, s[{S_OFFS}:{S_OFFS + 3}], s{S_BK4} offen
    s_and_b32 s{S_REC + 1}, s{S_REC + 1}, 0xffff
    s_mov_b32 s{S_REC + 2}, {NT * TS}
    s_mov_b32 s{S_REC + 3}, 0x00020000
    s_and_b32 s{S_MI + 1}, s{S_MI + 1}, 0xffff
    s_or_b32 s{S_MI + 1}, s{S_MI + 1}, 0x80000
    s_mov_b32 s{S_MI + 2}, {E}
    s_mov_b32 s{S_MI + 3}, 0x00020000
    s_mov_b32 s{S_IT}, 0
    s_mov_b32 s{S_REM}, -1
    s_mov_b32 s{S_MYINC}, 0""")
stamp()
w(f"""    s_barrier
    s_waitcnt vmcnt(0)
    v_and_b32 v{t + 2}, 0xffff, v{t + 1}               ; s3
    v_lshrrev_b32 v{t + 3}, 16, v{t + 1}               ; e3
    v_and_b32 v{t + 4}, 1, v{t + 1}
    v_mul_u32_u24 v{t + 4}, 3, v{t + 4}                ; relS
    v_sub_u32 v{t + 2}, v{t + 2}, v{t + 4}             ; hb
    v_sub_u32 v{t + 3}, v{t + 3}, v{t + 2}             ; relE
    v_lshl_add_u32 v{V_E0}, v{t + 2}, 1, v{V_E0}
    v_lshl_or_b32 v{V_E1}, v{t + 4}, 16, v{t + 3}
    v_cmp_lt_u32 vcc, v{t + 4}, v{t + 3}
    s_or_b32 s{S_TODO}, vcc_lo, vcc_hi""")
stamp()


def pop(tag, fetch):
    w(f"""    s_cmp_lg_u32 s{S_TODO}, 0
    s_cbranch_scc1 {tag}_have
    s_cmp_lg_u32 s{S_REM}, -1
    s_cbranch_scc1 {tag}_none
    v_and_b32 v{t}, 0xffff, v{V_E1}
    v_subrev_u32 v{t}, 192, v{t}
    v_max_i32 v{V_E1}, 0, v{t}
    v_add_u32 v{V_E0}, 384, v{V_E0}
    v_cmp_lt_u32 vcc, 0, v{V_E1}
    s_or_b32 s{S_TODO}, vcc_lo, vcc_hi
    s_cbranch_scc1 {tag}_have
    s_mov_b32 s{S_REM}, {DA}
    s_branch {tag}_none
{tag}_have:
    s_ff1_i32_b32 s{S_T0}, s{S_TODO}
    s_bitset0_b32 s{S_TODO}, s{S_T0}""")
    if fetch:
        w(f"""    s_lshl_b32 s{S_T0}, s{S_T0}, 2
    v_add_u32 v{t}, s{S_T0}, v{V_BASE}
    ds_bpermute_b32 v{V_W0}, v{t}, v{V_E0}
    ds_bpermute_b32 v{V_W1}, v{t}, v{V_E1}""")
    w(f"{tag}_none:")


def issue_rec(u, tag):
    R = V_REC[u]
    mA = S_MASK + u * 4
    mB = mA + 2
    sd0 = "src0_sel:DWORD src1_sel:WORD_0"
    sd1 = "src0_sel:DWORD src1_sel:WORD_1"
    w(f"""    s_waitcnt lgkmcnt(0)
    v_add_u32 v{t + 1}, v{V_W0}, v{V_L12}
    v_cmp_lt_u32_sdwa vcc, v{V_L6}, v{V_W1} {sd0}
    v_cmp_ge_u32_sdwa s[{mA}:{mA + 1}], v{V_L6}, v{V_W1} {sd1}
    v_cmp_lt_u32_sdwa s[{mB}:{mB + 1}], v{V_L6P}, v{V_W1} {sd0}
    s_or_b64 exec, vcc, 1
    buffer_load_dwordx3 v[{R}:{R + 2}], v{t + 1}, s[{S_REC}:{S_REC + 3}], 0 offen
    s_mov_b64 exec, -1
    s_and_b64 s[{mA}:{mA + 1}], s[{mA}:{mA + 1}], vcc""")
    pop(tag, True)


def place(u):
    if "xnoplace" in sys.argv:
        w(f"    s_add_u32 s{S_IT}, s{S_IT}, 1")
        return
    R = V_REC[u]
    mA = S_MASK + u * 4
    mB = mA + 2
    bA, bB, rA, rB, xA, xB = t + 4, t + 5, t + 6, t + 7, t + 8, t + 9
    sb3 = "dst_sel:DWORD dst_unused:UNUSED_PAD src0_sel:DWORD src1_sel:BYTE_3"
    w(f"""    v_lshlrev_b32_sdwa v{xA}, 2, v{R} {sb3}
    v_lshlrev_b32_sdwa v{xB}, 2, v{R + 2} {sb3}
    s_mov_b64 exec, s[{mA}:{mA + 1}]
    ds_add_rtn_u32 v{rA}, v{xA}, v{V_TWO} offset:{A_CNT}
    s_mov_b64 exec, s[{mB}:{mB + 1}]
    ds_add_rtn_u32 v{rB}, v{xB}, v{V_TWO} offset:{A_CNT}
    s_mov_b64 exec, -1
    v_mul_u32_u24_sdwa v{bA}, s{S_768}, v{R} {sb3}
    v_mul_u32_u24_sdwa v{bB}, s{S_768}, v{R + 2} {sb3}
    s_waitcnt lgkmcnt(0)
    v_cmp_lt_u32 vcc, 0xff, v{rA}
    s_and_b64 s[{S_K}:{S_K + 1}], vcc, s[{mA}:{mA + 1}]
    v_cmp_lt_u32 vcc, 0xff, v{rB}
    s_and_b64 s[{S_K2}:{S_K2 + 1}], vcc, s[{mB}:{mB + 1}]
    s_or_b64 vcc, s[{S_K}:{S_K + 1}], s[{S_K2}:{S_K2 + 1}]
    {"s_branch" if "xnoovf" in sys.argv else "s_cbranch_scc0"} a_noovf{u}
    v_mov_b32 v{xA}, 0
    s_mov_b64 exec, s[{S_K}:{S_K + 1}]
    ds_add_rtn_u32 v{rA}, v{xA}, v{V_TWO} offset:{A_OVF}
    s_mov_b64 exec, s[{S_K2}:{S_K2 + 1}]
    ds_add_rtn_u32 v{rB}, v{xA}, v{V_TWO} offset:{A_OVF}
    s_waitcnt lgkmcnt(0)
    v_lshrrev_b32 v{bB}, 8, v{rB}
    v_cmp_le_u32 vcc, {NOVB}, v{bB}
    v_add_u32 v{bB}, {NBIN}, v{bB}
    v_mul_u32_u24 v{bB}, s{S_768}, v{bB}
    v_and_b32 v{rB}, 0xff, v{rB}
    s_mov_b64 s[{S_K2}:{S_K2 + 1}], vcc
    s_mov_b64 exec, s[{S_K}:{S_K + 1}]
    v_lshrrev_b32 v{bA}, 8, v{rA}
    v_cmp_le_u32 vcc, {NOVB}, v{bA}
    v_add_u32 v{bA}, {NBIN}, v{bA}
    v_mul_u32_u24 v{bA}, s{S_768}, v{bA}
    v_and_b32 v{rA}, 0xff, v{rA}
    s_mov_b64 s[{S_K}:{S_K + 1}], vcc
    s_mov_b64 exec, -1
    s_or_b64 vcc, s[{S_K}:{S_K + 1}], s[{S_K2}:{S_K2 + 1}]
    s_cbranch_scc0 a_noovf{u}
    s_mov_b64 s[{S_RA}:{S_RA + 1}], s[{S_K}:{S_K + 1}]
    s_mov_b64 s[{S_RB}:{S_RB + 1}], s[{S_K2}:{S_K2 + 1}]
    s_andn2_b64 s[{mA}:{mA + 1}], s[{mA}:{mA + 1}], s[{S_K}:{S_K + 1}]
    s_andn2_b64 s[{mB}:{mB + 1}], s[{mB}:{mB + 1}], s[{S_K2}:{S_K2 + 1}]
    s_mov_b32 s{S_MYINC}, 1
a_noovf{u}:
    v_lshl_add_u32 v{xA}, v{rA}, 1, v{bA}
    v_lshl_add_u32 v{xB}, v{rB}, 1, v{bB}
    v_add_u32 v{rA}, v{rA}, v{bA}
    v_add_u32 v{rB}, v{rB}, v{bB}
    s_mov_b64 exec, s[{mA}:{mA + 1}]
    ds_write_b32 v{xA}, v{R} offset:{A_STG}
    {";" if "xnoang" in sys.argv else ""}ds_write_b16 v{rA}, v{R + 1} offset:{A_STG + 512}
    s_mov_b64 exec, s[{mB}:{mB + 1}]
    ds_write_b32 v{xB}, v{R + 2} offset:{A_STG}
    {";" if "xnoang" in sys.argv else ""}ds_write_b16_d16_hi v{rB}, v{R + 1} offset:{A_STG + 512}
    s_mov_b64 exec, -1
    s_cmp_lg_u32 s{S_MYINC}, 0
    s_cbranch_scc1 a_stop
    s_add_u32 s{S_IT}, s{S_IT}, 1""")


w(f"""    s_mov_b32 s{S_T1}, s{S_SKIP}
a_replay:
    s_cmp_eq_u32 s{S_T1}, 0
    s_cbranch_scc1 a_replay_done""")
pop("a_rp", False)
w(f"""    s_sub_u32 s{S_T1}, s{S_T1}, 1
    s_branch a_replay
a_replay_done:""")
for i in range(DA * 2):
    w(f"    s_mov_b64 s[{S_MASK + 2 * i}:{S_MASK + 2 * i + 1}], 0")
pop("a_p0", True)
for u in range(DA - 1):
    w(f"""    s_cmp_lg_u32 s{S_REM}, -1
    s_cbranch_scc1 a_pro_done""")
    issue_rec(u, f"a_pi{u}")
    if u == 0:
        w(f"""    s_and_b64 s[{S_MASK}:{S_MASK + 1}], s[{S_MASK}:{S_MASK + 1}], s[{S_RA}:{S_RA + 1}]
    s_and_b64 s[{S_MASK + 2}:{S_MASK + 3}], s[{S_MASK + 2}:{S_MASK + 3}], s[{S_RB}:{S_RB + 1}]
    s_mov_b64 s[{S_RA}:{S_RA + 1}], -1
    s_mov_b64 s[{S_RB}:{S_RB + 1}], -1""")
w("a_pro_done:")
if "pfA" in sys.argv:
    w(f"""    s_lshr_b32 s{S_T0}, s2, 3
    s_mul_i32 s{S_T0}, s{S_T0}, 12500
    v_lshlrev_b32 v{t + 2}, 4, v0
    v_add_u32 v{t + 2}, s{S_T0}, v{t + 2}
    v_cmp_gt_u32 vcc, 783, v0
    s_or_b64 exec, vcc, 1
    buffer_load_dword v{V_JUNK}, v{t + 2}, s[{S_MI}:{S_MI + 3}], 0 idxen
    s_mov_b64 exec, -1""")
PTH = [3, 6, 9]
for a_ in sys.argv:
    if a_.startswith("pth="):
        PTH = [int(x) for x in a_[4:].split(",")]
w("a_loop:")
for u in range(DA):
    un = (u + DA - 1) % DA
    if "noprioA" not in sys.argv:
        w(f"""    s_cmp_lt_u32 s{S_IT}, {PTH[0]}
    s_cbranch_scc1 a_pr{u}
    s_setprio 2
    s_cmp_lt_u32 s{S_IT}, {PTH[1]}
    s_cbranch_scc1 a_pr{u}
    s_setprio 1
    s_cmp_lt_u32 s{S_IT}, {PTH[2]}
    s_cbranch_scc1 a_pr{u}
    s_setprio 0
a_pr{u}:""")
    w(f"""    s_cmp_lg_u32 s{S_REM}, -1
    s_cbranch_scc1 a_cd{u}""")
    issue_rec(un, f"a_li{u}")
    w(f"""    s_waitcnt vmcnt({DA - 1})
    s_branch a_go{u}
a_cd{u}:
    s_sub_u32 s{S_REM}, s{S_REM}, 1
    s_cmp_eq_u32 s{S_REM}, 0
    s_cbranch_scc1 a_end
    s_mov_b64 s[{S_MASK + un * 4}:{S_MASK + un * 4 + 1}], 0
    s_mov_b64 s[{S_MASK + un * 4 + 2}:{S_MASK + un * 4 + 3}], 0
    s_waitcnt vmcnt(0)
a_go{u}:""")
    place(u)
w(f"""    s_branch a_loop
a_stop:
    v_mov_b32 v{t}, 0
    v_mov_b32 v{t + 1}, 1
    ds_write_b32 v{t}, v{t + 1} offset:{A_INC}
a_end:
    s_add_u32 s{S_SKIP}, s{S_SKIP}, s{S_IT}
    s_load_dwordx2 s[{S_DIST}:{S_DIST + 1}], s[0:1], 24
    s_load_dwordx2 s[{S_CENT}:{S_CENT + 1}], s[0:1], 40
    s_load_dwordx2 s[{S_MB}:{S_MB + 1}], s[0:1], 0
    s_waitcnt vmcnt(0) lgkmcnt(0)
    s_load_dwordx4 s[{S_CENT}:{S_CENT + 3}], s[{S_CENT}:{S_CENT + 1}], 0
    s_and_b32 s{S_DIST + 1}, s{S_DIST + 1}, 0xffff
    s_mov_b32 s{S_DIST + 2}, {E * 2}
    s_mov_b32 s{S_DIST + 3}, 0x00020000
    s_and_b32 s{S_MB + 1}, s{S_MB + 1}, 0xffff
    s_mov_b32 s{S_MB + 2}, {E * 8}
    s_mov_b32 s{S_MB + 3}, 0x00020000""")
stamp()
w(f"""    s_barrier
    v_mov_b32 v{t}, 0
    ds_read_b64 v[{t + 2}:{t + 3}], v{t} offset:{A_OVF}""")
t2 = V_TB2
if DIAG:
    w("    v_mov_b32 v22, v43")
    _st["v"] = 22
w(f"""    s_mov_b32 s{S_HM}, 0xffff0000
    s_cmp_ge_u32 s{S_WAVE}, {NPW}
    s_cbranch_scc1 b_consumer""")
NB2 = NITB * NPW
w(f"""    v_and_b32 v{t2}, 63, v0                       ; lane
    s_add_u32 s{S_T0}, s{S_WAVE}, s{S_ROT}
    v_mul_u32_u24 v{t2 + 1}, {NPW}, v{t2}
    v_add_u32 v{t2 + 1}, s{S_T0}, v{t2 + 1}
    v_subrev_u32 v{t2 + 2}, {NB2}, v{t2 + 1}
    v_min_u32 v{t2 + 1}, v{t2 + 1}, v{t2 + 2}
    v_min_u32 v{t2 + 2}, {NBIN - 1}, v{t2 + 1}
    v_lshlrev_b32 v{t2 + 2}, 2, v{t2 + 2}
    ds_read_b32 v{V_CN}, v{t2 + 2} offset:{A_CNT}
    v_lshlrev_b32 v{t2 + 3}, 3, v{t2}
    v_lshlrev_b32 v{V_L4}, 2, v{t2}
    s_mul_i32 s{S_T0}, s{S_T0}, {BSTR}""")
def readback(j):
    w(f"""    v_add_u32 v{t2 + 6 + 2 * (j % 2)}, s{S_RB0}, v{t2 + 3}
    v_add_u32 v{t2 + 7 + 2 * (j % 2)}, s{S_RB0}, v{V_L4}
    s_add_u32 s{S_RB0}, s{S_RB0}, {NPW * BSTR}
    s_sub_u32 s{S_RB0 + 1}, s{S_RB0}, {NB2 * BSTR}
    s_min_u32 s{S_RB0}, s{S_RB0}, s{S_RB0 + 1}
    ds_read_b64 v[{V_RW[j]}:{V_RW[j] + 1}], v{t2 + 6 + 2 * (j % 2)} offset:{A_STG}
    ds_read_b32 v{V_RA[j]}, v{t2 + 7 + 2 * (j % 2)} offset:{A_STG + 512}""")


S_RB0 = S_K
w(f"    s_mov_b32 s{S_RB0}, s{S_T0}")
readback(0)
readback(1)
w(f"""    v_subrev_u32 v{t2 + 5}, {NBIN}, v{t2 + 1}
    v_lshlrev_b32 v{t2 + 5}, 8, v{t2 + 5}
    v_cmp_gt_u32 vcc, {NBIN}, v{t2 + 1}
    s_waitcnt lgkmcnt(0)
    v_readfirstlane_b32 s{S_INC}, v{t + 3}
    v_min_u32 v{t + 2}, {NOVB * 256}, v{t + 2}
    v_sub_u32 v{t2 + 5}, v{t + 2}, v{t2 + 5}
    v_max_i32 v{t2 + 5}, 0, v{t2 + 5}
    v_cndmask_b32 v{V_CN}, v{t2 + 5}, v{V_CN}, vcc
    v_min_u32 v{V_CN}, 0x100, v{V_CN}""")


BLKOF = {}
MSKOF = {}
free_blk = list(V_BLK)
free_msk = [(36 + 4 * i, 38 + 4 * i) for i in range(12)]
LOOK = 2
for a_ in sys.argv:
    if a_.startswith("look="):
        LOOK = int(a_[5:])


def gather(j):
    BLKOF[j] = B = free_blk.pop(0)
    MSKOF[j] = (mA, mB) = free_msk.pop(0)
    W = V_RW[j]
    w(f"""    v_readlane_b32 s{S_T0}, v{V_CN}, {j}
    v_lshrrev_b32 v{t2}, 13, v{W}
    v_lshrrev_b32 v{t2 + 1}, 13, v{W + 1}
    s_sub_u32 s{S_T1}, s{S_T0}, 2
    v_cmp_gt_u32 s[{mA}:{mA + 1}], s{S_T0}, v{V_L4}
    v_cmp_gt_i32 s[{mB}:{mB + 1}], s{S_T1}, v{V_L4}
    s_or_b64 exec, s[{mA}:{mA + 1}], 1
    buffer_load_dwordx2 v[{B}:{B + 1}], v{t2}, s[{S_MI}:{S_MI + 3}], 0 idxen
    s_or_b64 exec, s[{mB}:{mB + 1}], 1
    buffer_load_dwordx2 v[{B + 4}:{B + 5}], v{t2 + 1}, s[{S_MI}:{S_MI + 3}], 0 idxen
    s_mov_b64 exec, -1""")


def build(j, vm):
    u = j % 3
    c_, k = JMAP[j]
    p = c_ % 2
    so = (k + 5 * p) * 2048
    B = BLKOF[j]
    mA, mB = MSKOF[j]
    W, A = V_RW[j], V_RA[j]
    t = t2
    idx0 = so // 16
    a2, c1, c2, c3 = t + 2, t + 4, t + 6, t + 8
    K0, K1 = V_KC
    lo = "op_sel:[0,0] op_sel_hi:[1,0]"
    hi = "op_sel:[0,1] op_sel_hi:[1,1]"
    w(f"""    v_and_b32 v{t + 10}, 0x1ffc, v{W}
    v_and_b32 v{t + 11}, 0x1ffc, v{W + 1}
    v_add_u32 v{t}, {idx0}, v{V_SI}
    v_add_u32 v{t + 1}, {idx0 + 64}, v{V_SI}
    s_mov_b64 exec, s[{mA}:{mA + 1}]
    ds_wrxchg_rtn_b32 v{B + 3}, v{t + 10}, v{t} offset:{HEAD[p]}
    s_mov_b64 exec, s[{mB}:{mB + 1}]
    ds_wrxchg_rtn_b32 v{B + 7}, v{t + 11}, v{t + 1} offset:{HEAD[p]}
    s_mov_b64 exec, -1
    v_lshlrev_b32 v{a2}, 16, v{A}
    v_and_b32 v{a2 + 1}, s{S_HM}, v{A}
    v_pk_mul_f32 v[{c3}:{c3 + 1}], v[{a2}:{a2 + 1}], v[{K0}:{K0 + 1}] {hi}
    v_pk_mul_f32 v[{c1}:{c1 + 1}], v[{a2}:{a2 + 1}], v[{K0}:{K0 + 1}] {lo}
    v_cvt_pk_bf16_f32 v{c3 + 1}, v{c3}, v{c3 + 1}
    v_fract_f32 v{c1}, v{c1}
    v_fract_f32 v{c1 + 1}, v{c1 + 1}
    v_lshlrev_b32 v{c3}, 16, v{c3 + 1}
    v_and_b32 v{c3 + 1}, s{S_HM}, v{c3 + 1}
    v_cos_f32 v{c1}, v{c1}
    v_cos_f32 v{c1 + 1}, v{c1 + 1}
    v_pk_mul_f32 v[{c3}:{c3 + 1}], v[{c3}:{c3 + 1}], v[{K0}:{K0 + 1}] {lo}
    v_pk_add_f32 v[{c2}:{c2 + 1}], v[{c1}:{c1 + 1}], v[{c1}:{c1 + 1}]
    v_fract_f32 v{c3}, v{c3}
    v_fract_f32 v{c3 + 1}, v{c3 + 1}
    v_pk_fma_f32 v[{c2}:{c2 + 1}], v[{c2}:{c2 + 1}], v[{c1}:{c1 + 1}], v[{K1}:{K1 + 1}] op_sel:[0,0,0] op_sel_hi:[1,1,0]
    v_cos_f32 v{c3}, v{c3}
    v_cos_f32 v{c3 + 1}, v{c3 + 1}
    v_cvt_pk_bf16_f32 v{B + 2}, v{c1}, v{c2}
    v_cvt_pk_bf16_f32 v{B + 6}, v{c1 + 1}, v{c2 + 1}
    v_cvt_pk_bf16_f32 v{t}, v{c3}, v{c3 + 1}
    s_waitcnt lgkmcnt(0)
    v_lshl_or_b32 v{B + 3}, v{t}, 16, v{B + 3}
    v_and_or_b32 v{B + 7}, v{t}, v{V_HIM}, v{B + 7}
    s_waitcnt vmcnt({vm})
    ds_write_b128 v{V_SL}, v[{B}:{B + 3}] offset:{so}
    ds_write_b128 v{V_SL}, v[{B + 4}:{B + 7}] offset:{so + 1024}""")


w("    s_setprio 3")
gather(0)
gather(1)
for j in range(2, NITB):
    readback(j)
w("""    s_waitcnt lgkmcnt(0)
    s_barrier""")
stamp(3)
w(f"""    v_mov_b32 v{V_KC[0]}, 0.15915494
    v_mov_b32 v{V_KC[0] + 1}, 0x40400000
    v_mov_b32 v{V_KC[1]}, -1.0
    v_mov_b32 v{V_HIM}, 0xffff0000
    s_mul_i32 s{S_T0}, s{S_WAVE}, {WREG}
    s_add_u32 s{S_T0}, s{S_T0}, {BUF0}
    v_lshlrev_b32 v{V_SL}, 2, v{V_L4}
    v_add_u32 v{V_SL}, s{S_T0}, v{V_SL}
    v_lshrrev_b32 v{V_SI}, 4, v{V_SL}
    s_barrier""")
stamp(4)
nxt = 2
for j in range(NITB):
    c_, k_ = JMAP[j]
    w(f"    s_setprio {min(2, PAT[c_] - 1 - k_) + (0 if 'prodprio' not in sys.argv else 1)}")
    while nxt < NITB and nxt <= j + LOOK and free_blk:
        gather(nxt)
        nxt += 1
    build(j, 2 * (nxt - 1 - j))
    free_blk.append(BLKOF[j])
    free_msk.append(MSKOF[j])
    if j % 4 == 3 and j < 16:
        free_blk.append(V_RW[j - 3])
    if k_ == PAT[c_] - 1:
        w("    s_waitcnt lgkmcnt(0)")
        stamp(10 + 2 * c_)
        w("    s_barrier")
        stamp(11 + 2 * c_)
w(f"""    s_cmp_lg_u32 s{S_INC}, 0
    s_cbranch_scc0 b_pdone
    s_barrier
    s_branch a_batch
b_pdone:""")
stamp(7)
stamp_flush(1, S_WAVE, 36)
w("    s_endpgm")

c2 = 4
w(f"""b_consumer:
    s_setprio 3
    v_subrev_u32 v{V_CH}, {NPW * 64}, v0
    v_add_u32 v1, s{S_E0}, v{V_CH}
    v_lshlrev_b32 v{V_CH}, 2, v{V_CH}
    s_waitcnt lgkmcnt(0)
    v_readfirstlane_b32 s{S_INC}, v{t + 3}
    v_lshlrev_b32 v1, 1, v1""")
d0, tmp = 16, 24
for q in range(4):
    w(f"    buffer_load_ushort v{d0 + q}, v1, s[{S_DIST}:{S_DIST + 3}], 0 offen offset:{q * 1024}")
w(f"""    v_mov_b32 v4, {NIL}
    v_mov_b32 v5, {NIL}
    v_mov_b32 v6, {NIL}
    v_mov_b32 v7, {NIL}
    v_mov_b32 v8, 0
    v_mov_b32 v9, 0
    v_mov_b32 v10, 0
    v_mov_b32 v11, {NIL}
    v_lshlrev_b32 v2, 2, v{V_CH}
    v_cmp_gt_u32 vcc, 4608, v2
    s_barrier
    ds_write_b128 v2, v[4:7]
    s_mov_b64 exec, vcc
    ds_write_b128 v2, v[4:7] offset:8192
    s_mov_b64 exec, -1
    ds_write_b128 v8, v[8:11] offset:{B_DUMMY}
    s_waitcnt lgkmcnt(0)
    s_barrier
    s_setprio 0
    s_load_dwordx8 s[8:15], s[0:1], 56
    s_waitcnt vmcnt(0)""")
for i in range(4):
    w(f"    v_lshlrev_b32 v{d0 + i}, 16, v{d0 + i}")
for p in range(4):
    w(f"""    s_lshl_b32 s{S_T0}, s{S_CENT + p}, 16
    s_and_b32 s{S_T1}, s{S_CENT + p}, 0xffff0000""")
    for e in range(4):
        a, b, tt = tmp + 2 * (e % 2), tmp + 1 + 2 * (e % 2), V_PK[e] + p
        d = d0 + e
        w(f"""    v_subrev_f32 v{a}, s{S_T0}, v{d}
    v_subrev_f32 v{b}, s{S_T1}, v{d}
    v_cvt_pk_bf16_f32 v{tt}, v{a}, v{b}
    v_lshlrev_b32 v{a}, 16, v{tt}
    v_and_b32 v{b}, 0xffff0000, v{tt}
    v_mul_f32 v{a}, v{a}, v{a}
    v_mul_f32 v{b}, v{b}, v{b}
    v_cvt_pk_bf16_f32 v{tt}, v{a}, v{b}
    v_lshlrev_b32 v{a}, 16, v{tt}
    v_and_b32 v{b}, 0xffff0000, v{tt}
    v_mul_f32 v{a}, 0xc1200000, v{a}
    v_mul_f32 v{b}, 0xc1200000, v{b}
    v_cvt_pk_bf16_f32 v{tt}, v{a}, v{b}
    v_lshlrev_b32 v{a}, 16, v{tt}
    v_and_b32 v{b}, 0xffff0000, v{tt}
    v_mul_f32 v{a}, 0x3fb8aa3b, v{a}
    v_mul_f32 v{b}, 0x3fb8aa3b, v{b}
    v_exp_f32 v{a}, v{a}
    v_exp_f32 v{b}, v{b}
    s_nop 0
    v_cvt_pk_bf16_f32 v{tt}, v{a}, v{b}""")
w(f"""    s_waitcnt lgkmcnt(0)
    s_load_dwordx16 s[{SW_RBF}:{SW_RBF + 15}], s[8:9], 0
    s_load_dwordx16 s[{SW_SBF}:{SW_SBF + 15}], s[10:11], 0
    s_load_dwordx16 s[{SW_SBF + 16}:{SW_SBF + 31}], s[10:11], 64
    s_load_dwordx16 s[{SW_SBF + 32}:{SW_SBF + 47}], s[10:11], 128
    s_mov_b64 s[100:101], s[14:15]
    s_load_dwordx8 s[8:15], s[12:13], 0
    s_waitcnt lgkmcnt(0)""")


def gr_code(edges, G, Rt):
    for p in range(4):
        for dp in range(2):
            sa, sb = SW_RBF + (2 * p) * 2 + dp, SW_RBF + (2 * p + 1) * 2 + dp
            w(f"""    s_pack_ll_b32_b16 s{S_T0}, s{sa}, s{sb}
    s_pack_hh_b32_b16 s{S_T1}, s{sa}, s{sb}""")
            for i, q in enumerate(edges):
                for h, st_ in ((0, S_T0), (1, S_T1)):
                    g = Rt[i] + dp * 2 + h
                    c = "0" if p == 0 else f"v{g}"
                    w(f"    v_dot2_f32_bf16 v{g}, v{V_PK[q] + p}, s{st_}, {c}")
    for l in range(3):
        for p in range(4):
            r0 = (2 * p) * 3 + l
            r1 = (2 * p + 1) * 3 + l
            for dp in range(2):
                sa, sb = SW_SBF + r0 * 2 + dp, SW_SBF + r1 * 2 + dp
                w(f"""    s_pack_ll_b32_b16 s{S_T0}, s{sa}, s{sb}
    s_pack_hh_b32_b16 s{S_T1}, s{sa}, s{sb}""")
                for i, q in enumerate(edges):
                    for h, st_ in ((0, S_T0), (1, S_T1)):
                        g = G[i] + 4 * l + dp * 2 + h
                        c = "0" if p == 0 else f"v{g}"
                        w(f"    v_dot2_f32_bf16 v{g}, v{V_PK[q] + p}, s{st_}, {c}")
    for i, q in enumerate(edges):
        w(f"""    v_cvt_pk_bf16_f32 v{G[i] + 12}, v{Rt[i]}, v{Rt[i] + 1}
    v_cvt_pk_bf16_f32 v{G[i] + 13}, v{Rt[i] + 2}, v{Rt[i] + 3}""")
    w("    s_nop 2")


gr_code([0, 1, 2], V_G, [16, 24, 124])
w(f"    s_setprio {3 if 'prodprio' not in sys.argv else 0}")


def prefetch(n, tag):
    pass


PFN = 0


def walk(p, n, tag):
    r = [c2 + 4 * i for i in range(4)]
    M0, C1 = 20, 42
    ad, nil = 1, 2
    for i in range(n):
        w(f"    ds_read_b32 v{r[i]}, v{V_CH} offset:{HEAD[p] + i * 2048}")
    w(f"    v_mov_b32 v{nil}, {NIL}")
    for i in range(n):
        w(f"""    s_waitcnt lgkmcnt({n - 1 - i + 2 * i})
    v_lshlrev_b32 v{ad}, 4, v{r[i]}
    ds_write_b32 v{V_CH}, v{nil} offset:{HEAD[p] + i * 2048}
    ds_read_b128 v[{r[i]}:{r[i] + 3}], v{ad}""")
    w(f"""    v_mov_b32 v{nil}, {B_DUMMY}
{tag}:""")
    for i in range(n):
        R, Sx = r[i], V_S[i]
        X = 24
        w(f"""    s_waitcnt lgkmcnt({n - 1})
    v_lshlrev_b32_sdwa v{ad}, 4, v{R + 3} dst_sel:DWORD dst_unused:UNUSED_PAD src0_sel:DWORD src1_sel:WORD_0
    v_lshlrev_b32 v{M0}, 16, v{R}
    v_lshlrev_b32 v{M0 + 1}, 16, v{R + 1}
    v_lshlrev_b32 v{C1}, 16, v{R + 2}
    v_and_b32 v{X}, s{S_HM}, v{R}
    v_and_b32 v{X + 1}, s{S_HM}, v{R + 1}
    v_and_b32 v{X + 2}, s{S_HM}, v{R + 2}
    v_and_b32 v{X + 3}, s{S_HM}, v{R + 3}
    ds_read_b128 v[{R}:{R + 3}], v{ad}""")
        if i == 0:
            w(f"    v_cmp_ne_u32 vcc, v{ad}, v{nil}")
        else:
            w(f"    v_cmp_ne_u32 s[{S_K}:{S_K + 1}], v{ad}, v{nil}")
        for l in range(3):
            cp = C1 if l == 0 else X + 2
            sel = "op_sel:[0,1,0] op_sel_hi:[1,1,1]" if l == 2 else "op_sel:[0,0,0] op_sel_hi:[1,0,1]"
            for h, mm in ((0, M0), (1, X)):
                s_ = Sx + 4 * l + 2 * h
                w(f"    v_pk_fma_f32 v[{s_}:{s_ + 1}], v[{mm}:{mm + 1}], v[{cp}:{cp + 1}], v[{s_}:{s_ + 1}] {sel}")
        if i > 0:
            w(f"    s_or_b64 vcc, vcc, s[{S_K}:{S_K + 1}]")
    w(f"""    s_cbranch_vccnz {tag}
    s_waitcnt lgkmcnt(0)""")


w(f"""    s_mov_b32 s{S_REM}, {NCHK}
b_cloop:""")
for p in range(2):
    w("    s_barrier")
    prefetch(PFN, f"b_pfl{p}")
    w(f"""    s_cmp_eq_u32 s{S_WAVE}, {NPW}
    s_cbranch_scc1 b_w4{p}""")
    walk(p, 3, f"b_wa{p}")
    w(f"""    s_branch b_wdone{p}
b_w4{p}:""")
    walk(p, 4, f"b_wb{p}")
    w(f"b_wdone{p}:")
    stamp(8 + p)
    w(f"""    s_sub_u32 s{S_REM}, s{S_REM}, 1
    s_cmp_eq_u32 s{S_REM}, 0
    s_cbranch_scc1 b_cend""")
w(f"""    s_branch b_cloop
b_cend:
    s_waitcnt vmcnt(0)
    s_cmp_lg_u32 s{S_INC}, 0
    s_cbranch_scc0 b_final
    s_barrier
    s_branch a_batch
b_final:
    s_load_dwordx8 s[16:23], s[100:101], 0            ; w_up
    s_load_dwordx2 s[28:29], s[0:1], 88               ; out
    v_lshrrev_b32 v1, 2, v{V_CH}
    v_add_u32 v1, s{S_E0}, v1
    v_add_u32 v2, 512, v1
    buffer_load_dwordx2 v[{V_MR[0]}:{V_MR[0] + 1}], v1, s[{S_MI}:{S_MI + 3}], 0 idxen
    buffer_load_dwordx2 v[{V_MR[1]}:{V_MR[1] + 1}], v2, s[{S_MI}:{S_MI + 3}], 0 idxen
    v_add_u32 v2, 1024, v1
    s_lshl_b32 s{S_E0}, s{S_E0}, 3
    buffer_load_dwordx2 v[{V_MR[2]}:{V_MR[2] + 1}], v2, s[{S_MI}:{S_MI + 3}], 0 idxen
    v_lshlrev_b32 v{V_CH}, 1, v{V_CH}                 ; c*8""")
stamp(6)
SWD2, SWU2, S_OUT = 8, 16, 28


def fin_group(edges, G, first):
    R = [dict(AG=4 + 8 * i, U=8 + 8 * i) for i in range(len(edges))]
    if DIAG:
        R[-1] = dict(AG=V_S[0], U=24) if len(edges) == 3 else R[-1]
    for l in range(3):
        for k in range(4):
            for dp in range(2):
                sg = SWD2 + k * 2 + dp
                w(f"""    s_lshl_b32 s{S_T0}, s{sg}, 16
    s_and_b32 s{S_T1}, s{sg}, 0xffff0000""")
                for i, q in enumerate(edges):
                    for h, st_ in ((0, S_T0), (1, S_T1)):
                        u_ = R[i]['U'] + dp * 2 + h
                        op = "v_mul_f32" if k == 0 else "v_fmac_f32"
                        w(f"    {op} v{u_}, s{st_}, v{V_S[q] + 4 * l + [0, 2, 1, 3][k]}")
        for i, q in enumerate(edges):
            for j in range(4):
                op = "v_mul_f32" if l == 0 else "v_fmac_f32"
                w(f"    {op} v{R[i]['AG'] + j}, v{G[i] + 4 * l + j}, v{R[i]['U'] + j}")
    if first:
        w(f"""    s_waitcnt lgkmcnt(0)
    s_and_b32 s{S_OUT + 1}, s{S_OUT + 1}, 0xffff
    s_mov_b32 s{S_OUT + 2}, {E * 8}
    s_mov_b32 s{S_OUT + 3}, 0x00020000""")
    for k in range(4):
        for dp in range(2):
            sg = SWU2 + k * 2 + dp
            w(f"""    s_lshl_b32 s{S_T0}, s{sg}, 16
    s_and_b32 s{S_T1}, s{sg}, 0xffff0000""")
            for i, q in enumerate(edges):
                for h, st_ in ((0, S_T0), (1, S_T1)):
                    u_ = R[i]['U'] + dp * 2 + h
                    op = "v_mul_f32" if k == 0 else "v_fmac_f32"
                    w(f"    {op} v{u_}, s{st_}, v{R[i]['AG'] + k}")
    w("    s_waitcnt vmcnt(0)")
    for i, q in enumerate(edges):
        for dp in range(2):
            u0 = R[i]['U'] + 2 * dp
            rp = G[i] + 12 + dp
            mr = V_MR[q] + dp
            a, b = R[i]['AG'], R[i]['AG'] + 1
            w(f"""    v_cvt_pk_bf16_f32 v{u0 + 1}, v{u0}, v{u0 + 1}
    v_lshlrev_b32 v{a}, 16, v{rp}
    v_and_b32 v{b}, 0xffff0000, v{rp}
    v_lshlrev_b32 v{u0}, 16, v{u0 + 1}
    v_and_b32 v{u0 + 1}, 0xffff0000, v{u0 + 1}
    v_mul_f32 v{u0}, v{u0}, v{a}
    v_mul_f32 v{u0 + 1}, v{u0 + 1}, v{b}
    v_cvt_pk_bf16_f32 v{u0 + 1}, v{u0}, v{u0 + 1}
    v_lshlrev_b32 v{a}, 16, v{mr}
    v_and_b32 v{b}, 0xffff0000, v{mr}
    v_lshlrev_b32 v{u0}, 16, v{u0 + 1}
    v_and_b32 v{u0 + 1}, 0xffff0000, v{u0 + 1}
    v_add_f32 v{u0}, v{u0}, v{a}
    v_add_f32 v{u0 + 1}, v{u0 + 1}, v{b}
    v_cvt_pk_bf16_f32 v{rp}, v{u0}, v{u0 + 1}""")
        w(f"""    s_add_u32 s{S_T0}, s{S_E0}, {q * 4096}
    buffer_store_dwordx2 v[{G[i] + 12}:{G[i] + 13}], v{V_CH}, s[{S_OUT}:{S_OUT + 3}], s{S_T0} offen""")


fin_group([0, 1, 2], V_G, True)
w(f"""    s_cmp_lg_u32 s{S_WAVE}, {NPW}
    s_cbranch_scc1 b_fin_done
    v_cmp_gt_u32 vcc, {(EO - 1536) * 8}, v{V_CH}
    v_add_u32 v2, 1536, v1
    buffer_load_dwordx2 v[{V_MR[3]}:{V_MR[3] + 1}], v2, s[{S_MI}:{S_MI + 3}], 0 idxen
    v_cndmask_b32 v{V_CH}, 2.0, v{V_CH}, vcc""")
gr_code([3], [44], [60])
fin_group([3], [44], False)
w("b_fin_done:")
stamp(7)
stamp_flush(1, S_WAVE, 36)
w("""p2_done:
    s_endpgm""")
w(kd("acc_kernel", 128, 102))
print("\n".join(out))
```
